```python
import torch

def _softmax(x, axis=-1):
    return torch.softmax(x, dim=axis)
def _gelu(x):
    return torch.nn.functional.gelu(x, approximate="tanh")
def _silu(x):
    return torch.nn.functional.silu(x)
def _sigmoid(x):
    return torch.sigmoid(x)
def _layernorm(x, axis=-1, eps=1e-5):
    m = x.mean(dim=axis, keepdim=True)
    v = x.var(dim=axis, keepdim=True, unbiased=False)
    return (x - m) / torch.sqrt(v + eps)
def _scatter_add(tgt, idx, src, axis=0):
    return tgt.clone().index_add_(axis, idx, src)
def _segment_sum(src, seg, n):
    out = torch.zeros((n,) + src.shape[1:], dtype=src.dtype)
    return out.index_add_(0, seg, src)
def _pad(x, pw):
    flat = tuple(v for pair in reversed(pw) for v in pair)
    return torch.nn.functional.pad(x, flat)

kernel_name = 'sequential_preLN__ssm_conv_s4__glu_gated_bilinear__prompt'

def setup_inputs():

    _w = (lambda a: (lambda t: t.to(torch.bfloat16) if t.is_floating_point() else t)(torch.as_tensor(a)))
    def _A_setup():
        B, L, D, N = 1, 2048, 640, 128
        A_re = -(lambda _x: torch.exp(torch.as_tensor(_x)))((lambda *s: torch.randn(*s, dtype=torch.bfloat16) * 6.4)(D, N))
        A_im = torch.pi * (lambda *s: torch.randn(*s, dtype=torch.bfloat16) * 0.05)(D, N)
        B_re = (lambda *s: torch.randn(*s, dtype=torch.bfloat16) * 0.05)(D, N)
        B_im = (lambda *s: torch.randn(*s, dtype=torch.bfloat16) * 0.05)(D, N)
        C_re = (lambda *s: torch.randn(*s, dtype=torch.bfloat16) * 0.05)(D, N)
        C_im = (lambda *s: torch.randn(*s, dtype=torch.bfloat16) * 0.05)(D, N)
        log_dt = (lambda *s: torch.randn(*s, dtype=torch.bfloat16) * 0.05)(D) * 0.5 - 4.0
        Dskip = (lambda *s: torch.randn(*s, dtype=torch.bfloat16) * 0.05)(D)
        return {
            "u": _w((lambda *s: torch.randn(*s, dtype=torch.bfloat16) * 0.05)(B, L, D)),
            "A_re": _w(A_re),
            "A_im": _w(A_im),
            "B_re": _w(B_re),
            "B_im": _w(B_im),
            "C_re": _w(C_re),
            "C_im": _w(C_im),
            "log_dt": _w(log_dt),
            "Dskip": _w(Dskip),
        }
    _A_in = _A_setup()

    def _B_setup():
        B, S, D, F = 1, 2048, 640, 1728
        return {
            "x": _w((lambda *s: torch.randn(*s, dtype=torch.bfloat16) * 0.05)(B, S, D)),
            "w_gate": _w((lambda *s: torch.randn(*s, dtype=torch.bfloat16) * 0.4)(D, F) * (D ** -0.5)),
            "w_up": _w((lambda *s: torch.randn(*s, dtype=torch.bfloat16) * 0.4)(D, F) * (D ** -0.5)),
            "w_down": _w((lambda *s: torch.randn(*s, dtype=torch.bfloat16) * 0.4)(F, D) * (F ** -0.5)),
        }
    _B_in = _B_setup()

    return {
        "A_u": _A_in["u"],
        "A_A_re": _A_in["A_re"],
        "A_A_im": _A_in["A_im"],
        "A_B_re": _A_in["B_re"],
        "A_B_im": _A_in["B_im"],
        "A_C_re": _A_in["C_re"],
        "A_C_im": _A_in["C_im"],
        "A_log_dt": _A_in["log_dt"],
        "A_Dskip": _A_in["Dskip"],
        "B_x": _B_in["x"],
        "B_w_gate": _B_in["w_gate"],
        "B_w_up": _B_in["w_up"],
        "B_w_down": _B_in["w_down"],
    }

def reference(A_u, A_A_re, A_A_im, A_B_re, A_B_im, A_C_re, A_C_im, A_log_dt, A_Dskip, B_x, B_w_gate, B_w_up, B_w_down):
    def _A_ref(u, A_re, A_im, B_re, B_im, C_re, C_im, log_dt, Dskip):
        Bsz, L, D = u.shape
        dt = torch.exp(log_dt)[:, None]
        A = A_re + 1j * A_im
        Bc = B_re + 1j * B_im
        Cc = C_re + 1j * C_im
        logdA = dt * A
        dB = dt * Bc
        l = (lambda x, dt: x.to(dt))(torch.arange(L), A_re.dtype)
        P = torch.exp(logdA[:, :, None] * l[None, None, :])
        K = torch.einsum("dn,dnl,dn->dl", Cc, P, dB).real
        L2 = 2 * L
        Kp = _pad(K, ((0, 0), (0, L)))
        up = (lambda x, *d: x.permute(*d))(u, 0, 2, 1)
        up = _pad(up, ((0, 0), (0, 0), (0, L)))
        Kf = (lambda x, axes=(-2,-1): torch.fft.rfft2(x.float(), dim=axes))(Kp[:, None, :], axes=(-2, -1))
        Uf = (lambda x, axes=(-2,-1): torch.fft.rfft2(x.float(), dim=axes))(up[:, :, None, :], axes=(-2, -1))
        Yf = Uf * Kf[None, :, :, :]
        y = (lambda x, s, axes=(-2,-1): torch.fft.irfft2(x, s=s, dim=axes).to(torch.bfloat16))(Yf, (1, L2), axes=(-2, -1))[:, :, 0, :L]
        y = (lambda x, *d: x.permute(*d))(y, 0, 2, 1) + u * Dskip[None, None, :]
        return y

    def _B_ref(x, w_gate, w_up, w_down):
        g = torch.einsum("bsd,df->bsf", x, w_gate)
        u = torch.einsum("bsd,df->bsf", x, w_up)
        h = g * u
        return torch.einsum("bsf,fd->bsd", h, w_down)

    x = A_u
    h = x + _A_ref(_layernorm(x, axis=-1), A_A_re, A_A_im, A_B_re, A_B_im, A_C_re, A_C_im, A_log_dt, A_Dskip)
    h2 = h + _B_ref(_layernorm(h, axis=-1), B_w_gate, B_w_up, B_w_down)
    return h2
```

```python
import sys, os
E = lambda k, d: int(os.environ.get(k, d))
KNAME = "sequential_preLN__ssm_conv_s4__glu_gated_bilinear__prompt_kernel"
WS_R2    = 0x8000
WS_HT    = 0x10000
WS_W1P   = 0x290000
WS_WDP   = 0x6F0000
WS_HF    = 0x910000
WS_PROF  = 0xFE0000
WS_XG    = 0x1100000
WS_FH    = 0x1640000
WS_FP    = 0x1660000
WS_SIZE  = 0x1700000
PROF = E("PROF", 0)
NST = 14
PROF_WAVES = 8
PROF_RANGES = [(0, [(0, 160, 0, 4, NST), (0, 160, 4, 8, NST), (160, 214, 0, 4, NST), (160, 214, 4, 8, NST), (214, 250, 0, 4, NST), (214, 250, 4, 8, NST)])]

class Asm:
    def __init__(self): self.l = []
    def __call__(self, s):
        for x in s.split("\n"):
            x = x.strip()
            if x: self.l.append(("" if x.endswith(":") else "    ") + x)
    def text(self): return "\n".join(self.l) + "\n"
def vr(a, n=1): return f"v{a}" if n == 1 else f"v[{a}:{a+n-1}]"
def sr(a, n=1): return f"s{a}" if n == 1 else f"s[{a}:{a+n-1}]"
A = Asm()
DIAG = os.environ.get("DIAG")
_fin = [0]
def stamp(i, wait=True):
    if PROF or (DIAG and str(i) in DIAG.split(",")[:2]):
        A(f"s_memtime s[{64+2*i}:{65+2*i}]")
        if wait: A("s_waitcnt lgkmcnt(0)")
def finish():
    if DIAG:
        a, b, mult, wg, wv = map(int, DIAG.split(","))
        _fin[0] += 1; n = _fin[0]
        A(f"""
        s_waitcnt vmcnt(0)
        s_memtime s[{64+2*(NST-1)}:{65+2*(NST-1)}]
        s_cmp_lg_u32 s2, {wg}
        s_cbranch_scc1 DG_E{n}
        s_cmp_lg_u32 s60, {wv}
        s_cbranch_scc1 DG_E{n}
        s_waitcnt lgkmcnt(0)
        s_sub_u32 s20, s{64+2*b}, s{64+2*a}
        s_min_u32 s20, s20, 100000
        s_mul_i32 s20, s20, {mult}
        s_add_u32 s20, s20, s{64+2*(NST-1)}
        DG_L{n}:
        s_memtime s[22:23]
        s_waitcnt lgkmcnt(0)
        s_sub_u32 s21, s20, s22
        s_cmp_gt_i32 s21, 0
        s_cbranch_scc1 DG_L{n}
        DG_E{n}:
        """)
    if PROF:
        A("s_waitcnt vmcnt(0)")
        stamp(NST - 1)
        A(f"s_lshl_b32 s62, s2, 3\ns_add_u32 s62, s62, s60\ns_lshl_b32 s62, s62, 6\ns_add_u32 s62, s62, {WS_PROF:#x}\nv_mov_b32 v1, 0")
        for i in range(NST):
            A(f"v_mov_b32 v0, s{64+2*i}\nbuffer_store_dword v0, v1, s[12:15], s62 offen offset:{4*i}")
    A("s_endpgm")
def srd(d, base, size):
    A(f"s_mov_b32 s{d}, s{base}\ns_mov_b32 s{d+1}, s{base+1}\ns_mov_b32 s{d+2}, {size:#x}\ns_mov_b32 s{d+3}, 0x00020000")
def cmul(d, a, b):
    A(f"v_pk_mul_f32 {vr(d,2)}, {vr(a,2)}, {vr(b,2)} op_sel_hi:[1,0]")
    A(f"v_pk_fma_f32 {vr(d,2)}, {vr(a,2)}, {vr(b,2)}, {vr(d,2)} op_sel:[1,1,0] op_sel_hi:[0,1,1] neg_lo:[1,0,0]")
def poll(lbl, va, vt, soff="0", slp=2):
    A(f"""
    s_mov_b32 s52, 0
    {lbl}:
    buffer_load_dword {vt}, {va}, s[12:15], {soff} offen sc1
    s_add_u32 s52, s52, 1
    s_waitcnt vmcnt(0)
    v_cmp_ne_u32 vcc, s54, {vt}
    s_cmp_lt_u32 s52, 0x40000
    s_cbranch_vccz {lbl}_D
    s_mov_b64 exec, vcc
    s_sleep {slp}
    s_cbranch_scc1 {lbl}
    {lbl}_D:
    s_mov_b64 exec, -1
    """)

def q_of(c, tau):
    base = (c >> 1) * 7
    if c == 15: return {0: (base + 4, 0), 1: (base + 4, 1), 2: (base + 3, 1)}[tau]
    o = base + (4 if (c & 1) else 0)
    if tau == 3: return (base + 3, c & 1)
    return {0: (o, 0), 1: (o, 1), 2: (o + 1, 0), 6: (o + 1, 1), 4: (o + 2, 0), 5: (o + 2, 1)}[tau]
Q_TILES = {}
for phi in range(108):
    q, hf = q_of(phi // 7, phi % 7)
    Q_TILES.setdefault(q, [None, None])[hf] = phi

TAB_STRIDE = 272
TAB_HI = 32 * TAB_STRIDE
K1_TAB = 2 * TAB_HI
K1_CH = 2 * K1_TAB
KC1 = 2240
K1_BASE = K1_TAB
K1_UREV = 4 * K1_CH
K1_SCR = K1_UREV + 4 * 4608
K1_R = K1_SCR + 512
K1_CNT = K1_R + 4 * 1280
LDS_SIZE = 163840
assert K1_CNT + 512 == LDS_SIZE
TAG_INC = 0x9E3779B9
HI_ROWS = [(0, 4), (1, 5), (2, 6), (3, 7), (4, 8), (256, 260), (258, 262), (260, 264),
           (512, 768), (516, 772), (520, 776), (1032, 1288), (1544, 1800)]
def hi_rows_of(e):
    return [(r & 3) + 8 * (r >> 2) + 4 * h for r, p in enumerate(HI_ROWS) for h, ee in enumerate(p) if ee == e]
XS = 16384; WSL = 28672; WB = 3 * XS; G1_END = WB + 3 * WSL; RES_LDS = 153600
FSH = 6

def map2():
    A("""
    s_and_b32 s3, s2, 7
    s_lshr_b32 s5, s2, 3
    s_lshr_b32 s36, s3, 1
    s_lshl_b32 s36, s36, 3
    s_and_b32 s37, s5, 7
    s_add_u32 s36, s36, s37
    s_and_b32 s16, s3, 1
    s_lshl_b32 s38, s16, 2
    s_lshl_b32 s16, s16, 3
    s_add_u32 s16, s16, s37
    s_lshr_b32 s18, s5, 3
    s_add_u32 s37, s38, s18
    s_lshr_b32 s17, s3, 1
    s_lshl_b32 s17, s17, 2
    s_add_u32 s17, s17, s18
    s_lshr_b32 s18, s4, 1
    s_and_b32 s19, s4, 1
    v_lshlrev_b32 v4, 4, v1
    """)

def gen():
    G = 16; P = 10
    A("s_cmp_ge_u32 s2, 256\ns_cbranch_scc1 K_END")
    stamp(0, False)
    A(f"""
    s_load_dwordx16 s[16:31], s[0:1], 0
    s_load_dwordx2 s[32:33], s[0:1], 64
    s_load_dwordx4 s[36:39], s[0:1], 80
    s_load_dwordx4 s[92:95], s[0:1], 96
    s_load_dwordx2 s[6:7], s[0:1], 120
    v_lshrrev_b32 v2, 6, v0
    v_and_b32 v1, 63, v0
    v_readfirstlane_b32 s60, v2
    v_and_b32 v0, 255, v0
    s_getpc_b64 s[62:63]
    K1_PC:
    s_lshr_b32 s40, s2, 3
    s_and_b32 s40, s40, 3
    s_lshl_b32 s40, s40, 13
    v_lshl_add_u32 v8, v1, 7, s40
    v_min_u32 v8, CODE_END - K1_PC - 4, v8
    s_cmp_lg_u32 s60, 3
    s_cbranch_scc1 K1_NOPF
    global_load_dword v9, v8, s[62:63]
    v_lshlrev_b32 v8, 3, v1
    v_add_u32 v8, {K1_SCR}, v8
    v_mov_b64 v[10:11], 0
    ds_write_b64 v8, v[10:11]
    ds_write_b64 v8, v[10:11] offset:{K1_CNT - K1_SCR}
    K1_NOPF:
    s_and_b32 s4, s60, 3
    s_lshr_b32 s61, s60, 2
    s_lshl_b32 s5, s2, 2
    s_add_u32 s5, s5, s4
    s_lshl_b32 s43, s5, 8
    v_lshl_add_u32 v6, v1, 2, s43
    s_lshl_b32 s3, s2, 3
    s_mul_i32 s55, s4, {K1_CH}
    v_mov_b32 v237, 0
    v_mov_b32 v5, 0
    v_and_b32 v2, 7, v0
    v_lshrrev_b32 v3, 3, v0
    s_lshr_b32 s40, s2, 3
    s_and_b32 s41, s2, 7
    s_lshl_b32 s42, s40, 6
    s_add_u32 s42, s42, s41
    v_lshl_add_u32 v4, v2, 3, s42
    v_mul_u32_u24 v4, 1280, v4
    v_lshl_add_u32 v4, v3, 3, v4
    s_min_u32 s3, s3, 1272
    s_cmp_eq_u32 s61, 0
    s_waitcnt lgkmcnt(0)
    s_cbranch_scc0 K1_H
    s_barrier
    s_cmp_ge_u32 s2, 160
    s_cbranch_scc1 K1_PREPC
    """)
    for i in range(6): A(f"global_load_dword v{P+i}, v6, {sr(18+2*i,2)}")
    TOUCH = E("TOUCH", 0)
    if TOUCH:
        A("s_mul_i32 s46, s5, 27\nv_min_u32 v7, 26, v1\nv_add_u32 v7, s46, v7\nv_lshlrev_b32 v7, 7, v7\nglobal_load_dword v242, v7, s[92:93]")
    A("s_load_dwordx2 s[42:43], s[30:31], s3\ns_load_dwordx2 s[44:45], s[32:33], s3\ns_branch K1_C")
    A("K1_H:")
    for i in range(5): A(f"global_load_dwordx2 {vr(G+4*i,2)}, v4, s[16:17] offset:{256*i}")
    A("s_barrier")
    A("s_load_dword s54, s[6:7], 0\ns_load_dwordx2 s[42:43], s[30:31], s3")
    srd(12, 6, WS_SIZE)
    A(f"""
    v_mov_b32 v36, 0
    v_mov_b32 v37, 0
    v_mov_b32 v38, 0x3f803f80
    v_lshlrev_b32 v45, 6, v2
    v_add_u32 v45, {K1_SCR}, v45
    s_lshl_b32 s46, s4, 4
    v_add_u32 v40, s46, v45
    v_lshlrev_b32 v44, 15, v3
    v_lshl_add_u32 v44, v2, 4, v44
    s_lshr_b32 s46, s40, 3
    s_lshl_b32 s46, s46, 13
    s_lshl_b32 s47, s41, 10
    s_add_u32 s46, s46, s47
    s_and_b32 s47, s40, 7
    s_lshl_b32 s47, s47, 7
    s_add_u32 s46, s46, s47
    s_add_u32 s46, s46, {WS_XG:#x}
    s_mov_b32 s52, 0
    v_lshlrev_b32 v235, 4, v0
    v_sub_u32 v235, {K1_UREV + 4080}, v235
    v_lshlrev_b32 v236, 5, v0
    v_add_u32 v236, {K1_BASE}, v236
    v_add_u32 v237, {2*K1_CH}, v236
    s_lshl_b32 s58, s2, 15
    s_lshl_b32 s59, s4, 13
    s_add_u32 s58, s58, s59
    s_add_u32 s58, s58, {WS_XG:#x}
    s_add_u32 s59, s58, 4096
    v_lshlrev_b32 v5, 4, v1
    s_setprio 3
    s_cmp_lt_u32 s2, 160
    s_waitcnt vmcnt(0) lgkmcnt(0)
    s_cbranch_scc0 K1_NOPAR
    """)
    for i in range(6): A(f"global_load_dword v{P+i}, v6, {sr(18+2*i,2)}")
    A("K1_NOPAR:")
    for i in range(5):
        for k in range(2):
            A(f"v_dot2c_f32_bf16 v36, v38, v{G+4*i+k}\nv_dot2c_f32_bf16 v37, v{G+4*i+k}, v{G+4*i+k}")
    A(f"""
    s_add_u32 s54, s54, {TAG_INC:#x}
    s_nop 1
    v_add_f32_dpp v36, v36, v36 row_ror:8 row_mask:0xf bank_mask:0xf
    v_add_f32_dpp v37, v37, v37 row_ror:8 row_mask:0xf bank_mask:0xf
    v_mov_b32 v41, v36
    v_mov_b32 v42, v37
    v_mov_b32 v{G+3}, s54
    v_mov_b32 v{G+7}, s54
    v_permlane16_swap_b32 v36, v41
    v_permlane16_swap_b32 v37, v42
    v_mov_b32 v{G+11}, s54
    v_add_f32 v36, v36, v41
    v_add_f32 v37, v37, v42
    v_mov_b32 v41, v36
    v_mov_b32 v42, v37
    v_mov_b32 v{G+15}, s54
    v_mov_b32 v{G+19}, s54
    v_permlane32_swap_b32 v36, v41
    v_permlane32_swap_b32 v37, v42
    v_mov_b32 v39, 1
    v_mov_b32 v38, s54
    v_add_f32 v36, v36, v41
    v_add_f32 v37, v37, v42
    ds_write_b128 v40, v[36:39]
    K1_X0:
    ds_read_b128 v[48:51], v45
    ds_read_b128 v[52:55], v45 offset:16
    ds_read_b128 v[56:59], v45 offset:32
    ds_read_b128 v[60:63], v45 offset:48
    s_add_u32 s52, s52, 1
    s_waitcnt lgkmcnt(0)
    v_and_b32 v36, v51, v55
    v_and_b32 v37, v59, v63
    v_and_b32 v36, v36, v37
    v_cmp_eq_u32 vcc, 0, v36
    s_cmp_lt_u32 s52, 0x100000
    s_cbranch_vccz K1_X0D
    s_sleep 1
    s_cbranch_scc1 K1_X0
    K1_X0D:
    v_pk_add_f32 v[36:37], v[48:49], v[52:53]
    v_pk_add_f32 v[40:41], v[56:57], v[60:61]
    v_pk_add_f32 v[36:37], v[36:37], v[40:41]
    v_mul_f32 v36, 0x3acccccd, v36
    v_mul_f32 v37, 0x3acccccd, v37
    v_fma_f32 v37, -v36, v36, v37
    v_max_f32 v37, 0, v37
    v_cvt_pk_bf16_f32 v37, v37, v37
    v_lshlrev_b32 v37, 16, v37
    v_add_f32 v37, 0x3727c5ac, v37
    v_cvt_pk_bf16_f32 v37, v37, v37
    v_lshlrev_b32 v37, 16, v37
    v_sqrt_f32 v37, v37
    s_nop 0
    """)
    for i in range(5):
        A(f"v_cvt_pk_bf16_f32 v{G+4*i+2}, v36, v37")
        A(f"buffer_store_dwordx4 {vr(G+4*i,4)}, v44, s[12:15], s46 offen sc1")
        if i < 4: A("s_add_u32 s46, s46, 0x100000")
    A("""
    s_setprio 0
    s_cmp_lt_u32 s2, 160
    s_cbranch_scc1 K1_H1
    s_barrier
    s_barrier
    v_mov_b32 v8, CNTADDR
    s_mov_b32 s52, 0
    K1_WD:
    ds_read_b32 v9, v8 offset:4
    s_add_u32 s52, s52, 1
    s_waitcnt lgkmcnt(0)
    v_cmp_ne_u32 vcc, 4, v9
    s_cmp_lt_u32 s52, 0x100000
    s_cbranch_vccz K2_LOADER
    s_sleep 4
    s_cbranch_scc1 K1_WD
    s_branch K2_LOADER
    K1_H1:
    s_waitcnt vmcnt(5)
    s_branch K1_C0
    """)
    A("K1_C:")
    A(f"""
    s_mul_i32 s56, s4, 4608
    s_add_u32 s56, s56, {K1_UREV}
    s_mul_i32 s46, s4, 1280
    s_add_u32 s46, s46, {K1_R}
    s_mov_b32 m0, s46
    v_mov_b64 v[240:241], 0
    v_and_b32 v46, 31, v1
    v_lshrrev_b32 v47, 5, v1
    v_mul_u32_u24 v228, {TAB_STRIDE}, v46
    v_lshl_add_u32 v228, v47, 4, v228
    v_add_u32 v228, s55, v228
    v_lshlrev_b32 v2, 4, v46
    v_add_u32 v2, s55, v2
    v_lshl_add_u32 v229, v47, 3, v2
    v_lshl_add_u32 v230, v47, 9, v2
    v_and_b32 v2, 1, v46
    v_mul_u32_u24 v2, 640, v2
    v_and_b32 v3, 30, v46
    v_lshl_add_u32 v3, v47, 5, v3
    v_sub_u32 v2, v2, v3
    v_add_u32 v231, s46, v2
    v_lshl_add_u32 v2, v1, 3, s56
    ds_write_b64 v2, v[240:241] offset:4096
    """)
    for k in range(5): A(f"ds_write_addtid_b32 v240 offset:{256*k}")
    for i in range(0, 32, 2): A(f"v_mov_b64 {vr(16+i,2)}, 0")
    srd(12, 6, WS_SIZE)
    A(f"""
    v_and_b32 v2, 15, v1
    v_lshrrev_b32 v3, 4, v1
    v_add_u32 v4, 1, v2
    v_and_b32 v5, 1, v4
    v_mul_u32_u24 v5, {KC1}, v5
    v_and_b32 v4, 0xfffe, v4
    v_lshl_add_u32 v4, v4, 1, v5
    v_lshl_add_u32 v4, v3, 4, v4
    v_add_u32 v232, s55, v4
    v_add_u32 v233, 1024, v232
    v_add_u32 v239, 2048, v232
    v_lshlrev_b32 v4, 5, v2
    v_lshlrev_b32 v5, 4, v3
    v_sub_u32 v234, v5, v4
    v_add_u32 v234, {4064 - 3584}, v234
    v_add_u32 v234, s56, v234
    v_lshl_add_u32 v235, v2, 6, v5
    v_add_u32 v235, s55, v235
    v_sub_u32 v6, 15, v2
    v_lshl_add_u32 v6, v3, 2, v6
    v_and_b32 v7, 1, v6
    v_mul_u32_u24 v7, 320, v7
    v_and_b32 v6, 0xfffe, v6
    v_lshl_add_u32 v6, v6, 1, v7
    v_add3_u32 v236, v6, 4, s46
    v_lshrrev_b32 v5, 1, v3
    v_lshl_add_u32 v4, v5, 4, v4
    v_and_b32 v5, 1, v3
    v_lshl_add_u32 v237, v5, 9, v4
    v_cmp_eq_u32 s[36:37], 7, v1
    v_cmp_gt_u32 s[38:39], 2, v1
    v_cmp_eq_u32 s[48:49], 2, v1
    v_cmp_eq_u32 s[50:51], 0, v1
    v_lshl_add_u32 v4, v3, 3, v2
    s_mov_b32 s46, 0x10001
    """)
    for ty, (c, wdt) in enumerate([(-20, 7), (-19, 9)]):
        A(f"v_add_u32 v5, {c + 20}, v4\nv_min_u32 v5, 31, v5\nv_mov_b32 v6, {((1 << wdt) - 1) << 20:#x}\nv_lshrrev_b32 v6, v5, v6\nv_and_b32 v6, 0xff, v6\nv_lshl_or_b32 v6, v6, 15, v6")
        for j in range(4):
            A(f"v_lshrrev_b32 v7, {2*j}, v6\nv_and_b32 v7, s46, v7\nv_mul_u32_u24 v{244+4*ty+j}, 0x3f80, v7")
    A(f"s_waitcnt vmcnt({TOUCH})")
    A("K1_C0:")
    ACC = 96; DT = 9
    Z1, Z8, Z16, Z256 = 48, 50, 52, 54
    BB, CC = 56, 58
    T0 = 60
    H = {e: 72 + 2 * e for e in range(9)}
    CV = [90, 91, 92, 93, 94, 95]; cvi = [0]
    def put(src, rows, hi):
        t = CV[cvi[0] % len(CV)]; cvi[0] += 1
        A(f"v_cvt_pk_bf16_f32 v{t}, v{src}, {'-' if hi else ''}v{src+1}")
        for r in rows: A(f"ds_write_addtid_b32 v{t} offset:{r*TAB_STRIDE + (TAB_HI if hi else 0)}")
    A(f"""
    s_lshl_b32 s62, s4, 4
    s_mul_i32 s56, s61, {K1_TAB}
    s_add_u32 s56, s56, s55
    s_mov_b32 m0, s56
    s_lshl_b32 s47, s61, 4
    s_waitcnt lgkmcnt(0)
    """)
    stamp(1)
    A(f"""
    s_lshr_b64 s[42:43], s[42:43], s62
    s_lshl_b32 s42, s42, 16
    v_mov_b32 v{DT}, s42
    v_mul_f32 v{DT}, 0x3fb8aa3b, v{DT}
    v_exp_f32 v{DT}, v{DT}
    v_lshrrev_b32 v{T0}, s47, v{P}
    v_lshrrev_b32 v{T0+1}, s47, v{P+1}
    v_cvt_pk_bf16_f32 v{DT}, v{DT}, v{DT}
    v_lshlrev_b32 v{DT}, 16, v{DT}
    v_lshlrev_b32 v{T0}, 16, v{T0}
    v_lshlrev_b32 v{T0+1}, 16, v{T0+1}
    v_mul_f32 v{T0}, v{T0}, v{DT}
    v_mul_f32 v{T0+1}, v{T0+1}, v{DT}
    v_mul_f32 v{T0+8}, 0x3fb8aa3b, v{T0}
    v_mul_f32 v{T0+9}, 0.15915494, v{T0+1}
    v_mul_f32 v{T0+2}, 0x41000000, v{T0+8}
    v_mul_f32 v{T0+3}, 0x41000000, v{T0+9}
    v_fract_f32 v{T0+3}, v{T0+3}
    v_exp_f32 v{T0+2}, v{T0+2}
    v_cos_f32 v{Z8}, v{T0+3}
    v_sin_f32 v{Z8+1}, v{T0+3}
    v_mov_b32 v95, 0x3f80
    .p2align 3
    ds_write_addtid_b32 v95 offset:0
    v_pk_mul_f32 {vr(Z8,2)}, {vr(Z8,2)}, {vr(T0+2,2)} op_sel_hi:[1,0]
    """)
    cmul(Z16, Z8, Z8)
    put(Z8, [1], False); put(Z16, [2], False)
    Lreg = {1: Z8, 2: Z16}
    for l in range(3, 32):
        d = T0 + 2 * (l % 4); Lreg[l] = d
        cmul(d, Lreg[l-2], Z16); put(d, [l], False)
    def poll_issue():
        for k in range(8):
            A(f"buffer_load_dwordx4 {vr(G+4*k,4)}, v5, s[12:15], {'s58' if k < 4 else 's59'} offen offset:{1024*(k&3)} sc1")
    EARLY = E("EARLYPOLL", 1)
    if EARLY:
        A("s_cmp_eq_u32 s61, 0\ns_cbranch_scc1 K1_NOPOLL")
        poll_issue()
        A("K1_NOPOLL:")
    A(f"""
    v_lshrrev_b32 v{BB}, s47, v{P+2}
    v_lshrrev_b32 v{BB+1}, s47, v{P+3}
    v_lshrrev_b32 v{CC}, s47, v{P+4}
    v_lshrrev_b32 v{CC+1}, s47, v{P+5}
    v_lshlrev_b32 v{BB}, 16, v{BB}
    v_lshlrev_b32 v{BB+1}, 16, v{BB+1}
    v_lshlrev_b32 v{CC}, 16, v{CC}
    v_lshlrev_b32 v{CC+1}, 16, v{CC+1}
    v_mul_f32 v{T0+4}, 0x43800000, v{T0+8}
    v_mul_f32 v{T0+5}, 0x43800000, v{T0+9}
    v_fract_f32 v{T0+9}, v{T0+9}
    v_fract_f32 v{T0+5}, v{T0+5}
    v_exp_f32 v{T0+8}, v{T0+8}
    v_exp_f32 v{T0+4}, v{T0+4}
    v_cos_f32 v{Z1}, v{T0+9}
    v_sin_f32 v{Z1+1}, v{T0+9}
    v_cos_f32 v{Z256}, v{T0+5}
    v_sin_f32 v{Z256+1}, v{T0+5}
    v_mul_f32 v{BB}, v{BB}, v{DT}
    v_mul_f32 v{BB+1}, v{BB+1}, v{DT}
    .p2align 3
    """)
    cmul(H[0], CC, BB)
    A(f"v_pk_mul_f32 {vr(Z1,2)}, {vr(Z1,2)}, {vr(T0+8,2)} op_sel_hi:[1,0]")
    A(f"v_pk_mul_f32 {vr(Z256,2)}, {vr(Z256,2)}, {vr(T0+4,2)} op_sel_hi:[1,0]")
    put(H[0], hi_rows_of(0), True)
    for e in range(1, 9):
        cmul(H[e], H[e-1], Z1); put(H[e], hi_rows_of(e), True)
    cur = {e: H[e] for e in (0, 2, 4, 6, 8)}
    spare = [H[1], H[3], H[5], H[7], T0, T0 + 2]
    for blk, es in [(1, (0, 2, 4, 6, 8)), (2, (0, 4, 8)), (3, (0, 4, 8)), (4, (8,)), (5, (8,)), (6, (8,)), (7, (8,))]:
        for e in es:
            d = spare.pop(0); cmul(d, cur[e], Z256); put(d, hi_rows_of(256 * blk + e), True)
            spare.append(cur[e]); cur[e] = d
    A("s_cmp_eq_u32 s61, 0\ns_cbranch_scc1 K1_PEND")
    if not EARLY: poll_issue()
    A("s_mov_b32 s52, 0\ns_waitcnt lgkmcnt(0)\ns_barrier\ns_branch K1_POLL2")
    A("K1_POLL:")
    poll_issue()
    A("K1_POLL2:\ns_add_u32 s52, s52, 1\ns_waitcnt vmcnt(0)")
    for k in range(8): A(f"v_xor_b32 v{48+k}, s54, v{G+4*k+3}")
    A("""
    v_or3_b32 v48, v48, v49, v50
    v_or3_b32 v51, v51, v52, v53
    v_or3_b32 v48, v48, v54, v55
    v_or_b32 v48, v48, v51
    v_cmp_ne_u32 vcc, 0, v48
    s_cmp_lt_u32 s52, 0x40000
    s_cbranch_vccz K1_GOT
    s_cbranch_scc1 K1_POLL
    K1_GOT:
    """)
    X = 48; RS, NB = 80, 88; U = 112; UP = 96
    for r in range(8):
        A(f"v_and_b32 v{RS+r}, 0xffff0000, v{G+4*r+2}\nv_rcp_f32 v{RS+r}, v{RS+r}\nv_lshlrev_b32 v{NB+r}, 16, v{G+4*r+2}")
    for r in range(0, 8, 2):
        A(f"v_pk_mul_f32 {vr(NB+r,2)}, {vr(NB+r,2)}, {vr(RS+r,2)} neg_lo:[1,0] neg_hi:[1,0]")
    for c in range(4):
        for r in range(8):
            src = G + 4 * r + (c >> 1)
            A(f"v_and_b32 v{X+8*c+r}, 0xffff0000, v{src}" if c & 1 else f"v_lshlrev_b32 v{X+8*c+r}, 16, v{src}")
        for r in range(0, 8, 2): A(f"v_pk_fma_f32 {vr(U+8*c+r,2)}, {vr(X+8*c+r,2)}, {vr(RS+r,2)}, {vr(NB+r,2)}")
        for k in range(4): A(f"v_cvt_pk_bf16_f32 v{UP+4*c+k}, v{U+8*c+7-2*k}, v{U+8*c+6-2*k}")
        A(f"ds_write_b128 v235, {vr(UP+4*c,4)} offset:{c * 4608}")
    A("s_waitcnt lgkmcnt(0)\ns_barrier")
    stamp(2)
    for c in range(4):
        ba = "v236" if c < 2 else "v237"; co = (c & 1) * K1_CH
        A(f"ds_write_b128 {ba}, {vr(X+8*c,4)} offset:{co}\nds_write_b128 {ba}, {vr(X+8*c+4,4)} offset:{co+16}")
    A("""
    s_or_b32 s52, s2, s4
    s_cmp_lg_u32 s52, 0
    s_cbranch_scc1 K1_NOBUMP
    v_mov_b32 v6, 0
    v_mov_b32 v7, s54
    global_store_dword v6, v7, s[6:7] sc1
    K1_NOBUMP:
    s_waitcnt lgkmcnt(0)
    s_barrier
    s_branch K2_LOADER
    """)
    A("K1_PEND:\ns_mov_b32 m0, s55\ns_waitcnt lgkmcnt(0)")
    FA, FB = 112, 144
    def kmf(tb, first):
        for ks in range(8):
            A(f"ds_read_b128 {vr(FA+4*ks,4)}, v228 offset:{tb + TAB_HI + ks*32}\nds_read_b128 {vr(FB+4*ks,4)}, v228 offset:{tb + ks*32}")
        for ks in range(8):
            A(f"s_waitcnt lgkmcnt({14-2*ks})")
            A(f"v_mfma_f32_32x32x16_bf16 {vr(ACC,16)}, {vr(FA+4*ks,4)}, {vr(FB+4*ks,4)}, {'0' if first and ks == 0 else vr(ACC,16)}")
    kmf(0, True)
    A("s_barrier")
    kmf(K1_TAB, False)
    a = lambda r: f"v{ACC+r}"
    O = 112
    def pk(d, x, y): A(f"v_cvt_pk_bf16_f32 v{d}, {x}, {y}")
    A(f"""
    s_mov_b64 exec, 0xff
    ds_write_addtid_b32 v240
    s_mov_b64 exec, -1
    s_lshr_b64 s[44:45], s[44:45], s62
    s_lshl_b32 s44, s44, 16
    v_mov_b32 v2, s44
    v_cndmask_b32 v2, 0, v2, s[50:51]
    s_nop 4
    v_add_f32 {a(0)}, {a(0)}, v2
    v_readlane_b32 s52, {a(10)}, 63
    v_readfirstlane_b32 s53, {a(0)}
    """)
    pk(O+0, a(0), a(1)); pk(O+1, a(2), a(3)); pk(O+2, a(1), a(2)); pk(O+3, a(3), a(4))
    A(f"ds_write_b64 v229, {vr(O,2)} offset:32\nds_write_b64 v229, {vr(O+2,2)} offset:{KC1+32}")
    p, q, r_ = a(5), a(6), a(7)
    pk(O+4, p, p); pk(O+5, q, r_); pk(O+6, p, q); pk(O+7, r_, r_)
    A(f"ds_write_b64 v229, {vr(O+4,2)} offset:{32+512}\nds_write_b64 v229, {vr(O+6,2)} offset:{KC1+32+512}")
    p, q, r_ = a(8), a(9), a(10)
    pk(O+8, p, p); pk(O+9, p, q); pk(O+10, q, q); pk(O+11, r_, r_)
    pk(O+12, p, p); pk(O+13, q, q); pk(O+14, q, r_); pk(O+15, r_, r_)
    A(f"ds_write_b128 v230, {vr(O+8,4)} offset:{32+1024}\nds_write_b128 v230, {vr(O+12,4)} offset:{KC1+32+1024}")
    A(f"""
    v_cvt_pk_bf16_f32 v2, 0, s53
    v_cvt_pk_bf16_f32 v3, s52, s52
    v_cvt_pk_bf16_f32 v4, s52, 0
    v_cndmask_b32 v2, 0, v2, s[36:37]
    v_cndmask_b32 v3, 0, v3, s[38:39]
    v_cndmask_b32 v4, v3, v4, s[48:49]
    s_mov_b64 exec, 0xff
    ds_write_addtid_b32 v2 offset:{KC1}
    s_mov_b64 exec, 0xffff
    ds_write_addtid_b32 v4 offset:{32+2048}
    ds_write_addtid_b32 v3 offset:{KC1+32+2048}
    s_mov_b64 exec, -1
    """)
    pk(5, a(11), a(12))
    D = 16; SET = [48, 96]
    def loads(st, extra, which="AB"):
        ops = []; Ab, Bb = SET[st], SET[st] + 16
        for k in range(8):
            o = (k & 1) * 128 + extra // 4
            if "B" in which: ops.append(f"ds_read_b128 {vr(Bb+4*k,4)}, v234 offset:{512*(7-k) + extra}")
            if "A" in which and k < 4:
                ops.append(f"ds_read2_b32 {vr(Ab+4*k,2)}, v{232 + k//2} offset0:{o} offset1:{o+1}")
                ops.append(f"ds_read2_b32 {vr(Ab+4*k+2,2)}, v{232 + k//2} offset0:{o+2} offset1:{o+3}")
        return ops
    def mfmas(st):
        Ab, Bb = SET[st], SET[st] + 16
        return [f"v_mfma_f32_16x16x32_bf16 {vr(D+4*i,4)}, {vr(Ab+4*s1,4)}, {vr(Bb+4*(i-s1),4)}, {vr(D+4*i,4)}" for s1 in range(4) for i in range(s1, 8)]
    RK = 144; A32 = 176; WF = 180; U9 = 180; WD_ = 196; BS = 196
    A(f"""
    ds_write_b16 v231, v5 offset:{4 + 126}
    ds_write_b16 v231, v5 offset:{320 + 4 + 124}
    ds_write_b16_d16_hi v231, v5 offset:{4 + 126 - 64}
    ds_write_b16_d16_hi v231, v5 offset:{320 + 4 + 124 - 64}
    ds_read2_b32 {vr(A32,2)}, v239 offset0:0 offset1:1
    ds_read2_b32 {vr(A32+2,2)}, v239 offset0:2 offset1:3
    """)
    for o in loads(0, 0, "A"): A(o)
    for ty in range(2):
        for oi in range(4):
            o = ty * 160 + (48 - 16 * oi) // 2
            A(f"ds_read2_b32 {vr(RK+(ty*4+oi)*4,2)}, v236 offset0:{o} offset1:{o+1}\nds_read2_b32 {vr(RK+(ty*4+oi)*4+2,2)}, v236 offset0:{o+8} offset1:{o+9}")
    A("s_barrier")
    stamp(2)
    bl = loads(0, 0, "B")
    for o in bl[:4]: A(o)
    for k in range(4): A(f"ds_read_b128 {vr(U9+4*k,4)}, v234 offset:{512*(7-k) + 16}")
    for o in bl[4:]: A(o)
    B0 = SET[0] + 16
    A("s_mov_b32 s52, 0\ns_waitcnt lgkmcnt(8)")
    for k in range(4): A(f"v_mfma_f32_16x16x32_bf16 {vr(WD_+4*k,4)}, {vr(B0+4*k,4)}, v[244:247], 0")
    A("s_waitcnt lgkmcnt(4)")
    for k in range(4): A(f"v_mfma_f32_16x16x32_bf16 {vr(WD_+16+4*k,4)}, {vr(U9+4*k,4)}, v[248:251], 0")
    for i in range(4, 8): A(f"v_mfma_f32_16x16x32_bf16 {vr(D+4*i,4)}, {vr(A32,4)}, {vr(B0+4*(i-4),4)}, {vr(D+4*i,4)}")
    far = [f"v_mfma_f32_16x16x32_bf16 {vr(D+4*i,4)}, {vr(WF+(ty*2+ks)*4,4)}, {vr(RK+(ty*4+i-4-2*ks)*4,4)}, {vr(D+4*i,4)}"
           for ty in range(2) for i, ks in [(4, 0), (5, 0), (6, 0), (7, 0), (6, 1), (7, 1)]]
    def fin(i):
        ops = [f"v_pk_add_f32 {vr(D+4*i,2)}, {vr(D+4*i,2)}, {vr(BS+4*i,2)}", f"v_pk_add_f32 {vr(D+4*i+2,2)}, {vr(D+4*i+2,2)}, {vr(BS+4*i+2,2)}",
               f"v_cvt_pk_bf16_f32 v{48+2*i}, v{D+4*i}, v{D+4*i+1}", f"v_cvt_pk_bf16_f32 v{48+2*i+1}, v{D+4*i+2}, v{D+4*i+3}"]
        if i & 1:
            o = 48 + 2 * (i - 1)
            ops += ["s_nop 1", f"v_permlane16_swap_b32 v{o}, v{o+2}", f"v_permlane16_swap_b32 v{o+1}, v{o+3}",
                    f"buffer_store_dwordx4 {vr(o,4)}, v237, s[12:15], s47 offen offset:{512*(i-1)} sc1"]
        return ops
    def body(last):
        for st in range(2):
            A("s_waitcnt lgkmcnt(0)")
            m = mfmas(st)
            if last and st == 1:
                Ab, Bb = SET[st], SET[st] + 16
                pend = []
                for i in range(8):
                    for s1 in range(min(i, 3) + 1):
                        A(f"v_mfma_f32_16x16x32_bf16 {vr(D+4*i,4)}, {vr(Ab+4*s1,4)}, {vr(Bb+4*(i-s1),4)}, {vr(D+4*i,4)}")
                        for _ in range(2):
                            if pend: A(pend.pop(0))
                    if i >= 3: pend += fin(i - 3)
                for o in pend: A(o)
                for i in range(5, 8):
                    for o in fin(i): A(o)
                continue
            A("s_add_u32 s52, s52, 1")
            ld = loads(1 - st, 64 * (st + 1))
            if last:
                cv = [f"v_cvt_pk_bf16_f32 v{WF+k}, v{WD_+2*k}, v{WD_+2*k+1}" for k in range(16)]
                ld = [x + "\n" + y for x, y in zip(ld, cv)]
                ld += ["s_lshl_b32 s47, s5, 12", f"s_add_u32 s47, s47, {WS_HT:#x}"]
                ld += [f"ds_read_b128 {vr(BS+4*i,4)}, v235 offset:{K1_BASE + 1024*i}" for i in range(8)]
                m = m + far
            for k, x in enumerate(m):
                A(x)
                if k < len(ld): A(ld[k])
                if not last and st == 1 and 20 <= k < 23:
                    rr = (232, 233, 234)[k - 20]; A(f"v_add_u32 v{rr}, 128, v{rr}")
    A(".p2align 3\nK1_CONV:")
    body(False)
    A(f"s_cmp_lg_u32 s52, {E('BDAT', 4)}\ns_cbranch_scc1 K1_CONV2\ns_barrier\nK1_CONV2:\ns_cmp_lt_u32 s52, 6\ns_cbranch_scc1 K1_CONV")
    body(True)
    A("s_branch K2_COMP")

    A("K1_PREPC:")
    srd(12, 6, WS_SIZE)
    A(f"""
    s_sub_u32 s3, s2, 160
    s_cmp_ge_u32 s3, 54
    s_cbranch_scc1 K1_PREPD
    s_cmp_ge_u32 s3, 27
    s_cselect_b32 s40, 1, 0
    s_cselect_b32 s8, s38, s36
    s_cselect_b32 s9, s39, s37
    s_mul_i32 s41, s40, 27
    s_sub_u32 s41, s3, s41
    s_mov_b32 s10, {640*1728*2}
    s_mov_b32 s11, 0x00020000
    v_lshrrev_b32 v2, 3, v1
    v_and_b32 v3, 7, v1
    v_and_b32 v4, 6, v2
    v_xor_b32 v3, v3, v4
    v_mul_u32_u24 v2, 3456, v2
    v_lshl_add_u32 v2, v3, 4, v2
    s_lshl_b32 s42, s41, 7
    s_mul_i32 s43, s4, 552960
    s_add_u32 s42, s42, s43
    s_mul_i32 s44, s4, 20480
    s_mov_b32 s45, 0
    K1_PW_LD:
    s_mov_b32 m0, s44
    s_add_u32 s44, s44, 1024
    s_add_u32 s45, s45, 1
    buffer_load_dwordx4 v2, s[8:11], s42 offen lds
    s_add_u32 s42, s42, 27648
    s_cmp_lg_u32 s45, {E('PACE', 5)}
    s_cbranch_scc1 K1_PW_L2
    s_barrier
    K1_PW_L2:
    s_cmp_lt_u32 s45, 20
    s_cbranch_scc1 K1_PW_LD
    v_lshrrev_b32 v2, 2, v1
    v_and_b32 v3, 6, v2
    v_bfe_u32 v4, v1, 1, 1
    s_lshl_b32 s43, s4, 1
    v_add_u32 v4, s43, v4
    v_xor_b32 v3, v3, v4
    v_lshlrev_b32 v2, 7, v2
    v_lshl_add_u32 v2, v3, 4, v2
    v_and_b32 v3, 1, v1
    v_lshl_add_u32 v2, v3, 3, v2
    v_add_u32 v4, 40960, v2
    s_lshl_b32 s43, s41, 2
    s_add_u32 s43, s43, s4
    s_mul_i32 s44, s43, 9363
    s_lshr_b32 s44, s44, 16
    s_mul_i32 s45, s44, 7
    s_sub_u32 s45, s43, s45
    s_mul_i32 s46, s44, {20*14*1024}
    s_add_u32 s46, s46, {WS_W1P:#x}
    s_cmp_gt_u32 s45, 3
    s_cselect_b32 s47, 3, 0
    s_add_u32 s47, s47, s45
    s_mul_i32 s48, s40, 3
    s_add_u32 s47, s47, s48
    s_lshl_b32 s47, s47, 10
    v_bfe_u32 v6, v1, 2, 1
    v_bfe_u32 v7, v1, 3, 1
    v_xor_b32 v6, v6, v7
    v_mul_u32_u24 v6, 12, v6
    s_and_b32 s48, s45, 3
    s_cmp_eq_u32 s48, 2
    s_cselect_b32 s48, -1, 0
    v_and_b32 v6, s48, v6
    v_xor_b32 v5, v6, v1
    v_lshlrev_b32 v5, 4, v5
    v_add_u32 v5, s47, v5
    v_and_b32 v6, 7, v1
    v_and_b32 v7, 48, v1
    v_add_u32 v6, v6, v7
    s_lshl_b32 s48, s40, 3
    v_add_u32 v6, s48, v6
    v_lshlrev_b32 v6, 4, v6
    v_bfe_u32 v7, v1, 3, 1
    v_mul_u32_u24 v7, 7168, v7
    v_add3_u32 v6, v6, v7, 0
    v_add_u32 v6, 6144, v6
    s_cmp_eq_u32 s45, 3
    s_cselect_b64 vcc, -1, 0
    s_nop 1
    v_cndmask_b32 v5, v5, v6, vcc
    s_waitcnt vmcnt(0)
    s_barrier
    """)
    stamp(2)
    F = 16
    for ks in range(20):
        base = "v2" if ks < 10 else "v4"; o = (ks % 10) * 4096
        A(f"ds_read_b64_tr_b16 {vr(F+4*ks,2)}, {base} offset:{o}\nds_read_b64_tr_b16 {vr(F+4*ks+2,2)}, {base} offset:{o+2048}")
    A("v_mov_b32 v8, 0\nv_mov_b32 v9, 0\nv_mov_b32 v10, 0x3f803f80\ns_mov_b32 s47, 0xffff0000\ns_waitcnt lgkmcnt(0)")
    for i in range(0, 80, 2): A(f"v_dot2c_f32_bf16 v8, v10, v{F+i}\nv_dot2c_f32_bf16 v9, v10, v{F+i+1}")
    A("""
    s_nop 2
    v_add_f32 v8, v8, v9
    v_mov_b32 v9, v8
    s_nop 1
    v_permlane16_swap_b32 v8, v9
    s_nop 1
    v_add_f32 v8, v8, v9
    v_mov_b32 v9, v8
    s_nop 1
    v_permlane32_swap_b32 v8, v9
    s_nop 1
    v_add_f32 v8, v8, v9
    v_mul_f32 v8, 0x3acccccd, v8
    .p2align 3
    """)
    for ks in range(20):
        for i in range(4):
            r = F + 4 * ks + i; t = 100 + 2 * (i & 1)
            A(f"v_lshlrev_b32 v{t}, 16, v{r}\nv_and_b32 v{t+1}, s47, v{r}\nv_pk_add_f32 {vr(t,2)}, {vr(t,2)}, v[8:9] op_sel_hi:[1,0] neg_lo:[0,1] neg_hi:[0,1]\nv_cvt_pk_bf16_f32 v{r}, v{t}, v{t+1}")
        A(f"buffer_store_dwordx4 {vr(F+4*ks,4)}, v5, s[12:15], s46 offen sc1\ns_add_u32 s46, s46, {14*1024}")
    A("s_branch K2_COMP")
    tabv = [Q_TILES[r][hf] for r in range(7) for hf in range(2)]
    t64 = sum(v << (4 * i) for i, v in enumerate(tabv))
    A("""
    K1_PREPD:
    s_sub_u32 s3, s3, 54
    s_cmp_lt_u32 s3, 36
    s_cbranch_scc1 K1_PD0
    s_barrier
    s_barrier
    s_branch K2_COMP
    K1_PD0:
    """)
    srd(8, 92, 1728 * 640 * 2)
    for i in range(5):
        A(f"""
        v_add_u32 v2, {64*i}, v1
        v_mul_u32_u24 v3, 6554, v2
        v_lshrrev_b32 v3, 16, v3
        v_mul_u32_u24 v4, 1120, v3
        v_lshl_add_u32 v{40+i}, v2, 4, v4
        v_lshrrev_b32 v{45+i}, 4, v3
        """)
    A(f"""
    s_mul_i32 s40, s3, 12
    s_mul_i32 s41, s4, 3
    s_add_u32 s40, s40, s41
    s_mul_i32 s49, s4, 15360
    s_mov_b32 s45, 0
    K1_PD1:
    s_lshr_b32 s36, s40, 3
    s_mul_i32 s37, s36, 9363
    s_lshr_b32 s37, s37, 16
    s_mul_i32 s38, s37, 7
    s_sub_u32 s38, s36, s38
    s_lshl_b32 s39, s38, 3
    s_mov_b32 s50, {t64 & 0xffffffff:#x}
    s_mov_b32 s51, {t64 >> 32:#x}
    s_lshr_b64 s[50:51], s[50:51], s39
    s_mul_i32 s37, s37, 14
    s_and_b32 s48, s50, 15
    s_add_u32 s48, s48, s37
    s_lshr_b32 s50, s50, 4
    s_and_b32 s50, s50, 15
    s_add_u32 s50, s50, s37
    s_min_u32 s50, s50, 107
    s_sub_u32 s50, s50, s48
    s_sub_u32 s50, s50, 1
    s_mul_i32 s39, s50, 20480
    s_mul_i32 s48, s48, 20480
    s_and_b32 s37, s40, 7
    s_mul_i32 s37, s37, 160
    s_add_u32 s48, s48, s37
    """)
    for i in range(5):
        A(f"s_add_u32 m0, s49, {1024*i}\nv_mad_u32_u24 v2, v{45+i}, s39, v{40+i}\nbuffer_load_dwordx4 v2, s[8:11], s48 offen lds")
    A(f"""
    s_add_u32 s40, s40, 1
    s_add_u32 s49, s49, 5120
    s_add_u32 s45, s45, 1
    s_cmp_lg_u32 s45, 1
    s_cbranch_scc1 K1_PD2
    s_barrier
    K1_PD2:
    s_cmp_lt_u32 s45, 3
    s_cbranch_scc1 K1_PD1
    s_sub_u32 s40, s40, 3
    s_sub_u32 s49, s49, 15360
    v_lshrrev_b32 v6, 4, v1
    v_bfe_u32 v7, v1, 2, 2
    v_and_b32 v8, 3, v1
    v_lshlrev_b32 v5, 4, v1
    s_waitcnt vmcnt(0)
    s_barrier
    """)
    stamp(2)
    A(f"""
    K1_PD3:
    s_lshr_b32 s36, s40, 3
    s_mul_i32 s37, s36, 9363
    s_lshr_b32 s37, s37, 16
    s_mul_i32 s38, s37, 7
    s_sub_u32 s38, s36, s38
    s_and_b32 s38, s38, 1
    v_lshlrev_b32 v2, s38, v6
    v_lshl_add_u32 v2, v2, 2, v7
    v_mul_u32_u24 v2, 160, v2
    v_lshl_add_u32 v2, v8, 3, v2
    v_add_u32 v2, s49, v2
    s_cmp_eq_u32 s38, 1
    s_movk_i32 s38, 2560
    s_cselect_b32 s38, 640, s38
    v_add_u32 v3, s38, v2
    s_and_b32 s37, s40, 7
    s_mul_i32 s37, s37, {54*5120}
    s_mul_i32 s36, s36, 5120
    s_add_u32 s50, s37, s36
    s_add_u32 s50, s50, {WS_WDP:#x}
    s_add_u32 s51, s50, 4096
    """)
    for t in range(5): A(f"ds_read_b64_tr_b16 {vr(16+4*t,2)}, v2 offset:{32*t}\nds_read_b64_tr_b16 {vr(16+4*t+2,2)}, v3 offset:{32*t}")
    A("s_waitcnt lgkmcnt(0)")
    for t in range(5): A(f"buffer_store_dwordx4 {vr(16+4*t,4)}, v5, s[12:15], {'s50' if t < 4 else 's51'} offen offset:{1024*(t&3)} sc1")
    A("""
    s_add_u32 s40, s40, 1
    s_add_u32 s49, s49, 5120
    s_sub_u32 s45, s45, 1
    s_cmp_lg_u32 s45, 0
    s_cbranch_scc1 K1_PD3
    s_branch K2_COMP
    """)

    A("K2_LOADER:")
    map2()
    RW = 16
    A(f"""
    s_mul_i32 s35, s37, {54*5120}
    s_add_u32 s35, s35, {WS_WDP:#x}
    s_mul_i32 s26, s4, 15360
    s_add_u32 s29, s35, s26
    s_add_u32 s29, s29, 153600
    v_min_u32 v5, 35, v1
    v_lshlrev_b32 v5, 7, v5
    v_add_u32 v5, {WS_FP + 214*128:#x}, v5
    """)
    NB1 = E("NB1", 0)
    if NB1: poll("K2_PW", "v5", "v6", slp=4)
    A("v_mov_b32 v10, v5")
    stamp(3)
    def batch(b):
        for i in range(15):
            A(f"buffer_load_dwordx4 {vr(RW+(b*15+i)*4,4)}, v4, s[12:15], s29 offen offset:{1024*(i&3)} sc1")
            if (i & 3) == 3: A("s_add_u32 s29, s29, 4096")
        if b == 0: A(f"s_add_u32 s29, s29, {61440 - 12288}")
    for b in range(NB1): batch(b)
    stamp(4)
    A(f"""
    v_lshrrev_b32 v5, 4, v1
    v_and_b32 v6, 15, v1
    v_lshlrev_b32 v7, 1, v5
    v_xor_b32 v2, v6, v7
    v_xor_b32 v3, 8, v2
    v_lshlrev_b32 v7, 12, v5
    v_lshl_add_u32 v2, v2, 4, v7
    v_lshl_add_u32 v3, v3, 4, v7
    s_lshl_b32 s20, s4, 16
    s_lshl_b32 s21, s16, 8
    s_add_u32 s20, s20, s21
    s_add_u32 s20, s20, {WS_HT:#x}
    s_mul_i32 s21, s17, {20*14*1024}
    s_mul_i32 s22, s4, 7168
    s_add_u32 s21, s21, s22
    s_add_u32 s21, s21, {WS_W1P:#x}
    s_lshl_b32 s23, s4, 12
    s_add_u32 s24, s22, {WB}
    s_mov_b32 s33, {XS}
    s_mov_b32 s34, {WSL}
    v_min_u32 v5, 53, v1
    v_lshlrev_b32 v5, 7, v5
    v_add_u32 v5, {WS_FP + 160*128:#x}, v5
    v_min_u32 v7, 39, v1
    v_lshrrev_b32 v8, 2, v7
    v_and_b32 v7, 3, v7
    v_lshl_add_u32 v7, v8, 4, v7
    s_lshl_b32 s22, s4, 2
    v_add_u32 v7, s22, v7
    v_lshlrev_b32 v7, 7, v7
    v_add_u32 v7, {WS_FP:#x}, v7
    v_mov_b32 v8, {K1_CNT}
    s_mov_b32 s52, 0
    K2_WL:
    ds_read_b32 v9, v8
    s_add_u32 s52, s52, 1
    s_waitcnt lgkmcnt(0)
    v_cmp_ne_u32 vcc, 4, v9
    s_cmp_lt_u32 s52, 0x100000
    s_cbranch_vccz K2_WL_D
    s_sleep 2
    s_cbranch_scc1 K2_WL
    K2_WL_D:
    """)
    stamp(5)
    if not NB1:
        A("buffer_load_dword v11, v10, s[12:15], 0 offen sc1")
    poll("K2_P1", "v5", "v6", slp=4)
    if not NB1:
        A("v_cmp_ne_u32 vcc, s54, v11\ns_cbranch_vccz K2_PW_OK")
        poll("K2_PW", "v10", "v6", slp=4)
        A("K2_PW_OK:")
    stamp(6)
    def dma_x():
        A("""
        s_mov_b32 m0, s23
        s_add_u32 s25, s20, 15360
        buffer_load_dwordx4 v2, s[12:15], s20 offen sc1 lds
        s_add_u32 s27, s20, 30720
        buffer_load_dwordx4 v3, s[12:15], s25 offen offset:1024 sc1 lds
        s_add_u32 s25, s20, 46080
        buffer_load_dwordx4 v2, s[12:15], s27 offen offset:2048 sc1 lds
        s_add_u32 s20, s20, 0x40000
        buffer_load_dwordx4 v3, s[12:15], s25 offen offset:3072 sc1 lds
        """)
    def dma_w():
        A("s_mov_b32 m0, s24\ns_add_u32 s25, s21, 4096")
        for i in range(4): A(f"buffer_load_dwordx4 v4, s[12:15], s21 offen offset:{1024*i} sc1 lds")
        A(f"s_add_u32 m0, s24, 4096\ns_add_u32 s21, s21, {WSL}")
        for i in range(3): A(f"buffer_load_dwordx4 v4, s[12:15], s25 offen offset:{1024*i} sc1 lds")
    dma_w(); A(f"s_add_u32 s24, s24, {WSL}")
    dma_w(); A(f"s_add_u32 s24, s24, {WSL}")
    poll("K2_PC", "v7", "v6", slp=2)
    stamp(7)
    dma_x(); A(f"s_add_u32 s23, s23, {XS}")
    dma_x(); A(f"s_add_u32 s23, s23, {XS}")
    A("s_mov_b32 s28, 2\ns_mov_b32 s39, 2\ns_waitcnt vmcnt(4)\ns_branch K2_LD0")
    A("K2_LD:\ns_waitcnt vmcnt(11)\nK2_LD0:\ns_barrier")
    dma_x(); dma_w()
    A(f"""
    s_add_u32 s28, s28, 1
    s_cmp_eq_u32 s28, 3
    s_cselect_b32 s30, {(-2*XS) & 0xffffffff:#x}, s33
    s_cselect_b32 s31, {(-2*WSL) & 0xffffffff:#x}, s34
    s_cselect_b32 s28, 0, s28
    s_add_u32 s23, s23, s30
    s_add_u32 s24, s24, s31
    s_add_u32 s39, s39, 1
    s_cmp_lt_u32 s39, 10
    s_cbranch_scc1 K2_LD
    """)
    def range_dma():
        A("s_mov_b32 m0, s23\ns_add_u32 s25, s35, s23")
        for i in range(4): A(f"buffer_load_dwordx4 v4, s[12:15], s25 offen offset:{1024*i} sc1 lds")
        A("s_mov_b32 m0, s24\ns_add_u32 s25, s35, s24")
        for i in range(4): A(f"buffer_load_dwordx4 v4, s[12:15], s25 offen offset:{1024*i} sc1 lds")
        A("s_add_u32 m0, s24, 4096\ns_add_u32 s25, s25, 4096")
        for i in range(3): A(f"buffer_load_dwordx4 v4, s[12:15], s25 offen offset:{1024*i} sc1 lds")
    A("s_waitcnt vmcnt(11)\ns_barrier")
    range_dma()
    A(f"s_add_u32 s23, s23, {XS}\ns_add_u32 s24, s24, {WSL}\ns_waitcnt vmcnt(11)\ns_barrier")
    stamp(8)
    range_dma()
    A(f"""
    s_sub_u32 s23, s23, {2*XS}
    s_sub_u32 s24, s24, {2*WSL}
    v_lshrrev_b32 v5, 3, v1
    v_and_b32 v6, 7, v1
    v_lshlrev_b32 v5, 12, v5
    v_lshl_add_u32 v7, v6, 4, v5
    s_mul_i32 s20, s37, {80*4096}
    s_lshl_b32 s21, s36, 7
    s_add_u32 s20, s20, s21
    s_add_u32 s20, s20, {WS_HT:#x}
    s_lshl_b32 s21, s4, 15
    s_add_u32 s20, s20, s21
    s_lshl_b32 s21, s4, 10
    s_add_u32 s22, s21, {G1_END}
    s_add_u32 s21, s21, {RES_LDS}
    v_add_u32 v5, s26, v4
    v_add_u32 v6, 61440, v5
    s_barrier
    """)
    B11 = E("B11", 0)
    if B11: A("s_barrier")
    range_dma()
    for i in range(4): A(f"s_add_u32 m0, s22, {4096*i}\ns_add_u32 s25, s35, m0\nbuffer_load_dwordx4 v4, s[12:15], s25 offen sc1 lds")
    for i in range(2): A(f"s_add_u32 m0, s21, {4096*i}\ns_add_u32 s25, s20, {0x20000*i}\nbuffer_load_dwordx4 v7, s[12:15], s25 offen sc1 lds")
    A(f"""
    s_cmp_lt_u32 s4, 2
    s_cbranch_scc0 K2_LR
    s_add_u32 m0, s22, {4096*4}
    s_add_u32 s25, s35, m0
    buffer_load_dwordx4 v4, s[12:15], s25 offen sc1 lds
    s_branch K2_LR2
    K2_LR:
    s_add_u32 m0, s21, {8192 - 2048}
    s_add_u32 s25, s20, {0x40000 - 0x10000}
    buffer_load_dwordx4 v7, s[12:15], s25 offen sc1 lds
    K2_LR2:
    """)
    B1E = E("B1E", 1)
    for b in range(NB1, 2 if B1E else 1): batch(b)
    stamp(9)
    A(f"s_waitcnt vmcnt({15 * max(0, (2 if B1E else 1) - NB1)})\ns_barrier")
    if not B1E and NB1 < 2: batch(1)
    A(f"s_waitcnt vmcnt({15 if NB1 == 0 else 63})\ns_barrier")
    for i in range(15): A(f"ds_write_b128 v5, {vr(RW+i*4,4)} offset:{1024*i}")
    A("s_waitcnt vmcnt(0) lgkmcnt(0)\ns_barrier")
    for i in range(15): A(f"ds_write_b128 v6, {vr(RW+(15+i)*4,4)} offset:{1024*i}")
    A("s_waitcnt lgkmcnt(0)\ns_barrier")
    finish()

    A("K2_COMP:")
    A(f"""
    v_mov_b32 v2, {K1_CNT}
    v_mov_b32 v3, 1
    v_mov_b32 v7, {K1_SCR}
    s_mov_b64 exec, 1
    ds_add_u32 v2, v3
    s_mov_b64 exec, -1
    ds_read_b32 v13, v7 offset:8
    """)
    stamp(3)
    map2()
    A(f"""
    v_lshrrev_b32 v5, 2, v1
    v_and_b32 v6, 7, v5
    v_and_b32 v7, 3, v1
    v_lshlrev_b32 v5, 8, v5
    v_lshl_add_u32 v5, v7, 3, v5
    s_lshl_b32 s25, s18, 2
    """)
    for a_ in range(4): A(f"s_add_u32 s26, s25, {a_}\nv_xor_b32 v7, s26, v6\nv_lshl_add_u32 v{8+a_}, v7, 5, v5")
    A(f"s_mul_i32 s25, s19, 7168\ns_add_u32 s25, s25, {WB}\nv_add_u32 v12, s25, v4")
    ACC = 16; SETS = [128, 172]
    srd(8, 94, 2048 * 640 * 2)
    A(f"""
    v_mov_b32 v216, 0x3f803f80
    v_mov_b32 v217, 0x3f803f80
    v_mov_b32 v218, 0x3f803f80
    v_mov_b32 v219, 0x3f803f80
    s_mov_b32 s33, {XS}
    s_mov_b32 s34, {WSL}
    s_mov_b32 s27, 0
    s_mov_b32 s28, 0
    s_lshl_b32 s20, s2, 7
    s_add_u32 s20, s20, {WS_FP:#x}
    v_and_b32 v14, 31, v1
    v_lshlrev_b32 v14, 2, v14
    s_waitcnt vmcnt(0) lgkmcnt(0)
    v_readfirstlane_b32 s54, v13
    s_mov_b64 exec, 1
    ds_add_rtn_u32 v5, v2, v3 offset:4
    s_mov_b64 exec, -1
    s_waitcnt lgkmcnt(0)
    v_readfirstlane_b32 s21, v5
    s_cmp_lg_u32 s21, 3
    s_cbranch_scc1 K2_NOFLAG
    buffer_store_dword v13, v14, s[12:15], s20 offen sc1
    K2_NOFLAG:
    """)
    stamp(4)
    for i in range(0, 112, 2): A(f"v_mov_b64 {vr(ACC+i,2)}, 0")
    def reads(st, ks, stats):
        b = SETS[st]
        xo = [f"ds_read_b64_tr_b16 {vr(b+4*a_+2*hh,2)}, v{8+a_} offset:{ks*8192 + hh*4096}" for a_ in range(4) for hh in range(2)]
        wo = [] if stats else [f"ds_read_b128 {vr(b+16+4*w,4)}, v12 offset:{ks*14336 + w*1024}" for w in range(7)]
        return wo[:1] + xo + wo[1:]
    def mf(st, stats):
        b = SETS[st]
        if stats:
            return [f"v_mfma_f32_16x16x32_bf16 {vr(ACC+4*a_,4)}, {vr(b+4*a_,4)}, {vr(b+4*a_,4)}, {vr(ACC+4*a_,4)}" for a_ in range(4)] + \
                   [f"v_mfma_f32_16x16x32_bf16 {vr(ACC+16+4*a_,4)}, v[216:219], {vr(b+4*a_,4)}, {vr(ACC+16+4*a_,4)}" for a_ in range(4)]
        return [f"v_mfma_f32_16x16x32_bf16 {vr(ACC+(w*4+a_)*4,4)}, {vr(b+16+4*w,4)}, {vr(b+4*a_,4)}, {vr(ACC+(w*4+a_)*4,4)}" for w in range(7) for a_ in range(4)]
    A("s_barrier")
    stamp(5)
    for o in reads(0, 0, False): A(o)
    A("s_cmp_eq_u32 s17, 15\ns_cselect_b32 s29, s19, 0\ns_cmp_eq_u32 s29, 1\ns_cbranch_scc1 K2_SLOOP")
    def weave(m, others):
        n = len(m); k = len(others); idx = 0
        for t, x in enumerate(m):
            A(x)
            want = (k * (t + 1) + n - 1) // n if k > n else min(k, t + 1)
            while idx < want: A(others[idx]); idx += 1
        while idx < k: A(others[idx]); idx += 1
    def loop(label, stats):
        A(f".p2align 3\n{label}:\ns_waitcnt lgkmcnt(0)\ns_add_u32 s27, s27, 1")
        adv = ["s_add_u32 s28, s28, 1\ns_cmp_eq_u32 s28, 3",
               f"s_cselect_b32 s30, {(-2*XS) & 0xffffffff:#x}, s33", f"s_cselect_b32 s31, {(-2*WSL) & 0xffffffff:#x}, s34",
               "s_cselect_b32 s28, 0, s28\nv_add_u32 v8, s30, v8", "v_add_u32 v9, s30, v9\nv_add_u32 v10, s30, v10",
               "v_add_u32 v11, s30, v11\nv_add_u32 v12, s31, v12"]
        weave(mf(0, stats), reads(1, 1, stats) + adv)
        A(f"s_waitcnt lgkmcnt(0)\ns_cmp_lt_u32 s27, 10\ns_cbranch_scc0 {label}_T\ns_barrier")
        weave(mf(1, stats), reads(0, 0, stats))
        A(f"s_branch {label}\n{label}_T:\ns_barrier")
        for x in mf(1, stats): A(x)
    loop("K2_LOOP", False)
    stamp(6)
    A(f"""
    s_lshr_b32 s20, s17, 1
    s_mul_i32 s20, s20, 7
    s_and_b32 s21, s17, 1
    s_lshl_b32 s22, s21, 2
    s_add_u32 s22, s22, s20
    s_lshl_b32 s23, s16, 3
    s_lshl_b32 s24, s18, 2
    s_add_u32 s23, s23, s24
    s_mul_i32 s23, s23, 55296
    s_add_u32 s23, s23, {WS_HF:#x}
    s_lshl_b32 s24, s19, 1
    s_add_u32 s24, s24, s22
    s_lshl_b32 s24, s24, 10
    s_add_u32 s24, s24, s23
    s_add_u32 s25, s22, 1
    s_lshl_b32 s25, s25, 10
    s_lshl_b32 s26, s19, 9
    s_add_u32 s25, s25, s26
    s_add_u32 s26, s20, 3
    s_lshl_b32 s26, s26, 10
    s_lshl_b32 s27, s21, 9
    s_add_u32 s26, s26, s27
    s_cmp_eq_u32 s17, 15
    s_cselect_b32 s25, s26, s25
    s_add_u32 s25, s25, s23
    s_add_u32 s26, s26, s23
    s_lshl_b32 s27, s19, 8
    s_add_u32 s26, s26, s27
    v_and_b32 v5, 31, v1
    v_lshlrev_b32 v5, 4, v5
    v_lshrrev_b32 v6, 5, v1
    v_mul_u32_u24 v6, 55296, v6
    v_add_u32 v5, v5, v6
    v_and_b32 v7, 15, v1
    v_lshl_add_u32 v7, v7, 4, v6
    v_bfe_u32 v8, v1, 4, 1
    v_mul_u32_u24 v8, 110592, v8
    v_add_u32 v7, v7, v8
    """)
    acc = lambda w, a_: ACC + (w * 4 + a_) * 4
    T = 128
    def prod(w, a_, o):
        g, u = acc(w, a_), acc(w + 3, a_)
        A(f"v_pk_mul_f32 {vr(g,2)}, {vr(g,2)}, {vr(u,2)}\nv_pk_mul_f32 {vr(g+2,2)}, {vr(g+2,2)}, {vr(u+2,2)}\nv_cvt_pk_bf16_f32 v{o}, v{g}, v{g+1}\nv_cvt_pk_bf16_f32 v{o+1}, v{g+2}, v{g+3}")
    for a_ in range(4):
        prod(0, a_, T + 4 * a_); prod(1, a_, T + 4 * a_ + 2)
        A(f"buffer_store_dwordx4 {vr(T+4*a_,4)}, v4, s[12:15], s24 offen sc1")
        if a_ < 3: A("s_add_u32 s24, s24, 55296")
    for a_ in range(4): prod(2, a_, T + 16 + 2 * a_)
    A("s_nop 1")
    for a_ in (0, 2):
        o = T + 16 + 2 * a_
        A(f"v_permlane32_swap_b32 v{o}, v{o+2}\nv_permlane32_swap_b32 v{o+1}, v{o+3}\nbuffer_store_dwordx4 {vr(o,4)}, v5, s[12:15], s25 offen sc1")
        if a_ == 0: A("s_add_u32 s25, s25, 110592")
    A("s_cmp_eq_u32 s17, 15\ns_cbranch_scc1 K2_FIN")
    for a_ in (0, 2):
        x, y = acc(6, a_), acc(6, a_ + 1)
        for e in range(4): A(f"v_permlane32_swap_b32 v{x+e}, v{y+e}")
        A(f"s_nop 1\nv_pk_mul_f32 {vr(x,2)}, {vr(x,2)}, {vr(y,2)}\nv_pk_mul_f32 {vr(x+2,2)}, {vr(x+2,2)}, {vr(y+2,2)}\nv_cvt_pk_bf16_f32 v{T+24+a_}, v{x}, v{x+1}\nv_cvt_pk_bf16_f32 v{T+25+a_}, v{x+2}, v{x+3}")
    A(f"s_nop 1\nv_permlane16_swap_b32 v{T+24}, v{T+26}\nv_permlane16_swap_b32 v{T+25}, v{T+27}\nbuffer_store_dwordx4 {vr(T+24,4)}, v7, s[12:15], s26 offen sc1")
    A("K2_FIN:")
    if B11: A("s_barrier")
    stamp(7)
    AC2 = 16; WS2 = [56, 76, 168]; HB = 96; DH = E("DH", 6); HR = 144
    A(f"""
    v_and_b32 v2, {(1 << (FSH - 2)) - 1}, v1
    v_lshlrev_b32 v5, 2, v2
    v_and_b32 v2, 31, v1
    v_lshlrev_b32 v6, {FSH}, v2
    s_lshl_b32 s20, s16, 1
    s_add_u32 s20, s20, s18
    s_lshl_b32 s20, s20, 5
    s_lshl_b32 s21, s17, 1
    s_add_u32 s20, s20, s21
    s_add_u32 s20, s20, s19
    s_lshl_b32 s20, s20, {FSH}
    s_add_u32 s20, s20, {WS_FH:#x}
    s_lshl_b32 s21, s36, {FSH + 5}
    s_add_u32 s21, s21, {WS_FH:#x}
    v_mov_b32 v7, s54
    s_lshl_b32 s22, s36, 2
    s_add_u32 s22, s22, s4
    s_mul_i32 s23, s22, 55296
    s_xor_b32 s24, s22, 1
    s_mul_i32 s24, s24, 55296
    v_add_u32 v8, s23, v4
    v_add_u32 v9, s24, v4
    s_lshl_b32 s23, s19, 10
    s_add_u32 s23, s23, {WS_HF:#x}
    s_mul_i32 s24, s19, 5120
    v_add_u32 v10, s24, v4
    v_add_u32 v11, 61440, v10
    v_add_u32 v12, 122880, v10
    v_and_b32 v2, 15, v1
    v_lshrrev_b32 v3, 4, v1
    v_lshrrev_b32 v14, 2, v1
    v_lshlrev_b32 v14, 7, v14
    v_and_b32 v13, 3, v1
    v_lshl_add_u32 v14, v13, 3, v14
    s_lshl_b32 s24, s4, 5
    s_add_u32 s24, s24, {RES_LDS}
    v_add_u32 v14, s24, v14
    v_lshlrev_b32 v13, 2, v2
    s_lshl_b32 s22, s22, 4
    s_lshl_b32 s25, s22, 2
    s_add_u32 s25, s25, {WS_R2:#x}
    s_mul_i32 s26, s22, 1280
    s_mul_i32 s27, s37, 160
    s_add_u32 s26, s26, s27
    v_mul_u32_u24 v15, 1280, v2
    v_lshl_add_u32 v165, v3, 3, v15
    v_lshrrev_b32 v2, 1, v3
    v_lshl_add_u32 v15, v2, 4, v15
    v_and_b32 v2, 1, v3
    v_lshl_add_u32 v15, v2, 5, v15
    s_mul_i32 s27, s4, 5120
    s_add_u32 s27, s27, {24*5120}
    s_xor_b32 s28, s4, 1
    s_mul_i32 s28, s28, 5120
    s_add_u32 s28, s28, {24*5120}
    v_add_u32 v166, s27, v4
    v_add_u32 v167, s28, v4
    """)
    for i in range(0, 40, 2): A(f"v_mov_b64 {vr(AC2+i,2)}, 0")
    A("s_waitcnt vmcnt(0)\nbuffer_store_dword v7, v5, s[12:15], s20 offen sc1")
    stamp(8)
    def wread(n):
        off = (2 * n if n < 15 else 2 * (n - 15)) * 5120
        return [f"ds_read_b128 {vr(WS2[n%3]+4*t,4)}, v{10 + off // 61440} offset:{off % 61440 + 1024*t}" for t in range(5)]
    A("s_barrier")
    stamp(9)
    for o in wread(0) + wread(1): A(o)
    if E("OWNACK", 1): A("s_waitcnt vmcnt(0)")
    poll("K2_POLL", "v6", "v3", soff="s21", slp=2)
    stamp(10)
    def hload(n):
        b = HB + (n % DH) * 8
        return [f"buffer_load_dwordx4 {vr(b,4)}, v8, s[12:15], s23 offen sc1", f"buffer_load_dwordx4 {vr(b+4,4)}, v9, s[12:15], s23 offen sc1", "s_add_u32 s23, s23, 2048"]
    A("buffer_load_dword v164, v13, s[12:15], s25 offen sc1")
    for n in range(DH):
        for o in hload(n): A(o)
    for n in range(27):
        A(f"s_waitcnt vmcnt({2 * (min(26, n + DH - 1) - n)}) lgkmcnt({5 if n < 26 else 0})")
        b = HB + (n % DH) * 8
        m = [f"v_mfma_f32_16x16x32_bf16 {vr(AC2+(a_*5+t)*4,4)}, {vr(WS2[n%3]+4*t,4)}, {vr(b+4*a_,4)}, {vr(AC2+(a_*5+t)*4,4)}" for a_ in (1, 0) for t in range(5)]
        oth = wread(n + 2) if n < 25 else []
        if n == 25: oth = [f"ds_read_b64_tr_b16 {vr(188+2*t,2)}, v14 offset:{2048*t}" for t in range(5)]
        if n == 26:
            for t in range(5):
                oth += [f"v_lshlrev_b32 v{HR+4*t}, 16, v{188+2*t}\nv_and_b32 v{HR+4*t+1}, 0xffff0000, v{188+2*t}",
                        f"v_lshlrev_b32 v{HR+4*t+2}, 16, v{189+2*t}\nv_and_b32 v{HR+4*t+3}, 0xffff0000, v{189+2*t}"]
        if n in (4, 10, 19): oth = [None] * 3 + ["s_waitcnt lgkmcnt(0)\ns_barrier"] + oth
        for k, x in enumerate(m):
            A(x)
            if k < len(oth) and oth[k]: A(oth[k])
        if n + DH < 27:
            for o in hload(n + DH): A(o)
    stamp(11)
    A("s_nop 2")
    for t in range(5): A(f"ds_write_b128 v167, {vr(AC2+(5+t)*4,4)} offset:{1024*t}")
    A("s_waitcnt lgkmcnt(0)\ns_barrier")
    R = 56
    for t in range(5): A(f"ds_read_b128 {vr(R+4*t,4)}, v166 offset:{1024*t}")
    for t in range(5):
        A(f"s_waitcnt lgkmcnt({4-t})")
        for e in (0, 2): A(f"v_pk_add_f32 {vr(AC2+4*t+e,2)}, {vr(AC2+4*t+e,2)}, {vr(R+4*t+e,2)}")
        for e in (0, 2): A(f"v_pk_fma_f32 {vr(AC2+4*t+e,2)}, {vr(AC2+4*t+e,2)}, v[164:165], {vr(HR+4*t+e,2)} op_sel_hi:[1,0,1]")
        A(f"v_cvt_pk_bf16_f32 v{80+2*t}, v{AC2+4*t}, v{AC2+4*t+1}\nv_cvt_pk_bf16_f32 v{80+2*t+1}, v{AC2+4*t+2}, v{AC2+4*t+3}")
        if t in (1, 3):
            o = 80 + 2 * (t - 1)
            A(f"s_nop 1\nv_permlane16_swap_b32 v{o}, v{o+2}\nv_permlane16_swap_b32 v{o+1}, v{o+3}\nbuffer_store_dwordx4 {vr(o,4)}, v15, s[8:11], s26 offen offset:{32*(t-1)}")
    A("buffer_store_dwordx2 v[88:89], v165, s[8:11], s26 offen offset:128")
    finish()
    loop("K2_SLOOP", True)
    A(f"""
    v_and_b32 v5, 3, v1
    v_bfe_u32 v6, v1, 2, 2
    v_lshrrev_b32 v7, 4, v1
    v_cmp_eq_u32 s[20:21], 1, v5
    v_cmp_eq_u32 s[22:23], 2, v5
    v_cmp_eq_u32 s[24:25], 3, v5
    v_cmp_eq_u32 s[26:27], v6, v7
    v_and_b32 v5, 15, v1
    v_lshlrev_b32 v5, 2, v5
    s_lshl_b32 s28, s16, 9
    s_lshl_b32 s29, s18, 8
    s_add_u32 s28, s28, s29
    s_add_u32 s28, s28, {WS_R2:#x}
    """)
    for a_ in range(4):
        g = ACC + 4 * a_; s_ = ACC + 16 + 4 * a_
        A(f"""
        v_cndmask_b32 v{g}, v{g}, v{g+1}, s[20:21]
        v_cndmask_b32 v{g}, v{g}, v{g+2}, s[22:23]
        v_cndmask_b32 v{g}, v{g}, v{g+3}, s[24:25]
        v_mul_f32 v{s_}, 0x3acccccd, v{s_}
        v_mul_f32 v{g}, 0x3acccccd, v{g}
        v_fma_f32 v{g}, -v{s_}, v{s_}, v{g}
        v_max_f32 v{g}, 0, v{g}
        v_cvt_pk_bf16_f32 v{g}, v{g}, v{g}
        v_lshlrev_b32 v{g}, 16, v{g}
        v_add_f32 v{g}, 0x3727c5ac, v{g}
        v_cvt_pk_bf16_f32 v{g}, v{g}, v{g}
        v_lshlrev_b32 v{g}, 16, v{g}
        v_sqrt_f32 v{g}, v{g}
        s_nop 0
        v_cvt_pk_bf16_f32 v{g}, v{g}, v{g}
        v_lshlrev_b32 v{g}, 16, v{g}
        v_mul_f32 v{g}, v{g}, v{g}
        v_rcp_f32 v{g}, v{g}
        """)
    A("s_mov_b64 exec, s[26:27]")
    for a_ in range(4): A(f"buffer_store_dword v{ACC+4*a_}, v5, s[12:15], s28 offen offset:{64*a_} sc1")
    A("s_mov_b64 exec, -1\ns_branch K2_FIN\nK_END:\ns_endpgm")

def main(out):
    gen()
    hdr = open("sequential_preLN__ssm_conv_s4__glu_gated_bilinear__prompt.s.ref").read().split("; Override launch")[0]
    s = hdr + f"; @launch grid=(256,1,1) block=(512,1,1) lds={LDS_SIZE}\n"
    s += f'.amdgcn_target "amdgcn-amd-amdhsa--gfx950"\n.text\n.globl {KNAME}\n.p2align 8\n.type {KNAME},@function\n{KNAME}:\n'
    s += A.text().replace("CNTADDR", str(K1_CNT)) + "CODE_END:\n"
    s += f""".section .rodata,"a"
.p2align 6
.amdhsa_kernel {KNAME}
  .amdhsa_next_free_vgpr 252
  .amdhsa_next_free_sgpr 96
  .amdhsa_accum_offset 252
  .amdhsa_group_segment_fixed_size 0
  .amdhsa_kernarg_size 128
  .amdhsa_user_sgpr_count 2
  .amdhsa_user_sgpr_kernarg_segment_ptr 1
  .amdhsa_system_sgpr_workgroup_id_x 1
.end_amdhsa_kernel
"""
    open(out, "w").write(s)
if __name__ == "__main__":
    main(sys.argv[1] if len(sys.argv) > 1 else "f.s")
```

```python
import sys, os
E = lambda k, d: int(os.environ.get(k, d))
KNAME = "sequential_preLN__ssm_conv_s4__glu_gated_bilinear__prompt_kernel"
WS_ST    = 0x1000
WS_R2    = 0x8000
WS_HT    = 0x10000
WS_W1P   = 0x290000
WS_WDP   = 0x6F0000
WS_HF    = int(os.environ.get('HFOFF', '0x910000'), 0)
WS_PROF  = 0xFE0000
WS_XG    = 0x1100000
WS_FH    = 0x1840000
WS_FP    = 0x1860000
WS_HR1   = 0x1870000
WS_HR2   = 0x1878000
WS_SIZE  = 0x1900000
PROF = E("PROF", 0)
NST = 14
PROF_WAVES = 8
PROF_RANGES = [(0, [(0, 160, 0, 4, NST), (0, 160, 4, 8, NST), (160, 214, 0, 4, NST), (160, 214, 4, 8, NST), (214, 250, 0, 4, NST), (214, 250, 4, 8, NST)])]

class Asm:
    def __init__(self): self.l = []
    def __call__(self, s):
        for x in s.split("\n"):
            x = x.strip()
            if x: self.l.append(("" if x.endswith(":") else "    ") + x)
    def text(self): return "\n".join(self.l) + "\n"
def vr(a, n=1): return f"v{a}" if n == 1 else f"v[{a}:{a+n-1}]"
def sr(a, n=1): return f"s{a}" if n == 1 else f"s[{a}:{a+n-1}]"
A = Asm()
DIAG = os.environ.get("DIAG")
_fin = [0]
def stamp(i, wait=True):
    if PROF or (DIAG and str(i) in DIAG.split(",")[:2]):
        A(f"s_memtime s[{64+2*i}:{65+2*i}]")
        if wait: A("s_waitcnt lgkmcnt(0)")
def finish():
    if DIAG:
        a, b, mult, wg, wv = map(int, DIAG.split(","))
        _fin[0] += 1; n = _fin[0]
        A(f"""
        s_waitcnt vmcnt(0)
        s_memtime s[{64+2*(NST-1)}:{65+2*(NST-1)}]
        s_cmp_lg_u32 s2, {wg}
        s_cbranch_scc1 DG_E{n}
        s_cmp_lg_u32 s60, {wv}
        s_cbranch_scc1 DG_E{n}
        s_waitcnt lgkmcnt(0)
        s_sub_u32 s20, s{64+2*b}, s{64+2*a}
        s_min_u32 s20, s20, 100000
        s_mul_i32 s20, s20, {mult}
        s_add_u32 s20, s20, s{64+2*(NST-1)}
        DG_L{n}:
        s_memtime s[22:23]
        s_waitcnt lgkmcnt(0)
        s_sub_u32 s21, s20, s22
        s_cmp_gt_i32 s21, 0
        s_cbranch_scc1 DG_L{n}
        DG_E{n}:
        """)
    if PROF:
        A("s_waitcnt vmcnt(0)")
        stamp(NST - 1)
        A(f"s_lshl_b32 s62, s2, 3\ns_add_u32 s62, s62, s60\ns_lshl_b32 s62, s62, 6\ns_add_u32 s62, s62, {WS_PROF:#x}\nv_mov_b32 v1, 0")
        for i in range(NST):
            A(f"v_mov_b32 v0, s{64+2*i}\nbuffer_store_dword v0, v1, s[12:15], s62 offen offset:{4*i}")
    A("s_endpgm")
def srd(d, base, size):
    A(f"s_mov_b32 s{d}, s{base}\ns_mov_b32 s{d+1}, s{base+1}\ns_mov_b32 s{d+2}, {size:#x}\ns_mov_b32 s{d+3}, 0x00020000")
def cmul(d, a, b):
    A(f"v_pk_mul_f32 {vr(d,2)}, {vr(a,2)}, {vr(b,2)} op_sel_hi:[1,0]")
    A(f"v_pk_fma_f32 {vr(d,2)}, {vr(a,2)}, {vr(b,2)}, {vr(d,2)} op_sel:[1,1,0] op_sel_hi:[0,1,1] neg_lo:[1,0,0]")
def poll(lbl, va, vt, soff="0", slp=2):
    A(f"""
    s_mov_b32 s52, 0
    {lbl}:
    buffer_load_dword {vt}, {va}, s[12:15], {soff} offen sc1
    s_add_u32 s52, s52, 1
    s_waitcnt vmcnt(0)
    v_cmp_ne_u32 vcc, s54, {vt}
    s_cmp_lt_u32 s52, 0x40000
    s_cbranch_vccz {lbl}_D
    s_mov_b64 exec, vcc
    s_sleep {slp}
    s_cbranch_scc1 {lbl}
    {lbl}_D:
    s_mov_b64 exec, -1
    """)

def q_of(c, tau):
    base = (c >> 1) * 7
    if c == 15: return {0: (base + 4, 0), 1: (base + 4, 1), 2: (base + 3, 1)}[tau]
    o = base + (4 if (c & 1) else 0)
    if tau == 3: return (base + 3, c & 1)
    return {0: (o, 0), 1: (o, 1), 2: (o + 1, 0), 6: (o + 1, 1), 4: (o + 2, 0), 5: (o + 2, 1)}[tau]
Q_TILES = {}
for phi in range(108):
    q, hf = q_of(phi // 7, phi % 7)
    Q_TILES.setdefault(q, [None, None])[hf] = phi

TAB_STRIDE = 272
TAB_HI = 32 * TAB_STRIDE
K1_TAB = 2 * TAB_HI
K1_CH = K1_TAB
K1_TB = 4 * K1_TAB
KC1 = 2240
K1_BASE = 4608
K1_UREV = 8 * K1_TAB
K1_SCR = K1_UREV + 4 * 4608
K1_R = K1_SCR + 512
K1_CNT = K1_R + 4 * 1280
K1_SCR2 = TAB_HI + 29 * TAB_STRIDE + 48
LDS_SIZE = 163840
assert K1_CNT + 512 == LDS_SIZE
TAG_INC = 0x9E3779B9
HI_ROWS = [(0, 4), (1, 5), (2, 6), (3, 7), (4, 8), (256, 260), (258, 262), (260, 264),
           (512, 768), (516, 772), (520, 776), (1032, 1288), (1544, 1800)]
def hi_rows_of(e):
    return [(r & 3) + 8 * (r >> 2) + 4 * h for r, p in enumerate(HI_ROWS) for h, ee in enumerate(p) if ee == e]
XS = 16384; WSL = 28672; WB = 3 * XS; G1_END = WB + 3 * WSL; RES_LDS = 153600
FSH = 6

def map2():
    A("""
    s_and_b32 s3, s2, 7
    s_lshr_b32 s5, s2, 3
    s_lshr_b32 s36, s3, 1
    s_lshl_b32 s36, s36, 3
    s_and_b32 s37, s5, 7
    s_add_u32 s36, s36, s37
    s_and_b32 s16, s3, 1
    s_lshl_b32 s38, s16, 2
    s_lshl_b32 s16, s16, 3
    s_add_u32 s16, s16, s37
    s_lshr_b32 s18, s5, 3
    s_add_u32 s37, s38, s18
    s_lshr_b32 s17, s3, 1
    s_lshl_b32 s17, s17, 2
    s_add_u32 s17, s17, s18
    s_lshr_b32 s18, s4, 1
    s_and_b32 s19, s4, 1
    v_lshlrev_b32 v4, 4, v1
    """)


def rowaddr(t, va, vb):
    A(f"""
    s_lshr_b32 s42, s{t}, 8
    s_lshl_b32 s42, s42, 9
    s_bfe_u32 s43, s{t}, 0x40002
    s_lshl_b32 s43, s43, 5
    s_add_u32 s42, s42, s43
    s_bfe_u32 s43, s{t}, 0x20006
    s_lshl_b32 s43, s43, 1
    s_add_u32 s42, s42, s43
    s_and_b32 s43, s{t}, 3
    s_lshl_b32 s43, s43, 3
    s_add_u32 s42, s42, s43
    v_lshrrev_b32 v7, 5, v1
    v_add_u32 v7, s42, v7
    v_mul_u32_u24 v7, 1280, v7
    v_and_b32 {vb}, 31, v1
    v_lshl_add_u32 {va}, {vb}, 4, v7
    v_lshl_add_u32 {vb}, {vb}, 3, v7
    """)
def rowload(b, va, vb):
    A(f"global_load_dwordx4 {vr(b,4)}, {va}, s[16:17]\nglobal_load_dwordx4 {vr(b+4,4)}, {va}, s[16:17] offset:512\nglobal_load_dwordx2 {vr(b+8,2)}, {vb}, s[16:17] offset:1024")
def rowstats(soff):
    A("v_mov_b32 v60, 0\nv_mov_b32 v61, 0\nv_mov_b32 v62, 0x3f803f80\nv_lshrrev_b32 v63, 5, v1\nv_lshlrev_b32 v63, 3, v63")
    for r in range(48, 58): A(f"v_dot2c_f32_bf16 v60, v62, v{r}\nv_dot2c_f32_bf16 v61, v{r}, v{r}")
    A("s_nop 2")
    for rot in (8, 4, 2, 1):
        A(f"v_add_f32_dpp v60, v60, v60 row_ror:{rot} row_mask:0xf bank_mask:0xf\nv_add_f32_dpp v61, v61, v61 row_ror:{rot} row_mask:0xf bank_mask:0xf\ns_nop 0")
    A(f"""
    v_mov_b32 v58, v60
    v_mov_b32 v59, v61
    s_nop 1
    v_permlane16_swap_b32 v60, v58
    v_permlane16_swap_b32 v61, v59
    s_nop 0
    v_pk_add_f32 v[60:61], v[60:61], v[58:59]
    v_mul_f32 v60, 0x3acccccd, v60
    v_mul_f32 v61, 0x3acccccd, v61
    v_fma_f32 v61, -v60, v60, v61
    v_max_f32 v61, 0, v61
    v_cvt_pk_bf16_f32 v61, v61, v61
    v_lshlrev_b32 v61, 16, v61
    v_add_f32 v61, 0x3727c5ac, v61
    v_cvt_pk_bf16_f32 v61, v61, v61
    v_lshlrev_b32 v61, 16, v61
    v_sqrt_f32 v61, v61
    s_nop 0
    v_cvt_pk_bf16_f32 v60, v60, v61
    v_mov_b32 v61, s53
    buffer_store_dwordx2 v[60:61], v63, s[12:15], {soff} offen sc1
    """)
NCW = E("NCW", 2)
NT0 = 160 * NCW
NT1 = NT0 + 216
WSOFF = int(os.environ.get("WSOFF", "0"), 0)
WSOFF_CODE = f"s_add_u32 s6, s6, {WSOFF:#x}\ns_addc_u32 s7, s7, 0\ns_cmp_eq_u32 s61, 0" if WSOFF else ""
def gen():
    G = 16; P = 10
    A("s_cmp_ge_u32 s2, 256\ns_cbranch_scc1 K_END")
    stamp(0, False)
    A(f"""
    s_load_dwordx16 s[16:31], s[0:1], 0
    s_load_dwordx2 s[32:33], s[0:1], 64
    s_load_dwordx4 s[36:39], s[0:1], 80
    s_load_dwordx4 s[92:95], s[0:1], 96
    s_load_dwordx2 s[6:7], s[0:1], 120
    v_lshrrev_b32 v2, 6, v0
    v_and_b32 v1, 63, v0
    v_readfirstlane_b32 s60, v2
    v_and_b32 v0, 255, v0
    s_getpc_b64 s[62:63]
    K1_PC:
    s_lshr_b32 s40, s2, 3
    s_and_b32 s40, s40, 3
    s_lshl_b32 s40, s40, 13
    v_lshl_add_u32 v8, v1, 7, s40
    v_min_u32 v8, CODE_END - K1_PC - 4, v8
    s_cmp_lg_u32 s60, 3
    s_cbranch_scc1 K1_NOPF
    s_cmp_lt_u32 s2, {E('PFMIN', 160)}
    s_cbranch_scc1 K1_NOPF2
    global_load_dword v9, v8, s[62:63]
    K1_NOPF2:
    v_mov_b32 v8, {K1_CNT}
    v_mov_b64 v[10:11], 0
    ds_write_b64 v8, v[10:11]
    K1_NOPF:
    s_and_b32 s4, s60, 3
    s_lshr_b32 s61, s60, 2
    s_and_b32 s40, s2, 7
    s_lshr_b32 s41, s2, 3
    s_mul_i32 s57, s40, 20
    s_add_u32 s57, s57, s41
    s_lshl_b32 s5, s57, 2
    s_add_u32 s5, s5, s4
    s_lshl_b32 s43, s5, 8
    v_lshl_add_u32 v6, v1, 2, s43
    s_lshl_b32 s3, s57, 3
    s_mul_i32 s55, s4, {K1_CH}
    v_mul_u32_u24 v238, 10240, v0
    v_add_u32 v238, s3, v238
    s_mul_i32 s46, s41, 103
    v_lshrrev_b32 v2, 1, v0
    v_min_u32 v2, 102, v2
    v_add_u32 v2, s46, v2
    v_min_u32 v2, 2047, v2
    v_mul_u32_u24 v2, 1280, v2
    v_and_b32 v3, 1, v0
    v_mul_u32_u24 v3, 156, v3
    s_mul_i32 s46, s40, 160
    v_add3_u32 v2, v2, v3, s46
    s_cmp_ge_u32 s2, 160
    s_cbranch_scc1 K1_PREP
    s_mul_i32 s59, s60, 160
    s_add_u32 s59, s59, s2
    """)
    rowaddr(59, "v4", "v5")
    A(f"""
    s_cmp_lt_u32 s60, {NCW}
    s_waitcnt lgkmcnt(0)
    s_cbranch_scc0 K1_NOS
    """)
    rowload(48, "v4", "v5")
    A("""
    K1_NOS:
    s_cmp_eq_u32 s61, 0
    s_cbranch_scc1 K1_NOT
    global_load_dword v242, v2, s[16:17]
    K1_NOT:
    """)
    for i in range(6): A(f"global_load_dword v{P+i}, v6, {sr(18+2*i,2)}")
    A("""
    s_load_dword s54, s[6:7], 0
    s_load_dwordx2 s[42:43], s[30:31], s3
    s_load_dwordx2 s[44:45], s[32:33], s3
    s_cbranch_scc1 K1_C
    """)
    XR = 32
    srd(12, 6, WS_SIZE)
    A(f"""
    v_lshlrev_b32 v235, 4, v0
    v_sub_u32 v235, {K1_UREV + 4080}, v235
    v_lshlrev_b32 v236, 5, v0
    v_add_u32 v236, {K1_BASE}, v236
    v_add_u32 v237, {2*K1_CH}, v236
    s_lshl_b32 s58, s4, 12
    s_add_u32 s58, s58, {WS_ST:#x}
    v_lshlrev_b32 v5, 4, v1
    v_add_u32 v239, 5120, v238
    s_waitcnt vmcnt(0)
    """)
    def gather(k): A(f"global_load_dwordx2 {vr(XR+2*k,2)}, v{238 + k//4}, s[16:17] offset:{(k%4)*1280}")
    NG0 = E("NG0", 2)
    for k in range(NG0): gather(k)
    A("s_branch K1_C0")
    A("K1_C:")
    A(f"""
    s_mul_i32 s56, s4, 4608
    s_add_u32 s56, s56, {K1_UREV}
    s_mul_i32 s46, s4, 1280
    s_add_u32 s46, s46, {K1_R}
    s_mov_b32 m0, s46
    v_mov_b64 v[240:241], 0
    v_and_b32 v46, 31, v1
    v_lshrrev_b32 v47, 5, v1
    v_mul_u32_u24 v228, {TAB_STRIDE}, v46
    v_lshl_add_u32 v228, v47, 4, v228
    v_add_u32 v228, s55, v228
    v_lshlrev_b32 v2, 4, v46
    v_add_u32 v2, s55, v2
    v_lshl_add_u32 v229, v47, 3, v2
    v_lshl_add_u32 v230, v47, 9, v2
    v_and_b32 v2, 1, v46
    v_mul_u32_u24 v2, 640, v2
    v_and_b32 v3, 30, v46
    v_lshl_add_u32 v3, v47, 5, v3
    v_sub_u32 v2, v2, v3
    v_add_u32 v231, s46, v2
    v_lshl_add_u32 v2, v1, 3, s56
    ds_write_b64 v2, v[240:241] offset:4096
    """)
    for k in range(5): A(f"ds_write_addtid_b32 v240 offset:{256*k}")
    srd(12, 6, WS_SIZE)
    A(f"""
    v_and_b32 v2, 15, v1
    v_lshrrev_b32 v3, 4, v1
    v_add_u32 v4, 1, v2
    v_and_b32 v5, 1, v4
    v_mul_u32_u24 v5, {KC1}, v5
    v_and_b32 v4, 0xfffe, v4
    v_lshl_add_u32 v4, v4, 1, v5
    v_lshl_add_u32 v4, v3, 4, v4
    v_add_u32 v232, s55, v4
    v_add_u32 v233, 1024, v232
    v_add_u32 v239, 2048, v232
    v_lshlrev_b32 v4, 5, v2
    v_lshlrev_b32 v5, 4, v3
    v_sub_u32 v234, v5, v4
    v_add_u32 v234, {4064 - 3584}, v234
    v_add_u32 v234, s56, v234
    v_lshl_add_u32 v235, v2, 6, v5
    v_add_u32 v235, s55, v235
    v_sub_u32 v6, 15, v2
    v_lshl_add_u32 v6, v3, 2, v6
    v_and_b32 v7, 1, v6
    v_mul_u32_u24 v7, 320, v7
    v_and_b32 v6, 0xfffe, v6
    v_lshl_add_u32 v6, v6, 1, v7
    v_add3_u32 v236, v6, 4, s46
    v_lshrrev_b32 v5, 1, v3
    v_lshl_add_u32 v4, v5, 4, v4
    v_and_b32 v5, 1, v3
    v_lshl_add_u32 v237, v5, 9, v4
    v_cmp_eq_u32 s[36:37], 7, v1
    v_cmp_gt_u32 s[38:39], 2, v1
    v_cmp_eq_u32 s[48:49], 2, v1
    v_cmp_eq_u32 s[50:51], 0, v1
    v_lshl_add_u32 v4, v3, 3, v2
    s_mov_b32 s46, 0x10001
    """)
    for ty, (c, wdt) in enumerate([(-20, 7), (-19, 9)]):
        A(f"v_add_u32 v5, {c + 20}, v4\nv_min_u32 v5, 31, v5\nv_mov_b32 v6, {((1 << wdt) - 1) << 20:#x}\nv_lshrrev_b32 v6, v5, v6\nv_and_b32 v6, 0xff, v6\nv_lshl_or_b32 v6, v6, 15, v6")
        for j in range(4):
            A(f"v_lshrrev_b32 v7, {2*j}, v6\nv_and_b32 v7, s46, v7\nv_mul_u32_u24 v{244+4*ty+j}, 0x3f80, v7")
    A(f"""
    s_cmp_lt_u32 s60, {NCW}
    s_cbranch_scc0 K1_CW
    s_lshl_b32 s59, s59, 4
    s_add_u32 s59, s59, {WS_ST:#x}
    s_waitcnt vmcnt(6) lgkmcnt(0)
    s_add_u32 s53, s54, {TAG_INC:#x}
    """)
    rowstats("s59")
    A("s_waitcnt vmcnt(1)\ns_branch K1_C0\nK1_CW:\ns_waitcnt vmcnt(0)")
    A("K1_C0:")
    ACC = 96; DT = 9
    Z1, Z8, Z16, Z256 = 48, 50, 52, 54
    BB, CC = 56, 58
    T0 = 60
    H = {e: 72 + 2 * e for e in range(9)}
    CV = [90, 91, 92, 93, 94, 95]; cvi = [0]
    def put(src, rows, hi):
        t = CV[cvi[0] % len(CV)]; cvi[0] += 1
        A(f"v_cvt_pk_bf16_f32 v{t}, v{src}, {'-' if hi else ''}v{src+1}")
        for r in rows: A(f"ds_write_addtid_b32 v{t} offset:{r*TAB_STRIDE + (TAB_HI if hi else 0)}")
    A(f"""
    s_lshl_b32 s62, s4, 4
    s_mul_i32 s56, s61, {K1_TB}
    s_add_u32 s56, s56, s55
    s_mov_b32 m0, s56
    s_lshl_b32 s47, s61, 4
    s_waitcnt lgkmcnt(0)
    s_add_u32 s54, s54, {TAG_INC:#x}
    """)
    stamp(1)
    A(f"""
    s_lshr_b64 s[42:43], s[42:43], s62
    s_lshl_b32 s42, s42, 16
    v_mov_b32 v{DT}, s42
    v_mul_f32 v{DT}, 0x3fb8aa3b, v{DT}
    v_exp_f32 v{DT}, v{DT}
    v_lshrrev_b32 v{T0}, s47, v{P}
    v_lshrrev_b32 v{T0+1}, s47, v{P+1}
    v_cvt_pk_bf16_f32 v{DT}, v{DT}, v{DT}
    v_lshlrev_b32 v{DT}, 16, v{DT}
    v_lshlrev_b32 v{T0}, 16, v{T0}
    v_lshlrev_b32 v{T0+1}, 16, v{T0+1}
    v_mul_f32 v{T0}, v{T0}, v{DT}
    v_mul_f32 v{T0+1}, v{T0+1}, v{DT}
    v_mul_f32 v{T0+8}, 0x3fb8aa3b, v{T0}
    v_mul_f32 v{T0+9}, 0.15915494, v{T0+1}
    v_mul_f32 v{T0+2}, 0x41000000, v{T0+8}
    v_mul_f32 v{T0+3}, 0x41000000, v{T0+9}
    v_fract_f32 v{T0+3}, v{T0+3}
    v_exp_f32 v{T0+2}, v{T0+2}
    v_cos_f32 v{Z8}, v{T0+3}
    v_sin_f32 v{Z8+1}, v{T0+3}
    v_mov_b32 v95, 0x3f80
    .p2align 3
    ds_write_addtid_b32 v95 offset:0
    v_pk_mul_f32 {vr(Z8,2)}, {vr(Z8,2)}, {vr(T0+2,2)} op_sel_hi:[1,0]
    """)
    cmul(Z16, Z8, Z8)
    put(Z8, [1], False); put(Z16, [2], False)
    Lreg = {1: Z8, 2: Z16}
    gk = [NG0]
    def maybe_gather():
        if gk[0] < NG0 + E("NG1", 4):
            A(f"s_cbranch_scc1 K1_NG{gk[0]}")
            gather(gk[0])
            A(f"K1_NG{gk[0]}:\ns_nop 0")
            gk[0] += 1
    A("s_cmp_eq_u32 s61, 0\ns_nop 0")
    for l in range(3, 32):
        d = T0 + 2 * (l % 4); Lreg[l] = d
        cmul(d, Lreg[l-2], Z16); put(d, [l], False)
        if l in (12, 26): maybe_gather()
    A(f"""
    v_lshrrev_b32 v{BB}, s47, v{P+2}
    v_lshrrev_b32 v{BB+1}, s47, v{P+3}
    v_lshrrev_b32 v{CC}, s47, v{P+4}
    v_lshrrev_b32 v{CC+1}, s47, v{P+5}
    v_lshlrev_b32 v{BB}, 16, v{BB}
    v_lshlrev_b32 v{BB+1}, 16, v{BB+1}
    v_lshlrev_b32 v{CC}, 16, v{CC}
    v_lshlrev_b32 v{CC+1}, 16, v{CC+1}
    v_mul_f32 v{T0+4}, 0x43800000, v{T0+8}
    v_mul_f32 v{T0+5}, 0x43800000, v{T0+9}
    v_fract_f32 v{T0+9}, v{T0+9}
    v_fract_f32 v{T0+5}, v{T0+5}
    v_exp_f32 v{T0+8}, v{T0+8}
    v_exp_f32 v{T0+4}, v{T0+4}
    v_cos_f32 v{Z1}, v{T0+9}
    v_sin_f32 v{Z1+1}, v{T0+9}
    v_cos_f32 v{Z256}, v{T0+5}
    v_sin_f32 v{Z256+1}, v{T0+5}
    v_mul_f32 v{BB}, v{BB}, v{DT}
    v_mul_f32 v{BB+1}, v{BB+1}, v{DT}
    .p2align 3
    """)
    cmul(H[0], CC, BB)
    A(f"v_pk_mul_f32 {vr(Z1,2)}, {vr(Z1,2)}, {vr(T0+8,2)} op_sel_hi:[1,0]")
    A(f"v_pk_mul_f32 {vr(Z256,2)}, {vr(Z256,2)}, {vr(T0+4,2)} op_sel_hi:[1,0]")
    put(H[0], hi_rows_of(0), True)
    for e in range(1, 9):
        cmul(H[e], H[e-1], Z1); put(H[e], hi_rows_of(e), True)
        if e == 3: maybe_gather()
    cur = {e: H[e] for e in (0, 2, 4, 6, 8)}
    spare = [H[1], H[3], H[5], H[7], T0, T0 + 2]
    for blk, es in [(1, (0, 2, 4, 6, 8)), (2, (0, 4, 8)), (3, (0, 4, 8)), (4, (8,)), (5, (8,)), (6, (8,)), (7, (8,))]:
        for e in es:
            d = spare.pop(0); cmul(d, cur[e], Z256); put(d, hi_rows_of(256 * blk + e), True)
            spare.append(cur[e]); cur[e] = d
        if blk == 2: maybe_gather()
    A("s_cbranch_scc1 K1_PEND")
    stamp(12)
    A("s_mov_b32 s52, 0\ns_waitcnt lgkmcnt(0)\ns_barrier")
    for k in range(gk[0], 8): gather(k)
    A("K1_POLL:")
    for k in range(4): A(f"buffer_load_dwordx4 {vr(G+4*k,4)}, v5, s[12:15], s58 offen offset:{1024*k} sc1")
    A("s_add_u32 s52, s52, 1\ns_waitcnt vmcnt(0)")
    for k in range(8): A(f"v_xor_b32 v{48+k}, s54, v{G+2*k+1}")
    A("""
    v_or3_b32 v48, v48, v49, v50
    v_or3_b32 v51, v51, v52, v53
    v_or3_b32 v48, v48, v54, v55
    v_or_b32 v48, v48, v51
    v_cmp_ne_u32 vcc, 0, v48
    s_cmp_lt_u32 s52, 0x40000
    s_cbranch_vccz K1_GOT
    s_sleep 4
    s_cbranch_scc1 K1_POLL
    K1_GOT:
    """)
    stamp(10)
    if PROF: A("s_add_u32 s86, s64, s52")
    X = 48; RS, NB = 80, 88; U = 112; UP = 96
    for r in range(8):
        A(f"v_and_b32 v{RS+r}, 0xffff0000, v{G+2*r}\nv_rcp_f32 v{RS+r}, v{RS+r}\nv_lshlrev_b32 v{NB+r}, 16, v{G+2*r}")
    for r in range(0, 8, 2):
        A(f"v_pk_mul_f32 {vr(NB+r,2)}, {vr(NB+r,2)}, {vr(RS+r,2)} neg_lo:[1,0] neg_hi:[1,0]")
    for c in range(4):
        for r in range(8):
            src = XR + 2 * r + (c >> 1)
            A(f"v_and_b32 v{X+8*c+r}, 0xffff0000, v{src}" if c & 1 else f"v_lshlrev_b32 v{X+8*c+r}, 16, v{src}")
        for r in range(0, 8, 2): A(f"v_pk_fma_f32 {vr(U+8*c+r,2)}, {vr(X+8*c+r,2)}, {vr(RS+r,2)}, {vr(NB+r,2)}")
        for k in range(4): A(f"v_cvt_pk_bf16_f32 v{UP+4*c+k}, v{U+8*c+7-2*k}, v{U+8*c+6-2*k}")
        A(f"ds_write_b128 v235, {vr(UP+4*c,4)} offset:{c * 4608}")
    A("s_waitcnt lgkmcnt(0)\ns_barrier")
    stamp(2)
    for c in range(4):
        ba = "v236" if c < 2 else "v237"; co = (c & 1) * K1_CH
        A(f"ds_write_b128 {ba}, {vr(X+8*c,4)} offset:{co}\nds_write_b128 {ba}, {vr(X+8*c+4,4)} offset:{co+16}")
    A(f"""
    s_cmp_lg_u32 s4, 0
    s_cbranch_scc1 K1_NOBUMP
    v_and_b32 v6, 31, v1
    v_lshlrev_b32 v6, 2, v6
    v_mov_b32 v7, s54
    s_lshl_b32 s52, s2, 7
    s_add_u32 s52, s52, {WS_HR1:#x}
    buffer_store_dword v7, v6, s[12:15], s52 offen sc1
    K1_NOBUMP:
    s_waitcnt lgkmcnt(0)
    s_barrier
    s_branch K2_LOADER
    """)
    A("K1_PEND:\ns_mov_b32 m0, s55\ns_waitcnt lgkmcnt(0)")
    FA, FB = 112, 144
    def kmf(tb, first):
        for ks in range(8):
            A(f"ds_read_b128 {vr(FA+4*ks,4)}, v228 offset:{tb + TAB_HI + ks*32}\nds_read_b128 {vr(FB+4*ks,4)}, v228 offset:{tb + ks*32}")
        for ks in range(8):
            A(f"s_waitcnt lgkmcnt({14-2*ks})")
            A(f"v_mfma_f32_32x32x16_bf16 {vr(ACC,16)}, {vr(FA+4*ks,4)}, {vr(FB+4*ks,4)}, {'0' if first and ks == 0 else vr(ACC,16)}")
    kmf(0, True)
    for i in range(0, 32, 2): A(f"v_mov_b64 {vr(16+i,2)}, 0")
    stamp(12)
    A("s_barrier")
    A(f"v_add_u32 v228, {K1_TB}, v228")
    kmf(0, False)
    a = lambda r: f"v{ACC+r}"
    O = 112
    def pk(d, x, y): A(f"v_cvt_pk_bf16_f32 v{d}, {x}, {y}")
    A(f"""
    s_mov_b64 exec, 0xff
    ds_write_addtid_b32 v240
    s_mov_b64 exec, -1
    s_lshr_b64 s[44:45], s[44:45], s62
    s_lshl_b32 s44, s44, 16
    v_mov_b32 v2, s44
    v_cndmask_b32 v2, 0, v2, s[50:51]
    s_nop 4
    v_add_f32 {a(0)}, {a(0)}, v2
    v_readlane_b32 s52, {a(10)}, 63
    v_readfirstlane_b32 s53, {a(0)}
    """)
    pk(O+0, a(0), a(1)); pk(O+1, a(2), a(3)); pk(O+2, a(1), a(2)); pk(O+3, a(3), a(4))
    A(f"ds_write_b64 v229, {vr(O,2)} offset:32\nds_write_b64 v229, {vr(O+2,2)} offset:{KC1+32}")
    p, q, r_ = a(5), a(6), a(7)
    pk(O+4, p, p); pk(O+5, q, r_); pk(O+6, p, q); pk(O+7, r_, r_)
    A(f"ds_write_b64 v229, {vr(O+4,2)} offset:{32+512}\nds_write_b64 v229, {vr(O+6,2)} offset:{KC1+32+512}")
    p, q, r_ = a(8), a(9), a(10)
    pk(O+8, p, p); pk(O+9, p, q); pk(O+10, q, q); pk(O+11, r_, r_)
    pk(O+12, p, p); pk(O+13, q, q); pk(O+14, q, r_); pk(O+15, r_, r_)
    A(f"ds_write_b128 v230, {vr(O+8,4)} offset:{32+1024}\nds_write_b128 v230, {vr(O+12,4)} offset:{KC1+32+1024}")
    A(f"""
    v_cvt_pk_bf16_f32 v2, 0, s53
    v_cvt_pk_bf16_f32 v3, s52, s52
    v_cvt_pk_bf16_f32 v4, s52, 0
    v_cndmask_b32 v2, 0, v2, s[36:37]
    v_cndmask_b32 v3, 0, v3, s[38:39]
    v_cndmask_b32 v4, v3, v4, s[48:49]
    s_mov_b64 exec, 0xff
    ds_write_addtid_b32 v2 offset:{KC1}
    s_mov_b64 exec, 0xffff
    ds_write_addtid_b32 v4 offset:{32+2048}
    ds_write_addtid_b32 v3 offset:{KC1+32+2048}
    s_mov_b64 exec, -1
    """)
    pk(5, a(11), a(12))
    D = 16; SET = [48, 96]
    def loads(st, extra, which="AB"):
        ops = []; Ab, Bb = SET[st], SET[st] + 16
        for k in range(8):
            o = (k & 1) * 128 + extra // 4
            if "B" in which: ops.append(f"ds_read_b128 {vr(Bb+4*k,4)}, v234 offset:{512*(7-k) + extra}")
            if "A" in which and k < 4:
                ops.append(f"ds_read2_b32 {vr(Ab+4*k,2)}, v{232 + k//2} offset0:{o} offset1:{o+1}")
                ops.append(f"ds_read2_b32 {vr(Ab+4*k+2,2)}, v{232 + k//2} offset0:{o+2} offset1:{o+3}")
        return ops
    def mfmas(st):
        Ab, Bb = SET[st], SET[st] + 16
        return [f"v_mfma_f32_16x16x32_bf16 {vr(D+4*i,4)}, {vr(Ab+4*s1,4)}, {vr(Bb+4*(i-s1),4)}, {vr(D+4*i,4)}" for s1 in range(4) for i in range(s1, 8)]
    RK = 144; A32 = 176; WF = 180; U9 = 180; WD_ = 196; BS = 196
    A(f"""
    ds_write_b16 v231, v5 offset:{4 + 126}
    ds_write_b16 v231, v5 offset:{320 + 4 + 124}
    ds_write_b16_d16_hi v231, v5 offset:{4 + 126 - 64}
    ds_write_b16_d16_hi v231, v5 offset:{320 + 4 + 124 - 64}
    ds_read2_b32 {vr(A32,2)}, v239 offset0:0 offset1:1
    ds_read2_b32 {vr(A32+2,2)}, v239 offset0:2 offset1:3
    """)
    for o in loads(0, 0, "A"): A(o)
    for ty in range(2):
        for oi in range(4):
            o = ty * 160 + (48 - 16 * oi) // 2
            A(f"ds_read2_b32 {vr(RK+(ty*4+oi)*4,2)}, v236 offset0:{o} offset1:{o+1}\nds_read2_b32 {vr(RK+(ty*4+oi)*4+2,2)}, v236 offset0:{o+8} offset1:{o+9}")
    A("s_barrier")
    stamp(2)
    bl = loads(0, 0, "B")
    for o in bl[:4]: A(o)
    for k in range(4): A(f"ds_read_b128 {vr(U9+4*k,4)}, v234 offset:{512*(7-k) + 16}")
    for o in bl[4:]: A(o)
    B0 = SET[0] + 16
    A("s_mov_b32 s52, 0\ns_waitcnt lgkmcnt(8)")
    for k in range(4): A(f"v_mfma_f32_16x16x32_bf16 {vr(WD_+4*k,4)}, {vr(B0+4*k,4)}, v[244:247], 0")
    A("s_waitcnt lgkmcnt(4)")
    for k in range(4): A(f"v_mfma_f32_16x16x32_bf16 {vr(WD_+16+4*k,4)}, {vr(U9+4*k,4)}, v[248:251], 0")
    for i in range(4, 8): A(f"v_mfma_f32_16x16x32_bf16 {vr(D+4*i,4)}, {vr(A32,4)}, {vr(B0+4*(i-4),4)}, {vr(D+4*i,4)}")
    far = [f"v_mfma_f32_16x16x32_bf16 {vr(D+4*i,4)}, {vr(WF+(ty*2+ks)*4,4)}, {vr(RK+(ty*4+i-4-2*ks)*4,4)}, {vr(D+4*i,4)}"
           for ty in range(2) for i, ks in [(4, 0), (5, 0), (6, 0), (7, 0), (6, 1), (7, 1)]]
    def fin(i):
        ops = [f"v_pk_add_f32 {vr(D+4*i,2)}, {vr(D+4*i,2)}, {vr(BS+4*i,2)}", f"v_pk_add_f32 {vr(D+4*i+2,2)}, {vr(D+4*i+2,2)}, {vr(BS+4*i+2,2)}",
               f"v_cvt_pk_bf16_f32 v{48+2*i}, v{D+4*i}, v{D+4*i+1}", f"v_cvt_pk_bf16_f32 v{48+2*i+1}, v{D+4*i+2}, v{D+4*i+3}"]
        if i & 1:
            o = 48 + 2 * (i - 1)
            ops += ["s_nop 1", f"v_permlane16_swap_b32 v{o}, v{o+2}", f"v_permlane16_swap_b32 v{o+1}, v{o+3}",
                    f"buffer_store_dwordx4 {vr(o,4)}, v237, s[12:15], s47 offen offset:{512*(i-1)} sc1"]
        return ops
    def body(last):
        for st in range(2):
            A("s_waitcnt lgkmcnt(0)")
            m = mfmas(st)
            if last and st == 1:
                Ab, Bb = SET[st], SET[st] + 16
                pend = []
                for i in range(8):
                    for s1 in range(min(i, 3) + 1):
                        A(f"v_mfma_f32_16x16x32_bf16 {vr(D+4*i,4)}, {vr(Ab+4*s1,4)}, {vr(Bb+4*(i-s1),4)}, {vr(D+4*i,4)}")
                        for _ in range(2):
                            if pend: A(pend.pop(0))
                    if i >= 3: pend += fin(i - 3)
                for o in pend: A(o)
                for i in range(5, 8):
                    for o in fin(i): A(o)
                continue
            A("s_add_u32 s52, s52, 1")
            ld = loads(1 - st, 64 * (st + 1))
            if last:
                cv = [f"v_cvt_pk_bf16_f32 v{WF+k}, v{WD_+2*k}, v{WD_+2*k+1}" for k in range(16)]
                ld = [x + "\n" + y for x, y in zip(ld, cv)]
                ld += ["s_lshl_b32 s47, s5, 12", f"s_add_u32 s47, s47, {WS_HT:#x}"]
                ld += [f"ds_read_b128 {vr(BS+4*i,4)}, v235 offset:{K1_BASE + 1024*i}" for i in range(8)]
                m = m + far
            for k, x in enumerate(m):
                A(x)
                if k < len(ld): A(ld[k])
                if not last and st == 1 and 20 <= k < 23:
                    rr = (232, 233, 234)[k - 20]; A(f"v_add_u32 v{rr}, 128, v{rr}")
    A(".p2align 3\nK1_CONV:")
    body(False)
    A(f"s_cmp_lg_u32 s52, {E('BDAT', 4)}\ns_cbranch_scc1 K1_CONV2\ns_barrier\nK1_CONV2:\ns_cmp_lt_u32 s52, 6\ns_cbranch_scc1 K1_CONV")
    body(True)
    A("s_branch K2_COMP")

    A(f"""
    K1_PREP:
    s_sub_u32 s3, s2, 160
    s_lshl_b32 s46, s3, 3
    s_add_u32 s46, s46, s60
    s_add_u32 s46, s46, {NT1 - 432}
    s_lshl_b32 s47, s3, 2
    s_add_u32 s47, s47, s4
    s_add_u32 s47, s47, {NT0}
    s_cmp_lt_u32 s3, 54
    s_cselect_b32 s46, s47, s46
    s_cselect_b32 s44, s61, 1
    s_cselect_b32 s47, 1024, 0
    s_mul_i32 s45, s60, 42
    s_add_u32 s45, s45, s3
    s_add_u32 s45, s45, {NT1 + 336 - 54}
    s_add_u32 s47, s47, s45
    """)
    rowaddr(46, "v4", "v5"); rowaddr(47, "v12", "v13")
    A(f"""
    s_waitcnt lgkmcnt(0)
    s_load_dword s54, s[6:7], 0
    s_mov_b32 s12, s6
    s_mov_b32 s13, s7
    s_mov_b32 s14, {WS_SIZE:#x}
    s_mov_b32 s15, 0x00020000
    s_cmp_eq_u32 s44, 0
    s_cbranch_scc1 K1_PREPW
    """)
    rowload(48, "v4", "v5")
    A("s_cmp_lt_u32 s47, 1024\ns_cselect_b32 s45, 2, 1\ns_cbranch_scc0 K1_ST0")
    rowload(64, "v12", "v13")
    A(f"""
    K1_ST0:
    s_lshl_b32 s46, s46, 4
    s_add_u32 s46, s46, {WS_ST:#x}
    s_lshl_b32 s47, s47, 4
    s_add_u32 s47, s47, {WS_ST:#x}
    s_waitcnt vmcnt(0) lgkmcnt(0)
    s_add_u32 s53, s54, {TAG_INC:#x}
    K1_ST1:
    """)
    rowstats("s46")
    for r in range(0, 10, 2): A(f"v_mov_b64 {vr(48+r,2)}, {vr(64+r,2)}")
    A("s_mov_b32 s46, s47\ns_sub_u32 s45, s45, 1\ns_cmp_lg_u32 s45, 0\ns_cbranch_scc1 K1_ST1")
    stamp(1)
    A(f"""
    s_barrier
    s_cmp_eq_u32 s61, 0
    s_cbranch_scc1 K1_PREPD
    s_barrier
    s_mov_b32 s54, s53
    v_mov_b32 v8, {K1_CNT}
    s_mov_b32 s52, 0
    K1_WD:
    ds_read_b32 v9, v8 offset:4
    s_add_u32 s52, s52, 1
    s_waitcnt lgkmcnt(0)
    v_cmp_ne_u32 vcc, 4, v9
    s_cmp_lt_u32 s52, 0x100000
    s_cbranch_vccz K1_WD2
    s_sleep 4
    s_cbranch_scc1 K1_WD
    K1_WD2:
    s_lshl_b32 s3, s2, 7
    s_add_u32 s3, s3, {WS_HR1 - 160*128:#x}
    v_mov_b32 v5, s3
    """)
    poll("K1_PHR1", "v5", "v6", slp=8)
    A(f"""
    s_branch K2_LOADER
    K1_PREPW:
    s_cmp_ge_u32 s3, 27
    s_cselect_b32 s40, 1, 0
    s_cselect_b32 s8, s38, s36
    s_cselect_b32 s9, s39, s37
    s_mul_i32 s41, s40, 27
    s_sub_u32 s41, s3, s41
    s_mov_b32 s10, {640*1728*2}
    s_mov_b32 s11, 0x00020000
    v_lshrrev_b32 v2, 3, v1
    v_and_b32 v3, 7, v1
    v_and_b32 v4, 6, v2
    v_xor_b32 v3, v3, v4
    v_mul_u32_u24 v2, 3456, v2
    v_lshl_add_u32 v2, v3, 4, v2
    s_lshl_b32 s42, s41, 7
    s_mul_i32 s43, s4, 552960
    s_add_u32 s42, s42, s43
    s_mul_i32 s44, s4, 20480
    s_mov_b32 s45, 0
    K1_PW_LD:
    s_mov_b32 m0, s44
    s_add_u32 s44, s44, 1024
    s_add_u32 s45, s45, 1
    buffer_load_dwordx4 v2, s[8:11], s42 offen lds
    s_add_u32 s42, s42, 27648
    s_cmp_lg_u32 s45, {E('PACE', 5)}
    s_cbranch_scc1 K1_PW_L2
    s_barrier
    K1_PW_L2:
    s_cmp_lt_u32 s45, 20
    s_cbranch_scc1 K1_PW_LD
    v_lshrrev_b32 v2, 2, v1
    v_and_b32 v3, 6, v2
    v_bfe_u32 v4, v1, 1, 1
    s_lshl_b32 s43, s4, 1
    v_add_u32 v4, s43, v4
    v_xor_b32 v3, v3, v4
    v_lshlrev_b32 v2, 7, v2
    v_lshl_add_u32 v2, v3, 4, v2
    v_and_b32 v3, 1, v1
    v_lshl_add_u32 v2, v3, 3, v2
    v_add_u32 v4, 40960, v2
    s_lshl_b32 s43, s41, 2
    s_add_u32 s43, s43, s4
    s_mul_i32 s44, s43, 9363
    s_lshr_b32 s44, s44, 16
    s_mul_i32 s45, s44, 7
    s_sub_u32 s45, s43, s45
    s_mul_i32 s46, s44, {20*14*1024}
    s_add_u32 s46, s46, {WS_W1P:#x}
    s_cmp_gt_u32 s45, 3
    s_cselect_b32 s47, 3, 0
    s_add_u32 s47, s47, s45
    s_mul_i32 s48, s40, 3
    s_add_u32 s47, s47, s48
    s_lshl_b32 s47, s47, 10
    v_bfe_u32 v6, v1, 2, 1
    v_bfe_u32 v7, v1, 3, 1
    v_xor_b32 v6, v6, v7
    v_mul_u32_u24 v6, 12, v6
    s_and_b32 s48, s45, 3
    s_cmp_eq_u32 s48, 2
    s_cselect_b32 s48, -1, 0
    v_and_b32 v6, s48, v6
    v_xor_b32 v5, v6, v1
    v_lshlrev_b32 v5, 4, v5
    v_add_u32 v5, s47, v5
    v_and_b32 v6, 7, v1
    v_and_b32 v7, 48, v1
    v_add_u32 v6, v6, v7
    s_lshl_b32 s48, s40, 3
    v_add_u32 v6, s48, v6
    v_lshlrev_b32 v6, 4, v6
    v_bfe_u32 v7, v1, 3, 1
    v_mul_u32_u24 v7, 7168, v7
    v_add3_u32 v6, v6, v7, 0
    v_add_u32 v6, 6144, v6
    s_cmp_eq_u32 s45, 3
    s_cselect_b64 vcc, -1, 0
    s_nop 1
    v_cndmask_b32 v5, v5, v6, vcc
    s_waitcnt vmcnt(0)
    s_barrier
    """)
    stamp(2)
    F = 16
    for ks in range(20):
        base = "v2" if ks < 10 else "v4"; o = (ks % 10) * 4096
        A(f"ds_read_b64_tr_b16 {vr(F+4*ks,2)}, {base} offset:{o}\nds_read_b64_tr_b16 {vr(F+4*ks+2,2)}, {base} offset:{o+2048}")
    A("v_mov_b32 v8, 0\nv_mov_b32 v9, 0\nv_mov_b32 v10, 0x3f803f80\ns_mov_b32 s47, 0xffff0000\ns_waitcnt lgkmcnt(0)")
    for i in range(0, 80, 2): A(f"v_dot2c_f32_bf16 v8, v10, v{F+i}\nv_dot2c_f32_bf16 v9, v10, v{F+i+1}")
    A("""
    s_nop 2
    v_add_f32 v8, v8, v9
    v_mov_b32 v9, v8
    s_nop 1
    v_permlane16_swap_b32 v8, v9
    s_nop 1
    v_add_f32 v8, v8, v9
    v_mov_b32 v9, v8
    s_nop 1
    v_permlane32_swap_b32 v8, v9
    s_nop 1
    v_add_f32 v8, v8, v9
    v_mul_f32 v8, 0xbacccccd, v8
    s_mov_b32 s47, 0x3f80
    s_mov_b32 s48, 0x3f800000
    .p2align 3
    """)
    for ks in range(20):
        for i in range(4):
            r = F + 4 * ks + i; t = 100 + 2 * i
            A(f"v_dot2_f32_bf16 v{t}, v{r}, s47, v8\nv_dot2_f32_bf16 v{t+1}, v{r}, s48, v8")
        for i in range(4):
            r = F + 4 * ks + i; t = 100 + 2 * i
            A(f"v_cvt_pk_bf16_f32 v{r}, v{t}, v{t+1}")
        A(f"buffer_store_dwordx4 {vr(F+4*ks,4)}, v5, s[12:15], s46 offen sc1\ns_add_u32 s46, s46, {14*1024}")
    A("s_branch K2_COMPP")
    tabv = [Q_TILES[r][hf] for r in range(7) for hf in range(2)]
    t64 = sum(v << (4 * i) for i, v in enumerate(tabv))
    A(f"""
    K1_PREPD:
    s_sub_u32 s3, s3, 54
    s_cmp_lt_u32 s3, 36
    s_cbranch_scc1 K1_PD0
    s_barrier
    s_branch K2_COMPP
    K1_PD0:
    """)
    srd(8, 92, 1728 * 640 * 2)
    for i in range(5):
        A(f"""
        v_add_u32 v2, {64*i}, v1
        v_mul_u32_u24 v3, 6554, v2
        v_lshrrev_b32 v3, 16, v3
        v_mul_u32_u24 v4, 1120, v3
        v_lshl_add_u32 v{40+i}, v2, 4, v4
        v_lshrrev_b32 v{45+i}, 4, v3
        """)
    A(f"""
    s_mul_i32 s40, s3, 12
    s_mul_i32 s41, s4, 3
    s_add_u32 s40, s40, s41
    s_mul_i32 s49, s4, 15360
    s_mov_b32 s45, 0
    K1_PD1:
    s_lshr_b32 s36, s40, 3
    s_mul_i32 s37, s36, 9363
    s_lshr_b32 s37, s37, 16
    s_mul_i32 s38, s37, 7
    s_sub_u32 s38, s36, s38
    s_lshl_b32 s39, s38, 3
    s_mov_b32 s50, {t64 & 0xffffffff:#x}
    s_mov_b32 s51, {t64 >> 32:#x}
    s_lshr_b64 s[50:51], s[50:51], s39
    s_mul_i32 s37, s37, 14
    s_and_b32 s48, s50, 15
    s_add_u32 s48, s48, s37
    s_lshr_b32 s50, s50, 4
    s_and_b32 s50, s50, 15
    s_add_u32 s50, s50, s37
    s_min_u32 s50, s50, 107
    s_sub_u32 s50, s50, s48
    s_sub_u32 s50, s50, 1
    s_mul_i32 s39, s50, 20480
    s_mul_i32 s48, s48, 20480
    s_and_b32 s37, s40, 7
    s_mul_i32 s37, s37, 160
    s_add_u32 s48, s48, s37
    """)
    for i in range(5):
        A(f"s_add_u32 m0, s49, {1024*i}\nv_mad_u32_u24 v2, v{45+i}, s39, v{40+i}\nbuffer_load_dwordx4 v2, s[8:11], s48 offen lds")
    A(f"""
    s_add_u32 s40, s40, 1
    s_add_u32 s49, s49, 5120
    s_add_u32 s45, s45, 1
    s_cmp_lt_u32 s45, 3
    s_cbranch_scc1 K1_PD1
    s_sub_u32 s40, s40, 3
    s_sub_u32 s49, s49, 15360
    v_lshrrev_b32 v6, 4, v1
    v_bfe_u32 v7, v1, 2, 2
    v_and_b32 v8, 3, v1
    v_lshlrev_b32 v5, 4, v1
    s_waitcnt vmcnt(0)
    s_barrier
    """)
    stamp(2)
    A(f"""
    K1_PD3:
    s_lshr_b32 s36, s40, 3
    s_mul_i32 s37, s36, 9363
    s_lshr_b32 s37, s37, 16
    s_mul_i32 s38, s37, 7
    s_sub_u32 s38, s36, s38
    s_and_b32 s38, s38, 1
    v_lshlrev_b32 v2, s38, v6
    v_lshl_add_u32 v2, v2, 2, v7
    v_mul_u32_u24 v2, 160, v2
    v_lshl_add_u32 v2, v8, 3, v2
    v_add_u32 v2, s49, v2
    s_cmp_eq_u32 s38, 1
    s_movk_i32 s38, 2560
    s_cselect_b32 s38, 640, s38
    v_add_u32 v3, s38, v2
    s_and_b32 s37, s40, 7
    s_mul_i32 s37, s37, {54*5120}
    s_mul_i32 s36, s36, 5120
    s_add_u32 s50, s37, s36
    s_add_u32 s50, s50, {WS_WDP:#x}
    s_add_u32 s51, s50, 4096
    """)
    for t in range(5): A(f"ds_read_b64_tr_b16 {vr(16+4*t,2)}, v2 offset:{32*t}\nds_read_b64_tr_b16 {vr(16+4*t+2,2)}, v3 offset:{32*t}")
    A("s_waitcnt lgkmcnt(0)")
    for t in range(5): A(f"buffer_store_dwordx4 {vr(16+4*t,4)}, v5, s[12:15], {'s50' if t < 4 else 's51'} offen offset:{1024*(t&3)} sc1")
    A("""
    s_add_u32 s40, s40, 1
    s_add_u32 s49, s49, 5120
    s_sub_u32 s45, s45, 1
    s_cmp_lg_u32 s45, 0
    s_cbranch_scc1 K1_PD3
    s_branch K2_COMPP
    """)

    A("K2_LOADER:")
    map2()
    RW = 16
    A(f"""
    s_mul_i32 s35, s37, {54*5120}
    s_add_u32 s35, s35, {WS_WDP:#x}
    s_mul_i32 s26, s4, 15360
    s_add_u32 s29, s35, s26
    s_add_u32 s29, s29, 153600
    v_min_u32 v5, 35, v1
    v_lshlrev_b32 v5, 7, v5
    v_add_u32 v5, {WS_FP + 214*128:#x}, v5
    """)
    def batch(b):
        for i in range(15):
            A(f"buffer_load_dwordx4 {vr(RW+(b*15+i)*4,4)}, v4, s[12:15], s29 offen offset:{1024*(i&3)} sc1")
            if (i & 3) == 3: A("s_add_u32 s29, s29, 4096")
        if b == 0: A(f"s_add_u32 s29, s29, {61440 - 12288}")
    A(f"""
    s_mul_i32 s20, s17, 7
    s_lshr_b32 s20, s20, 2
    v_and_b32 v7, 3, v1
    v_min_u32 v7, 2, v7
    v_add_u32 v7, s20, v7
    v_min_u32 v7, 26, v7
    v_bfe_u32 v6, v1, 2, 1
    v_mad_u32_u24 v7, v6, 27, v7
    v_lshlrev_b32 v7, 7, v7
    v_add_u32 v10, {WS_FP + 160*128:#x}, v7
    v_lshrrev_b32 v8, 4, v1
    v_and_b32 v6, 15, v1
    v_lshlrev_b32 v7, 1, v8
    v_xor_b32 v2, v6, v7
    v_xor_b32 v3, 8, v2
    v_lshlrev_b32 v7, 12, v8
    v_lshl_add_u32 v2, v2, 4, v7
    v_lshl_add_u32 v3, v3, 4, v7
    s_lshl_b32 s20, s4, 16
    s_lshl_b32 s21, s16, 8
    s_add_u32 s20, s20, s21
    s_add_u32 s20, s20, {WS_HT:#x}
    s_mul_i32 s21, s17, {20*14*1024}
    s_mul_i32 s22, s4, 7168
    s_add_u32 s21, s21, s22
    s_add_u32 s21, s21, {WS_W1P:#x}
    s_lshl_b32 s23, s4, 12
    s_add_u32 s23, s23, {XS}
    s_add_u32 s24, s22, {WB + WSL}
    s_mov_b32 s33, {XS}
    s_mov_b32 s34, {WSL}
    v_min_u32 v7, 39, v1
    v_lshrrev_b32 v8, 2, v7
    v_and_b32 v7, 3, v7
    v_lshl_add_u32 v7, v8, 4, v7
    s_lshl_b32 s22, s4, 2
    v_add_u32 v7, s22, v7
    v_min_u32 v8, 48, v1
    s_mul_i32 s22, s4, 9
    s_add_u32 s22, s22, {214 - 40}
    v_add_u32 v8, s22, v8
    v_cmp_gt_u32 vcc, 40, v1
    s_nop 1
    v_cndmask_b32 v7, v8, v7, vcc
    v_lshlrev_b32 v7, 7, v7
    v_add_u32 v7, {WS_FP:#x}, v7
    v_mov_b32 v8, {K1_CNT}
    """)
    def dma_x():
        A("""
        s_mov_b32 m0, s23
        s_add_u32 s25, s20, 15360
        buffer_load_dwordx4 v2, s[12:15], s20 offen sc1 lds
        s_add_u32 s27, s20, 30720
        buffer_load_dwordx4 v3, s[12:15], s25 offen offset:1024 sc1 lds
        s_add_u32 s25, s20, 46080
        buffer_load_dwordx4 v2, s[12:15], s27 offen offset:2048 sc1 lds
        s_add_u32 s20, s20, 0x40000
        buffer_load_dwordx4 v3, s[12:15], s25 offen offset:3072 sc1 lds
        """)
    def dma_w():
        A("s_mov_b32 m0, s24\ns_add_u32 s25, s21, 4096")
        for i in range(4): A(f"buffer_load_dwordx4 v4, s[12:15], s21 offen offset:{1024*i} sc1 lds")
        A(f"s_add_u32 m0, s24, 4096\ns_add_u32 s21, s21, {WSL}")
        for i in range(3): A(f"buffer_load_dwordx4 v4, s[12:15], s25 offen offset:{1024*i} sc1 lds")
    stamp(3)
    poll("K2_P1", "v10", "v6", slp=8)
    stamp(4)
    dma_w(); A(f"s_add_u32 s24, s24, {WSL}")
    dma_w(); A(f"s_sub_u32 s24, s24, {2*WSL}")
    A(f"""
    s_mov_b32 s52, 0
    K2_WL:
    ds_read_b32 v9, v8 offset:4
    s_add_u32 s52, s52, 1
    s_waitcnt lgkmcnt(0)
    v_cmp_ne_u32 vcc, 4, v9
    s_cmp_lt_u32 s52, 0x100000
    s_cbranch_vccz K2_WL_D
    s_sleep 2
    s_cbranch_scc1 K2_WL
    K2_WL_D:
    s_cmp_lt_u32 s2, 160
    s_cbranch_scc1 K2_NOH2
    s_lshl_b32 s3, s2, 7
    s_add_u32 s3, s3, {WS_HR2 - 160*128:#x}
    v_mov_b32 v11, s3
    """)
    poll("K2_PH2", "v11", "v6", slp=8)
    A("K2_NOH2:")
    stamp(5)
    dma_w(); A(f"s_add_u32 s24, s24, {WSL}")
    A("s_waitcnt vmcnt(0)")
    stamp(6)
    poll("K2_PC", "v7", "v6", slp=4)
    stamp(7)
    dma_x(); A(f"s_add_u32 s23, s23, {XS}")
    dma_x(); A(f"s_sub_u32 s23, s23, {2*XS}")
    dma_x(); A(f"s_add_u32 s23, s23, {XS}")
    A("s_waitcnt vmcnt(8)\ns_barrier")
    EX = [int(x) for x in os.environ.get("EX", "4,2,2,2,2,2,1,0").split(",")]
    rl = [0]
    def regload(n):
        for _ in range(n):
            i = rl[0]; rl[0] += 1
            b, j = divmod(i, 15)
            A(f"buffer_load_dwordx4 {vr(RW+i*4,4)}, v4, s[12:15], s29 offen offset:{1024*(j&3)} sc1")
            if (j & 3) == 3: A("s_add_u32 s29, s29, 4096")
            if i == 14: A(f"s_add_u32 s29, s29, {61440 - 12288}")
    regload(EX[0])
    for st in range(3, 10):
        k = st - 2
        younger = (4 + EX[0]) if k == 1 else (EX[k-2] + 11 + EX[k-1])
        A(f"s_waitcnt vmcnt({younger})\ns_barrier")
        dma_x(); dma_w()
        regload(EX[k])
        if (st + 1) % 3 == 2: A(f"s_sub_u32 s23, s23, {2*XS}\ns_sub_u32 s24, s24, {2*WSL}")
        else: A(f"s_add_u32 s23, s23, {XS}\ns_add_u32 s24, s24, {WSL}")
    def range_dma():
        A("s_mov_b32 m0, s23\ns_add_u32 s25, s35, s23")
        for i in range(4): A(f"buffer_load_dwordx4 v4, s[12:15], s25 offen offset:{1024*i} sc1 lds")
        A("s_mov_b32 m0, s24\ns_add_u32 s25, s35, s24")
        for i in range(4): A(f"buffer_load_dwordx4 v4, s[12:15], s25 offen offset:{1024*i} sc1 lds")
        A("s_add_u32 m0, s24, 4096\ns_add_u32 s25, s25, 4096")
        for i in range(3): A(f"buffer_load_dwordx4 v4, s[12:15], s25 offen offset:{1024*i} sc1 lds")
    A(f"s_waitcnt vmcnt({EX[6] + 11 + EX[7]})\ns_barrier")
    range_dma()
    A(f"s_sub_u32 s23, s23, {2*XS}\ns_sub_u32 s24, s24, {2*WSL}\ns_waitcnt vmcnt({EX[7] + 11})\ns_barrier")
    stamp(8)
    range_dma()
    A(f"""
    s_add_u32 s23, s23, {XS}
    s_add_u32 s24, s24, {WSL}
    v_lshrrev_b32 v5, 3, v1
    v_and_b32 v6, 7, v1
    v_lshlrev_b32 v5, 12, v5
    v_lshl_add_u32 v7, v6, 4, v5
    s_mul_i32 s20, s37, {80*4096}
    s_lshl_b32 s21, s36, 7
    s_add_u32 s20, s20, s21
    s_add_u32 s20, s20, {WS_HT:#x}
    s_lshl_b32 s21, s4, 15
    s_add_u32 s20, s20, s21
    s_lshl_b32 s21, s4, 10
    s_add_u32 s22, s21, {G1_END}
    s_add_u32 s21, s21, {RES_LDS}
    v_add_u32 v5, s26, v4
    v_add_u32 v6, 61440, v5
    s_barrier
    """)
    B11 = E("B11", 1)
    if B11: A("s_barrier")
    range_dma()
    for i in range(4): A(f"s_add_u32 m0, s22, {4096*i}\ns_add_u32 s25, s35, m0\nbuffer_load_dwordx4 v4, s[12:15], s25 offen sc1 lds")
    for i in range(2): A(f"s_add_u32 m0, s21, {4096*i}\ns_add_u32 s25, s20, {0x20000*i}\nbuffer_load_dwordx4 v7, s[12:15], s25 offen sc1 lds")
    A(f"""
    s_cmp_lt_u32 s4, 2
    s_cbranch_scc0 K2_LR
    s_add_u32 m0, s22, {4096*4}
    s_add_u32 s25, s35, m0
    buffer_load_dwordx4 v4, s[12:15], s25 offen sc1 lds
    s_branch K2_LR2
    K2_LR:
    s_add_u32 m0, s21, {8192 - 2048}
    s_add_u32 s25, s20, {0x40000 - 0x10000}
    buffer_load_dwordx4 v7, s[12:15], s25 offen sc1 lds
    K2_LR2:
    """)
    rest = 30 - rl[0]
    regload(rest)
    stamp(9)
    A(f"s_waitcnt vmcnt({min(rest, 15) if not E('S0ALL', 0) else 0})\ns_barrier\ns_barrier")
    for i in range(15): A(f"ds_write_b128 v5, {vr(RW+i*4,4)} offset:{1024*i}")
    A("s_waitcnt vmcnt(0) lgkmcnt(0)\ns_barrier")
    for i in range(15): A(f"ds_write_b128 v6, {vr(RW+(15+i)*4,4)} offset:{1024*i}")
    A("s_waitcnt lgkmcnt(0)\ns_barrier")
    A(f"s_or_b32 s3, s2, s4\ns_cmp_lg_u32 s3, 0\ns_cbranch_scc1 K2_LEND\nv_lshlrev_b32 v5, 7, v1\nv_add_u32 v5, {WS_FP + 160*128:#x}, v5")
    poll("K2_PE0", "v5", "v6")
    A("v_add_u32 v5, 4096, v5")
    poll("K2_PE1", "v5", "v6")
    A("v_mov_b32 v6, 0\nv_mov_b32 v7, s54\nglobal_store_dword v6, v7, s[6:7] sc1\nK2_LEND:")
    finish()

    A(f"K2_COMPP:\ns_waitcnt lgkmcnt(0)\ns_add_u32 s54, s54, {TAG_INC:#x}")
    A("K2_COMP:")
    A(f"""
    v_mov_b32 v2, {K1_CNT}
    v_mov_b32 v3, 1
    v_mov_b32 v13, s54
    s_mov_b64 exec, 1
    ds_add_u32 v2, v3
    s_mov_b64 exec, -1
    """)
    stamp(3)
    map2()
    A(f"""
    v_lshrrev_b32 v5, 2, v1
    v_and_b32 v6, 7, v5
    v_and_b32 v7, 3, v1
    v_lshlrev_b32 v5, 8, v5
    v_lshl_add_u32 v5, v7, 3, v5
    v_add_u32 v5, {XS}, v5
    s_lshl_b32 s25, s18, 2
    """)
    for a_ in range(4): A(f"s_add_u32 s26, s25, {a_}\nv_xor_b32 v7, s26, v6\nv_lshl_add_u32 v{8+a_}, v7, 5, v5")
    A(f"s_mul_i32 s25, s19, 7168\ns_add_u32 s25, s25, {WB + WSL}\nv_add_u32 v12, s25, v4")
    ACC = 16; SETS = [128, 172]
    srd(8, 94, 2048 * 640 * 2)
    A(f"""
    v_mov_b32 v216, 0x3f803f80
    v_mov_b32 v217, 0x3f803f80
    v_mov_b32 v218, 0x3f803f80
    v_mov_b32 v219, 0x3f803f80
    s_mov_b32 s33, {XS}
    s_mov_b32 s34, {WSL}
    s_mov_b32 s27, 0
    s_mov_b32 s28, 1
    s_cmp_lt_u32 s2, 160
    s_cselect_b32 s20, s57, s2
    s_lshl_b32 s20, s20, 7
    s_add_u32 s20, s20, {WS_FP:#x}
    v_and_b32 v14, 31, v1
    v_lshlrev_b32 v14, 2, v14
    v_lshrrev_b32 v5, 5, v1
    v_mul_u32_u24 v5, {WS_HR2 - WS_FP:#x}, v5
    v_add_u32 v14, v14, v5
    s_waitcnt vmcnt(0)
    s_mov_b64 exec, 1
    ds_add_rtn_u32 v5, v2, v3 offset:4
    s_mov_b64 exec, -1
    s_waitcnt lgkmcnt(0)
    v_readfirstlane_b32 s21, v5
    s_cmp_lg_u32 s21, 3
    s_cbranch_scc1 K2_NOFLAG
    buffer_store_dword v13, v14, s[12:15], s20 offen sc1
    K2_NOFLAG:
    """)
    stamp(4)
    for i in range(0, 112, 2): A(f"v_mov_b64 {vr(ACC+i,2)}, 0")
    def reads(st, ks, stats):
        b = SETS[st]
        xo = [f"ds_read_b64_tr_b16 {vr(b+4*a_+2*hh,2)}, v{8+a_} offset:{ks*8192 + hh*4096}" for a_ in range(4) for hh in range(2)]
        wo = [] if stats else [f"ds_read_b128 {vr(b+16+4*w,4)}, v12 offset:{ks*14336 + w*1024}" for w in range(7)]
        return wo[:1] + xo + wo[1:]
    def mf(st, stats):
        b = SETS[st]
        if stats:
            return [f"v_mfma_f32_16x16x32_bf16 {vr(ACC+4*a_,4)}, {vr(b+4*a_,4)}, {vr(b+4*a_,4)}, {vr(ACC+4*a_,4)}" for a_ in range(4)] + \
                   [f"v_mfma_f32_16x16x32_bf16 {vr(ACC+16+4*a_,4)}, v[216:219], {vr(b+4*a_,4)}, {vr(ACC+16+4*a_,4)}" for a_ in range(4)]
        return [f"v_mfma_f32_16x16x32_bf16 {vr(ACC+(w*4+a_)*4,4)}, {vr(b+16+4*w,4)}, {vr(b+4*a_,4)}, {vr(ACC+(w*4+a_)*4,4)}" for w in range(7) for a_ in range(4)]
    A(f"""
    s_lshr_b32 s20, s17, 1
    s_mul_i32 s20, s20, 7
    s_and_b32 s21, s17, 1
    s_lshl_b32 s22, s21, 2
    s_add_u32 s22, s22, s20
    s_lshl_b32 s23, s16, 3
    s_lshl_b32 s24, s18, 2
    s_add_u32 s23, s23, s24
    s_mul_i32 s23, s23, 55296
    s_add_u32 s23, s23, {WS_HF:#x}
    s_lshl_b32 s24, s19, 1
    s_add_u32 s24, s24, s22
    s_lshl_b32 s24, s24, 10
    s_add_u32 s40, s24, s23
    s_add_u32 s25, s22, 1
    s_lshl_b32 s25, s25, 10
    s_lshl_b32 s26, s19, 9
    s_add_u32 s25, s25, s26
    s_add_u32 s26, s20, 3
    s_lshl_b32 s26, s26, 10
    s_lshl_b32 s29, s21, 9
    s_add_u32 s26, s26, s29
    s_cmp_eq_u32 s17, 15
    s_cselect_b32 s25, s26, s25
    s_add_u32 s41, s25, s23
    s_add_u32 s26, s26, s23
    s_lshl_b32 s29, s19, 8
    s_add_u32 s42, s26, s29
    s_cmp_eq_u32 s17, 15
    s_cselect_b32 s42, 0x40000000, s42
    v_and_b32 v5, 31, v1
    v_lshlrev_b32 v5, 4, v5
    v_lshrrev_b32 v6, 5, v1
    v_mul_u32_u24 v6, 55296, v6
    v_add_u32 v220, v5, v6
    v_and_b32 v7, 15, v1
    v_lshl_add_u32 v7, v7, 4, v6
    v_bfe_u32 v5, v1, 4, 1
    v_mul_u32_u24 v5, 110592, v5
    v_add_u32 v221, v7, v5
    """)
    A("s_barrier")
    stamp(5)
    for o in reads(0, 0, False): A(o)
    A("s_cmp_eq_u32 s17, 15\ns_cselect_b32 s29, s19, 0\ns_cmp_eq_u32 s29, 1\ns_cbranch_scc1 K2_SLOOP")
    def weave(m, others):
        n = len(m); k = len(others); idx = 0
        for t, x in enumerate(m):
            A(x)
            want = (k * (t + 1) + n - 1) // n if k > n else min(k, t + 1)
            while idx < want: A(others[idx]); idx += 1
        while idx < k: A(others[idx]); idx += 1
    def loop(label, stats, tail=None):
        A(f".p2align 3\n{label}:\ns_waitcnt lgkmcnt(0)\ns_add_u32 s27, s27, 1")
        adv = ["s_add_u32 s28, s28, 1\ns_cmp_eq_u32 s28, 3",
               f"s_cselect_b32 s30, {(-2*XS) & 0xffffffff:#x}, s33", f"s_cselect_b32 s31, {(-2*WSL) & 0xffffffff:#x}, s34",
               "s_cselect_b32 s28, 0, s28\nv_add_u32 v8, s30, v8", "v_add_u32 v9, s30, v9\nv_add_u32 v10, s30, v10",
               "v_add_u32 v11, s30, v11\nv_add_u32 v12, s31, v12"]
        weave(mf(0, stats), reads(1, 1, stats) + adv)
        A(f"s_waitcnt lgkmcnt(0)\ns_cmp_lt_u32 s27, 10\ns_cbranch_scc0 {label}_T\ns_barrier")
        weave(mf(1, stats), reads(0, 0, stats))
        A(f"s_branch {label}\n{label}_T:\ns_barrier")
        if tail: tail()
        else:
            for x in mf(1, stats): A(x)
    acc = lambda w, a_: ACC + (w * 4 + a_) * 4
    T = 128
    def prod(w, a_, o):
        g, u = acc(w, a_), acc(w + 3, a_)
        return [f"v_pk_mul_f32 {vr(g,2)}, {vr(g,2)}, {vr(u,2)}", f"v_pk_mul_f32 {vr(g+2,2)}, {vr(g+2,2)}, {vr(u+2,2)}",
                f"v_cvt_pk_bf16_f32 v{o}, v{g}, v{g+1}", f"v_cvt_pk_bf16_f32 v{o+1}, v{g+2}, v{g+3}"]
    def tail():
        b = SETS[1]
        one = lambda w, a_: f"v_mfma_f32_16x16x32_bf16 {vr(acc(w,a_),4)}, {vr(b+16+4*w,4)}, {vr(b+4*a_,4)}, {vr(acc(w,a_),4)}"
        groups = [[(0, a_), (3, a_), (1, a_), (4, a_)] for a_ in range(4)] + [[(2, 0), (5, 0), (2, 1), (5, 1)], [(2, 2), (5, 2), (2, 3), (5, 3)], [(6, a_) for a_ in range(4)]]
        def post(gi):
            if gi < 4:
                return prod(0, gi, T + 4 * gi) + prod(1, gi, T + 4 * gi + 2) + [f"buffer_store_dwordx4 {vr(T+4*gi,4)}, v4, s[12:15], s40 offen sc1\ns_add_u32 s40, s40, 55296"]
            if gi < 6:
                a0 = 2 * (gi - 4); o = T + 16 + 2 * a0
                return prod(2, a0, o) + prod(2, a0 + 1, o + 2) + ["s_nop 1", f"v_permlane32_swap_b32 v{o}, v{o+2}", f"v_permlane32_swap_b32 v{o+1}, v{o+3}",
                        f"buffer_store_dwordx4 {vr(o,4)}, v220, s[12:15], s41 offen sc1\ns_add_u32 s41, s41, 110592"]
            ops = []
            for a_ in (0, 2):
                x, y = acc(6, a_), acc(6, a_ + 1)
                ops += [f"v_permlane32_swap_b32 v{x+e}, v{y+e}" for e in range(4)]
            for a_ in (0, 2):
                x, y = acc(6, a_), acc(6, a_ + 1)
                ops += [f"v_pk_mul_f32 {vr(x,2)}, {vr(x,2)}, {vr(y,2)}", f"v_pk_mul_f32 {vr(x+2,2)}, {vr(x+2,2)}, {vr(y+2,2)}",
                        f"v_cvt_pk_bf16_f32 v{T+24+a_}, v{x}, v{x+1}", f"v_cvt_pk_bf16_f32 v{T+25+a_}, v{x+2}, v{x+3}"]
            return ops + ["s_nop 1", f"v_permlane16_swap_b32 v{T+24}, v{T+26}", f"v_permlane16_swap_b32 v{T+25}, v{T+27}",
                          f"buffer_store_dwordx4 {vr(T+24,4)}, v221, s[12:15], s42 offen sc1"]
        pend = []
        for gi, g in enumerate(groups):
            if gi >= 3: pend += post(gi - 3)
            for w, a_ in g:
                A(one(w, a_))
                for _ in range(2):
                    if pend: A(pend.pop(0))
        for gi in range(4, 7): pend += post(gi)
        for o in pend: A(o)
    loop("K2_LOOP", False, tail)
    stamp(6)
    A("K2_FIN:")
    if B11: A("s_barrier")
    stamp(7)
    AC2 = 16; WS2 = [56, 76, 168]; HB = 96; DH = E("DH", 6); HR = 144
    A(f"""
    v_and_b32 v2, {(1 << (FSH - 2)) - 1}, v1
    v_lshlrev_b32 v5, 2, v2
    v_and_b32 v2, 31, v1
    v_lshlrev_b32 v6, {FSH}, v2
    s_lshl_b32 s20, s16, 1
    s_add_u32 s20, s20, s18
    s_lshl_b32 s20, s20, 5
    s_lshl_b32 s21, s17, 1
    s_add_u32 s20, s20, s21
    s_add_u32 s20, s20, s19
    s_lshl_b32 s20, s20, {FSH}
    s_add_u32 s20, s20, {WS_FH:#x}
    s_lshl_b32 s21, s36, {FSH + 5}
    s_add_u32 s21, s21, {WS_FH:#x}
    v_mov_b32 v7, s54
    s_lshl_b32 s22, s36, 2
    s_add_u32 s22, s22, s4
    s_mul_i32 s23, s22, 55296
    s_xor_b32 s24, s22, 1
    s_mul_i32 s24, s24, 55296
    v_add_u32 v8, s23, v4
    v_add_u32 v9, s24, v4
    s_lshl_b32 s23, s19, 10
    s_add_u32 s23, s23, {WS_HF:#x}
    s_mul_i32 s24, s19, 5120
    v_add_u32 v10, s24, v4
    v_add_u32 v11, 61440, v10
    v_add_u32 v12, 122880, v10
    v_and_b32 v2, 15, v1
    v_lshrrev_b32 v3, 4, v1
    v_lshrrev_b32 v14, 2, v1
    v_lshlrev_b32 v14, 7, v14
    v_and_b32 v13, 3, v1
    v_lshl_add_u32 v14, v13, 3, v14
    s_lshl_b32 s24, s4, 5
    s_add_u32 s24, s24, {RES_LDS}
    v_add_u32 v14, s24, v14
    v_lshlrev_b32 v13, 2, v2
    s_lshl_b32 s22, s22, 4
    s_lshl_b32 s25, s22, 2
    s_add_u32 s25, s25, {WS_R2:#x}
    s_mul_i32 s26, s22, 1280
    s_mul_i32 s27, s37, 160
    s_add_u32 s26, s26, s27
    v_mul_u32_u24 v15, 1280, v2
    v_lshl_add_u32 v165, v3, 3, v15
    v_lshrrev_b32 v2, 1, v3
    v_lshl_add_u32 v15, v2, 4, v15
    v_and_b32 v2, 1, v3
    v_lshl_add_u32 v15, v2, 5, v15
    s_mul_i32 s27, s4, 5120
    s_add_u32 s27, s27, {24*5120}
    s_xor_b32 s28, s4, 1
    s_mul_i32 s28, s28, 5120
    s_add_u32 s28, s28, {24*5120}
    v_add_u32 v166, s27, v4
    v_add_u32 v167, s28, v4
    """)
    for i in range(0, 40, 2): A(f"v_mov_b64 {vr(AC2+i,2)}, 0")
    A("s_waitcnt vmcnt(0)\nbuffer_store_dword v7, v5, s[12:15], s20 offen sc1")
    stamp(8)
    def wread(n):
        off = (2 * n if n < 15 else 2 * (n - 15)) * 5120
        return [f"ds_read_b128 {vr(WS2[n%3]+4*t,4)}, v{10 + off // 61440} offset:{off % 61440 + 1024*t}" for t in range(5)]
    A("s_barrier")
    stamp(9)
    for o in wread(0) + wread(1): A(o)
    if E("OWNACK", 1): A("s_waitcnt vmcnt(0)")
    poll("K2_POLL", "v6", "v3", soff="s21", slp=2)
    stamp(10)
    def hload(n):
        b = HB + (n % DH) * 8
        return [f"buffer_load_dwordx4 {vr(b,4)}, v8, s[12:15], s23 offen sc1", f"buffer_load_dwordx4 {vr(b+4,4)}, v9, s[12:15], s23 offen sc1", "s_add_u32 s23, s23, 2048"]
    A("buffer_load_dword v164, v13, s[12:15], s25 offen sc1")
    for n in range(DH):
        for o in hload(n): A(o)
    for n in range(27):
        A(f"s_waitcnt vmcnt({2 * (min(26, n + DH - 1) - n)}) lgkmcnt({5 if n < 26 else 0})")
        b = HB + (n % DH) * 8
        m = [f"v_mfma_f32_16x16x32_bf16 {vr(AC2+(a_*5+t)*4,4)}, {vr(WS2[n%3]+4*t,4)}, {vr(b+4*a_,4)}, {vr(AC2+(a_*5+t)*4,4)}" for a_ in (1, 0) for t in range(5)]
        oth = wread(n + 2) if n < 25 else []
        if n == 25: oth = [f"ds_read_b64_tr_b16 {vr(188+2*t,2)}, v14 offset:{2048*t}" for t in range(5)]
        if n == 26:
            for t in range(5):
                oth += [f"v_lshlrev_b32 v{HR+4*t}, 16, v{188+2*t}\nv_and_b32 v{HR+4*t+1}, 0xffff0000, v{188+2*t}",
                        f"v_lshlrev_b32 v{HR+4*t+2}, 16, v{189+2*t}\nv_and_b32 v{HR+4*t+3}, 0xffff0000, v{189+2*t}"]
        if n in (4, 10, 19): oth = [None] * 3 + ["s_waitcnt lgkmcnt(0)\ns_barrier"] + oth
        for k, x in enumerate(m):
            A(x)
            if k < len(oth) and oth[k]: A(oth[k])
        if n + DH < 27:
            for o in hload(n + DH): A(o)
    stamp(11)
    A("s_nop 2")
    for t in range(5): A(f"ds_write_b128 v167, {vr(AC2+(5+t)*4,4)} offset:{1024*t}")
    A("s_waitcnt lgkmcnt(0)\ns_barrier")
    R = 56
    for t in range(5): A(f"ds_read_b128 {vr(R+4*t,4)}, v166 offset:{1024*t}")
    for t in range(5):
        A(f"s_waitcnt lgkmcnt({4-t})")
        for e in (0, 2): A(f"v_pk_add_f32 {vr(AC2+4*t+e,2)}, {vr(AC2+4*t+e,2)}, {vr(R+4*t+e,2)}")
        for e in (0, 2): A(f"v_pk_fma_f32 {vr(AC2+4*t+e,2)}, {vr(AC2+4*t+e,2)}, v[164:165], {vr(HR+4*t+e,2)} op_sel_hi:[1,0,1]")
        A(f"v_cvt_pk_bf16_f32 v{80+2*t}, v{AC2+4*t}, v{AC2+4*t+1}\nv_cvt_pk_bf16_f32 v{80+2*t+1}, v{AC2+4*t+2}, v{AC2+4*t+3}")
        if t in (1, 3):
            o = 80 + 2 * (t - 1)
            A(f"s_nop 1\nv_permlane16_swap_b32 v{o}, v{o+2}\nv_permlane16_swap_b32 v{o+1}, v{o+3}\nbuffer_store_dwordx4 {vr(o,4)}, v15, s[8:11], s26 offen offset:{32*(t-1)}")
    A("buffer_store_dwordx2 v[88:89], v165, s[8:11], s26 offen offset:128")
    finish()
    loop("K2_SLOOP", True)
    A(f"""
    v_and_b32 v5, 3, v1
    v_bfe_u32 v6, v1, 2, 2
    v_lshrrev_b32 v7, 4, v1
    v_cmp_eq_u32 s[20:21], 1, v5
    v_cmp_eq_u32 s[22:23], 2, v5
    v_cmp_eq_u32 s[24:25], 3, v5
    v_cmp_eq_u32 s[26:27], v6, v7
    v_and_b32 v5, 15, v1
    v_lshlrev_b32 v5, 2, v5
    s_lshl_b32 s28, s16, 9
    s_lshl_b32 s29, s18, 8
    s_add_u32 s28, s28, s29
    s_add_u32 s28, s28, {WS_R2:#x}
    """)
    for a_ in range(4):
        g = ACC + 4 * a_; s_ = ACC + 16 + 4 * a_
        A(f"""
        v_cndmask_b32 v{g}, v{g}, v{g+1}, s[20:21]
        v_cndmask_b32 v{g}, v{g}, v{g+2}, s[22:23]
        v_cndmask_b32 v{g}, v{g}, v{g+3}, s[24:25]
        v_mul_f32 v{s_}, 0x3acccccd, v{s_}
        v_mul_f32 v{g}, 0x3acccccd, v{g}
        v_fma_f32 v{g}, -v{s_}, v{s_}, v{g}
        v_max_f32 v{g}, 0, v{g}
        v_cvt_pk_bf16_f32 v{g}, v{g}, v{g}
        v_lshlrev_b32 v{g}, 16, v{g}
        v_add_f32 v{g}, 0x3727c5ac, v{g}
        v_cvt_pk_bf16_f32 v{g}, v{g}, v{g}
        v_lshlrev_b32 v{g}, 16, v{g}
        v_sqrt_f32 v{g}, v{g}
        s_nop 0
        v_cvt_pk_bf16_f32 v{g}, v{g}, v{g}
        v_lshlrev_b32 v{g}, 16, v{g}
        v_mul_f32 v{g}, v{g}, v{g}
        v_rcp_f32 v{g}, v{g}
        """)
    A("s_mov_b64 exec, s[26:27]")
    for a_ in range(4): A(f"buffer_store_dword v{ACC+4*a_}, v5, s[12:15], s28 offen offset:{64*a_} sc1")
    A("s_mov_b64 exec, -1\ns_branch K2_FIN\nK_END:\ns_endpgm")

def main(out):
    gen()
    hdr = open("sequential_preLN__ssm_conv_s4__glu_gated_bilinear__prompt.s.ref").read().split("; Override launch")[0]
    s = hdr + f"; @launch grid=(256,1,1) block=(512,1,1) lds={LDS_SIZE}\n"
    s += f'.amdgcn_target "amdgcn-amd-amdhsa--gfx950"\n.text\n.globl {KNAME}\n.p2align 8\n.type {KNAME},@function\n{KNAME}:\n'
    s += A.text().replace("CNTADDR", str(K1_CNT)).replace("XGN", "0" if E("NOXG", 0) else "5").replace("XGLIM", "0" if E("NOXG", 0) else "0x40000") + "CODE_END:\n"
    s += f""".section .rodata,"a"
.p2align 6
.amdhsa_kernel {KNAME}
  .amdhsa_next_free_vgpr 252
  .amdhsa_next_free_sgpr 96
  .amdhsa_accum_offset 252
  .amdhsa_group_segment_fixed_size 0
  .amdhsa_kernarg_size 128
  .amdhsa_user_sgpr_count 2
  .amdhsa_user_sgpr_kernarg_segment_ptr 1
  .amdhsa_system_sgpr_workgroup_id_x 1
.end_amdhsa_kernel
"""
    open(out, "w").write(s)
if __name__ == "__main__":
    main(sys.argv[1] if len(sys.argv) > 1 else "f.s")
```

```python
import sys, os
E = lambda k, d: int(os.environ.get(k, d))
KNAME = "sequential_preLN__ssm_conv_s4__glu_gated_bilinear__prompt_kernel"
WS_ST    = 0x1000
WS_R2    = 0x8000
WS_HT    = 0x10000
WS_W1P   = 0x290000
WS_WDP   = 0x6F0000
WS_HF    = int(os.environ.get('HFOFF', '0x910000'), 0)
WS_PROF  = 0xFE0000
WS_XG    = 0x1100000
WS_FH    = 0x1840000
WS_FP    = 0x1860000
WS_HR1   = 0x1870000
WS_HR2   = 0x1878000
WS_SIZE  = 0x1900000
PROF = E("PROF", 0)
NST = 14
PROF_WAVES = 8
PROF_RANGES = [(0, [(0, 160, 0, 4, NST), (0, 160, 4, 8, NST), (160, 214, 0, 4, NST), (160, 214, 4, 8, NST), (214, 250, 0, 4, NST), (214, 250, 4, 8, NST)])]

class Asm:
    def __init__(self): self.l = []
    def __call__(self, s):
        for x in s.split("\n"):
            x = x.strip()
            if x: self.l.append(("" if x.endswith(":") else "    ") + x)
    def text(self): return "\n".join(self.l) + "\n"
def vr(a, n=1): return f"v{a}" if n == 1 else f"v[{a}:{a+n-1}]"
def sr(a, n=1): return f"s{a}" if n == 1 else f"s[{a}:{a+n-1}]"
A = Asm()
DIAG = os.environ.get("DIAG")
_fin = [0]
def stamp(i, wait=True):
    if PROF or (DIAG and str(i) in DIAG.split(",")[:2]):
        A(f"{'s_memrealtime' if DIAG else 's_memtime'} s[{64+2*i}:{65+2*i}]")
        if wait: A("s_waitcnt lgkmcnt(0)")
def finish():
    if DIAG:
        a, b, mult, wg, wv = map(int, DIAG.split(","))
        _fin[0] += 1; n = _fin[0]
        A(f"""
        s_waitcnt vmcnt(0)
        s_memrealtime s[{64+2*(NST-1)}:{65+2*(NST-1)}]
        s_cmp_lg_u32 s2, {wg}
        s_cbranch_scc1 DG_E{n}
        s_cmp_lg_u32 s60, {wv}
        s_cbranch_scc1 DG_E{n}
        s_waitcnt lgkmcnt(0)
        s_sub_u32 s20, s{64+2*b}, s{64+2*a}
        s_min_u32 s20, s20, 5000
        s_mul_i32 s20, s20, {mult}
        s_add_u32 s20, s20, s{64+2*(NST-1)}
        DG_L{n}:
        s_memrealtime s[22:23]
        s_waitcnt lgkmcnt(0)
        s_sub_u32 s21, s20, s22
        s_cmp_gt_i32 s21, 0
        s_cbranch_scc1 DG_L{n}
        DG_E{n}:
        """)
    if PROF:
        A("s_waitcnt vmcnt(0)")
        stamp(NST - 1)
        A(f"s_lshl_b32 s62, s2, 3\ns_add_u32 s62, s62, s60\ns_lshl_b32 s62, s62, 6\ns_add_u32 s62, s62, {WS_PROF:#x}\nv_mov_b32 v1, 0")
        for i in range(NST):
            A(f"v_mov_b32 v0, s{64+2*i}\nbuffer_store_dword v0, v1, s[12:15], s62 offen offset:{4*i}")
    A("s_endpgm")
def srd(d, base, size):
    A(f"s_mov_b32 s{d}, s{base}\ns_mov_b32 s{d+1}, s{base+1}\ns_mov_b32 s{d+2}, {size:#x}\ns_mov_b32 s{d+3}, 0x00020000")
def cmul(d, a, b):
    A(f"v_pk_mul_f32 {vr(d,2)}, {vr(a,2)}, {vr(b,2)} op_sel_hi:[1,0]")
    A(f"v_pk_fma_f32 {vr(d,2)}, {vr(a,2)}, {vr(b,2)}, {vr(d,2)} op_sel:[1,1,0] op_sel_hi:[0,1,1] neg_lo:[1,0,0]")
def poll(lbl, va, vt, soff="0", slp=2):
    A(f"""
    s_mov_b32 s52, 0
    {lbl}:
    buffer_load_dword {vt}, {va}, s[12:15], {soff} offen sc1
    s_add_u32 s52, s52, 1
    s_waitcnt vmcnt(0)
    v_cmp_ne_u32 vcc, s54, {vt}
    s_cmp_lt_u32 s52, 0x40000
    s_cbranch_vccz {lbl}_D
    s_mov_b64 exec, vcc
    s_sleep {slp}
    s_cbranch_scc1 {lbl}
    {lbl}_D:
    s_mov_b64 exec, -1
    """)

def q_of(c, tau):
    base = (c >> 1) * 7
    if c == 15: return {0: (base + 4, 0), 1: (base + 4, 1), 2: (base + 3, 1)}[tau]
    o = base + (4 if (c & 1) else 0)
    if tau == 3: return (base + 3, c & 1)
    return {0: (o, 0), 1: (o, 1), 2: (o + 1, 0), 6: (o + 1, 1), 4: (o + 2, 0), 5: (o + 2, 1)}[tau]
Q_TILES = {}
for phi in range(108):
    q, hf = q_of(phi // 7, phi % 7)
    Q_TILES.setdefault(q, [None, None])[hf] = phi

TAB_STRIDE = 272
TAB_HI = 32 * TAB_STRIDE
K1_TAB = 2 * TAB_HI
K1_CH = K1_TAB
K1_TB = 4 * K1_TAB
KC1 = 2240
K1_BASE = 4608
K1_UREV = 8 * K1_TAB
K1_SCR = K1_UREV + 4 * 4608
K1_R = K1_SCR + 512
K1_CNT = K1_R + 4 * 1280
K1_SCR2 = TAB_HI + 29 * TAB_STRIDE + 48
LDS_SIZE = 163840
assert K1_CNT + 512 == LDS_SIZE
TAG_INC = 0x9E3779B9
HI_ROWS = [(0, 4), (1, 5), (2, 6), (3, 7), (4, 8), (256, 260), (258, 262), (260, 264),
           (512, 768), (516, 772), (520, 776), (1032, 1288), (1544, 1800)]
def hi_rows_of(e):
    return [(r & 3) + 8 * (r >> 2) + 4 * h for r, p in enumerate(HI_ROWS) for h, ee in enumerate(p) if ee == e]
XS = 16384; WSL = 28672; WB = 3 * XS; G1_END = WB + 3 * WSL; RES_LDS = 153600
FSH = 6

def map2():
    A("""
    s_and_b32 s3, s2, 7
    s_lshr_b32 s5, s2, 3
    s_lshr_b32 s36, s3, 1
    s_lshl_b32 s36, s36, 3
    s_and_b32 s37, s5, 7
    s_add_u32 s36, s36, s37
    s_and_b32 s16, s3, 1
    s_lshl_b32 s38, s16, 2
    s_lshl_b32 s16, s16, 3
    s_add_u32 s16, s16, s37
    s_lshr_b32 s18, s5, 3
    s_add_u32 s37, s38, s18
    s_lshr_b32 s17, s3, 1
    s_lshl_b32 s17, s17, 2
    s_add_u32 s17, s17, s18
    s_lshr_b32 s18, s4, 1
    s_and_b32 s19, s4, 1
    v_lshlrev_b32 v4, 4, v1
    """)


def rowaddr(t, va, vb):
    A(f"""
    s_lshr_b32 s42, s{t}, 8
    s_lshl_b32 s42, s42, 9
    s_bfe_u32 s43, s{t}, 0x40002
    s_lshl_b32 s43, s43, 5
    s_add_u32 s42, s42, s43
    s_bfe_u32 s43, s{t}, 0x20006
    s_lshl_b32 s43, s43, 1
    s_add_u32 s42, s42, s43
    s_and_b32 s43, s{t}, 3
    s_lshl_b32 s43, s43, 3
    s_add_u32 s42, s42, s43
    v_lshrrev_b32 v7, 5, v1
    v_add_u32 v7, s42, v7
    v_mul_u32_u24 v7, 1280, v7
    v_and_b32 {vb}, 31, v1
    v_lshl_add_u32 {va}, {vb}, 4, v7
    v_lshl_add_u32 {vb}, {vb}, 3, v7
    """)
def rowload(b, va, vb):
    A(f"global_load_dwordx4 {vr(b,4)}, {va}, s[16:17]\nglobal_load_dwordx4 {vr(b+4,4)}, {va}, s[16:17] offset:512\nglobal_load_dwordx2 {vr(b+8,2)}, {vb}, s[16:17] offset:1024")
def rowstats(soff):
    A("v_mov_b32 v60, 0\nv_mov_b32 v61, 0\nv_mov_b32 v62, 0x3f803f80\nv_lshrrev_b32 v63, 5, v1\nv_lshlrev_b32 v63, 3, v63")
    for r in range(48, 58): A(f"v_dot2c_f32_bf16 v60, v62, v{r}\nv_dot2c_f32_bf16 v61, v{r}, v{r}")
    A("s_nop 2")
    for rot in (8, 4, 2, 1):
        A(f"v_add_f32_dpp v60, v60, v60 row_ror:{rot} row_mask:0xf bank_mask:0xf\nv_add_f32_dpp v61, v61, v61 row_ror:{rot} row_mask:0xf bank_mask:0xf\ns_nop 0")
    A(f"""
    v_mov_b32 v58, v60
    v_mov_b32 v59, v61
    s_nop 1
    v_permlane16_swap_b32 v60, v58
    v_permlane16_swap_b32 v61, v59
    s_nop 0
    v_pk_add_f32 v[60:61], v[60:61], v[58:59]
    v_mul_f32 v60, 0x3acccccd, v60
    v_mul_f32 v61, 0x3acccccd, v61
    v_fma_f32 v61, -v60, v60, v61
    v_max_f32 v61, 0, v61
    v_cvt_pk_bf16_f32 v61, v61, v61
    v_lshlrev_b32 v61, 16, v61
    v_add_f32 v61, 0x3727c5ac, v61
    v_cvt_pk_bf16_f32 v61, v61, v61
    v_lshlrev_b32 v61, 16, v61
    v_sqrt_f32 v61, v61
    s_nop 0
    v_cvt_pk_bf16_f32 v60, v60, v61
    v_mov_b32 v61, s53
    buffer_store_dwordx2 v[60:61], v63, s[12:15], {soff} offen sc1
    """)
NCW = E("NCW", 2)
NT0 = 160 * NCW
NT1 = NT0 + 216
WSOFF = int(os.environ.get("WSOFF", "0"), 0)
WSOFF_CODE = f"s_add_u32 s6, s6, {WSOFF:#x}\ns_addc_u32 s7, s7, 0\ns_cmp_eq_u32 s61, 0" if WSOFF else ""
def gen():
    G = 16; P = 10
    A("s_cmp_ge_u32 s2, 256\ns_cbranch_scc1 K_END")
    stamp(0, False)
    A(f"""
    s_load_dwordx16 s[16:31], s[0:1], 0
    s_load_dwordx2 s[32:33], s[0:1], 64
    s_load_dwordx4 s[36:39], s[0:1], 80
    s_load_dwordx4 s[92:95], s[0:1], 96
    s_load_dwordx2 s[6:7], s[0:1], 120
    v_lshrrev_b32 v2, 6, v0
    v_and_b32 v1, 63, v0
    v_readfirstlane_b32 s60, v2
    v_and_b32 v0, 255, v0
    s_getpc_b64 s[62:63]
    K1_PC:
    s_lshr_b32 s40, s2, 3
    s_and_b32 s40, s40, 3
    s_lshl_b32 s40, s40, 13
    v_lshl_add_u32 v8, v1, 7, s40
    v_min_u32 v8, CODE_END - K1_PC - 4, v8
    s_cmp_lg_u32 s60, 3
    s_cbranch_scc1 K1_NOPF
    s_cmp_lt_u32 s2, {E('PFMIN', 160)}
    s_cbranch_scc1 K1_NOPF2
    global_load_dword v9, v8, s[62:63]
    K1_NOPF2:
    v_mov_b32 v8, {K1_CNT}
    v_mov_b64 v[10:11], 0
    ds_write_b64 v8, v[10:11]
    K1_NOPF:
    s_and_b32 s4, s60, 3
    s_lshr_b32 s61, s60, 2
    s_and_b32 s40, s2, 7
    s_lshr_b32 s41, s2, 3
    s_mul_i32 s57, s40, 20
    s_add_u32 s57, s57, s41
    s_lshl_b32 s5, s57, 2
    s_add_u32 s5, s5, s4
    s_lshl_b32 s43, s5, 8
    v_lshl_add_u32 v6, v1, 2, s43
    s_lshl_b32 s3, s57, 3
    s_mul_i32 s55, s4, {K1_CH}
    v_mul_u32_u24 v238, 10240, v0
    v_add_u32 v238, s3, v238
    s_mul_i32 s46, s41, 103
    v_lshrrev_b32 v2, 1, v0
    v_min_u32 v2, 102, v2
    v_add_u32 v2, s46, v2
    v_min_u32 v2, 2047, v2
    v_mul_u32_u24 v2, 1280, v2
    v_and_b32 v3, 1, v0
    v_mul_u32_u24 v3, 156, v3
    s_mul_i32 s46, s40, 160
    v_add3_u32 v2, v2, v3, s46
    s_cmp_ge_u32 s2, 160
    s_cbranch_scc1 K1_PREP
    s_mul_i32 s59, s60, 160
    s_add_u32 s59, s59, s2
    """)
    rowaddr(59, "v4", "v5")
    A(f"""
    s_cmp_lt_u32 s60, {NCW}
    s_waitcnt lgkmcnt(0)
    s_cbranch_scc0 K1_NOS
    """)
    rowload(48, "v4", "v5")
    A("""
    K1_NOS:
    s_cmp_eq_u32 s61, 0
    s_cbranch_scc1 K1_NOT
    global_load_dword v242, v2, s[16:17]
    K1_NOT:
    """)
    for i in range(6): A(f"global_load_dword v{P+i}, v6, {sr(18+2*i,2)}")
    A("""
    s_load_dword s54, s[6:7], 0
    s_load_dwordx2 s[42:43], s[30:31], s3
    s_load_dwordx2 s[44:45], s[32:33], s3
    s_cbranch_scc1 K1_C
    """)
    XR = 32
    srd(12, 6, WS_SIZE)
    A(f"""
    v_lshlrev_b32 v235, 4, v0
    v_sub_u32 v235, {K1_UREV + 4080}, v235
    v_lshlrev_b32 v236, 5, v0
    v_add_u32 v236, {K1_BASE}, v236
    v_add_u32 v237, {2*K1_CH}, v236
    s_lshl_b32 s58, s4, 12
    s_add_u32 s58, s58, {WS_ST:#x}
    v_lshlrev_b32 v5, 4, v1
    v_add_u32 v239, 5120, v238
    s_waitcnt vmcnt(0)
    """)
    def gather(k): A(f"global_load_dwordx2 {vr(XR+2*k,2)}, v{238 + k//4}, s[16:17] offset:{(k%4)*1280}")
    NG0 = E("NG0", 2)
    for k in range(NG0): gather(k)
    A("s_branch K1_C0")
    A("K1_C:")
    A(f"""
    s_mul_i32 s56, s4, 4608
    s_add_u32 s56, s56, {K1_UREV}
    s_mul_i32 s46, s4, 1280
    s_add_u32 s46, s46, {K1_R}
    s_mov_b32 m0, s46
    v_mov_b64 v[240:241], 0
    v_and_b32 v46, 31, v1
    v_lshrrev_b32 v47, 5, v1
    v_mul_u32_u24 v228, {TAB_STRIDE}, v46
    v_lshl_add_u32 v228, v47, 4, v228
    v_add_u32 v228, s55, v228
    v_lshlrev_b32 v2, 4, v46
    v_add_u32 v2, s55, v2
    v_lshl_add_u32 v229, v47, 3, v2
    v_lshl_add_u32 v230, v47, 9, v2
    v_and_b32 v2, 1, v46
    v_mul_u32_u24 v2, 640, v2
    v_and_b32 v3, 30, v46
    v_lshl_add_u32 v3, v47, 5, v3
    v_sub_u32 v2, v2, v3
    v_add_u32 v231, s46, v2
    v_lshl_add_u32 v2, v1, 3, s56
    ds_write_b64 v2, v[240:241] offset:4096
    """)
    for k in range(5): A(f"ds_write_addtid_b32 v240 offset:{256*k}")
    srd(12, 6, WS_SIZE)
    A(f"""
    v_and_b32 v2, 15, v1
    v_lshrrev_b32 v3, 4, v1
    v_add_u32 v4, 1, v2
    v_and_b32 v5, 1, v4
    v_mul_u32_u24 v5, {KC1}, v5
    v_and_b32 v4, 0xfffe, v4
    v_lshl_add_u32 v4, v4, 1, v5
    v_lshl_add_u32 v4, v3, 4, v4
    v_add_u32 v232, s55, v4
    v_add_u32 v233, 1024, v232
    v_add_u32 v239, 2048, v232
    v_lshlrev_b32 v4, 5, v2
    v_lshlrev_b32 v5, 4, v3
    v_sub_u32 v234, v5, v4
    v_add_u32 v234, {4064 - 3584}, v234
    v_add_u32 v234, s56, v234
    v_lshl_add_u32 v235, v2, 6, v5
    v_add_u32 v235, s55, v235
    v_sub_u32 v6, 15, v2
    v_lshl_add_u32 v6, v3, 2, v6
    v_and_b32 v7, 1, v6
    v_mul_u32_u24 v7, 320, v7
    v_and_b32 v6, 0xfffe, v6
    v_lshl_add_u32 v6, v6, 1, v7
    v_add3_u32 v236, v6, 4, s46
    v_lshrrev_b32 v5, 1, v3
    v_lshl_add_u32 v4, v5, 4, v4
    v_and_b32 v5, 1, v3
    v_lshl_add_u32 v237, v5, 9, v4
    v_cmp_eq_u32 s[36:37], 7, v1
    v_cmp_gt_u32 s[38:39], 2, v1
    v_cmp_eq_u32 s[48:49], 2, v1
    v_cmp_eq_u32 s[50:51], 0, v1
    v_lshl_add_u32 v4, v3, 3, v2
    s_mov_b32 s46, 0x10001
    """)
    for ty, (c, wdt) in enumerate([(-20, 7), (-19, 9)]):
        A(f"v_add_u32 v5, {c + 20}, v4\nv_min_u32 v5, 31, v5\nv_mov_b32 v6, {((1 << wdt) - 1) << 20:#x}\nv_lshrrev_b32 v6, v5, v6\nv_and_b32 v6, 0xff, v6\nv_lshl_or_b32 v6, v6, 15, v6")
        for j in range(4):
            A(f"v_lshrrev_b32 v7, {2*j}, v6\nv_and_b32 v7, s46, v7\nv_mul_u32_u24 v{244+4*ty+j}, 0x3f80, v7")
    A(f"""
    s_cmp_lt_u32 s60, {NCW}
    s_cbranch_scc0 K1_CW
    s_lshl_b32 s59, s59, 4
    s_add_u32 s59, s59, {WS_ST:#x}
    s_waitcnt vmcnt(6) lgkmcnt(0)
    s_add_u32 s53, s54, {TAG_INC:#x}
    """)
    rowstats("s59")
    A("s_waitcnt vmcnt(1)\ns_branch K1_C0\nK1_CW:\ns_waitcnt vmcnt(0)")
    A("K1_C0:")
    ACC = 96; DT = 9
    Z1, Z8, Z16, Z256 = 48, 50, 52, 54
    BB, CC = 56, 58
    T0 = 60
    H = {e: 72 + 2 * e for e in range(9)}
    CV = [90, 91, 92, 93, 94, 95]; cvi = [0]
    def put(src, rows, hi):
        t = CV[cvi[0] % len(CV)]; cvi[0] += 1
        A(f"v_cvt_pk_bf16_f32 v{t}, v{src}, {'-' if hi else ''}v{src+1}")
        for r in rows: A(f"ds_write_addtid_b32 v{t} offset:{r*TAB_STRIDE + (TAB_HI if hi else 0)}")
    A(f"""
    s_lshl_b32 s62, s4, 4
    s_mul_i32 s56, s61, {K1_TB}
    s_add_u32 s56, s56, s55
    s_mov_b32 m0, s56
    s_lshl_b32 s47, s61, 4
    s_waitcnt lgkmcnt(0)
    s_add_u32 s54, s54, {TAG_INC:#x}
    """)
    stamp(1)
    A(f"""
    s_lshr_b64 s[42:43], s[42:43], s62
    s_lshl_b32 s42, s42, 16
    v_mov_b32 v{DT}, s42
    v_mul_f32 v{DT}, 0x3fb8aa3b, v{DT}
    v_exp_f32 v{DT}, v{DT}
    v_lshrrev_b32 v{T0}, s47, v{P}
    v_lshrrev_b32 v{T0+1}, s47, v{P+1}
    v_cvt_pk_bf16_f32 v{DT}, v{DT}, v{DT}
    v_lshlrev_b32 v{DT}, 16, v{DT}
    v_lshlrev_b32 v{T0}, 16, v{T0}
    v_lshlrev_b32 v{T0+1}, 16, v{T0+1}
    v_mul_f32 v{T0}, v{T0}, v{DT}
    v_mul_f32 v{T0+1}, v{T0+1}, v{DT}
    v_mul_f32 v{T0+8}, 0x3fb8aa3b, v{T0}
    v_mul_f32 v{T0+9}, 0.15915494, v{T0+1}
    v_mul_f32 v{T0+2}, 0x41000000, v{T0+8}
    v_mul_f32 v{T0+3}, 0x41000000, v{T0+9}
    v_fract_f32 v{T0+3}, v{T0+3}
    v_exp_f32 v{T0+2}, v{T0+2}
    v_cos_f32 v{Z8}, v{T0+3}
    v_sin_f32 v{Z8+1}, v{T0+3}
    v_mov_b32 v95, 0x3f80
    .p2align 3
    ds_write_addtid_b32 v95 offset:0
    v_pk_mul_f32 {vr(Z8,2)}, {vr(Z8,2)}, {vr(T0+2,2)} op_sel_hi:[1,0]
    """)
    cmul(Z16, Z8, Z8)
    put(Z8, [1], False); put(Z16, [2], False)
    Lreg = {1: Z8, 2: Z16}
    gk = [NG0]
    def maybe_gather():
        if gk[0] < NG0 + E("NG1", 4):
            A(f"s_cbranch_scc1 K1_NG{gk[0]}")
            gather(gk[0])
            A(f"K1_NG{gk[0]}:\ns_nop 0")
            gk[0] += 1
    A("s_cmp_eq_u32 s61, 0\ns_nop 0")
    for l in range(3, 32):
        d = T0 + 2 * (l % 4); Lreg[l] = d
        cmul(d, Lreg[l-2], Z16); put(d, [l], False)
        if l in (12, 26): maybe_gather()
    A(f"""
    v_lshrrev_b32 v{BB}, s47, v{P+2}
    v_lshrrev_b32 v{BB+1}, s47, v{P+3}
    v_lshrrev_b32 v{CC}, s47, v{P+4}
    v_lshrrev_b32 v{CC+1}, s47, v{P+5}
    v_lshlrev_b32 v{BB}, 16, v{BB}
    v_lshlrev_b32 v{BB+1}, 16, v{BB+1}
    v_lshlrev_b32 v{CC}, 16, v{CC}
    v_lshlrev_b32 v{CC+1}, 16, v{CC+1}
    v_mul_f32 v{T0+4}, 0x43800000, v{T0+8}
    v_mul_f32 v{T0+5}, 0x43800000, v{T0+9}
    v_fract_f32 v{T0+9}, v{T0+9}
    v_fract_f32 v{T0+5}, v{T0+5}
    v_exp_f32 v{T0+8}, v{T0+8}
    v_exp_f32 v{T0+4}, v{T0+4}
    v_cos_f32 v{Z1}, v{T0+9}
    v_sin_f32 v{Z1+1}, v{T0+9}
    v_cos_f32 v{Z256}, v{T0+5}
    v_sin_f32 v{Z256+1}, v{T0+5}
    v_mul_f32 v{BB}, v{BB}, v{DT}
    v_mul_f32 v{BB+1}, v{BB+1}, v{DT}
    .p2align 3
    """)
    cmul(H[0], CC, BB)
    A(f"v_pk_mul_f32 {vr(Z1,2)}, {vr(Z1,2)}, {vr(T0+8,2)} op_sel_hi:[1,0]")
    A(f"v_pk_mul_f32 {vr(Z256,2)}, {vr(Z256,2)}, {vr(T0+4,2)} op_sel_hi:[1,0]")
    put(H[0], hi_rows_of(0), True)
    for e in range(1, 9):
        cmul(H[e], H[e-1], Z1); put(H[e], hi_rows_of(e), True)
        if e == 3: maybe_gather()
    cur = {e: H[e] for e in (0, 2, 4, 6, 8)}
    spare = [H[1], H[3], H[5], H[7], T0, T0 + 2]
    for blk, es in [(1, (0, 2, 4, 6, 8)), (2, (0, 4, 8)), (3, (0, 4, 8)), (4, (8,)), (5, (8,)), (6, (8,)), (7, (8,))]:
        for e in es:
            d = spare.pop(0); cmul(d, cur[e], Z256); put(d, hi_rows_of(256 * blk + e), True)
            spare.append(cur[e]); cur[e] = d
        if blk == 2: maybe_gather()
    A("s_cbranch_scc1 K1_PEND")
    stamp(12)
    A("s_mov_b32 s52, 0\ns_waitcnt lgkmcnt(0)\ns_barrier")
    for k in range(gk[0], 8): gather(k)
    A("K1_POLL:")
    for k in range(4): A(f"buffer_load_dwordx4 {vr(G+4*k,4)}, v5, s[12:15], s58 offen offset:{1024*k} sc1")
    A("s_add_u32 s52, s52, 1\ns_waitcnt vmcnt(0)")
    for k in range(8): A(f"v_xor_b32 v{48+k}, s54, v{G+2*k+1}")
    A("""
    v_or3_b32 v48, v48, v49, v50
    v_or3_b32 v51, v51, v52, v53
    v_or3_b32 v48, v48, v54, v55
    v_or_b32 v48, v48, v51
    v_cmp_ne_u32 vcc, 0, v48
    s_cmp_lt_u32 s52, 0x40000
    s_cbranch_vccz K1_GOT
    s_sleep 4
    s_cbranch_scc1 K1_POLL
    K1_GOT:
    """)
    stamp(10)
    if PROF: A("s_add_u32 s86, s64, s52")
    X = 48; RS, NB = 80, 88; U = 112; UP = 96
    for r in range(8):
        A(f"v_and_b32 v{RS+r}, 0xffff0000, v{G+2*r}\nv_rcp_f32 v{RS+r}, v{RS+r}\nv_lshlrev_b32 v{NB+r}, 16, v{G+2*r}")
    for r in range(0, 8, 2):
        A(f"v_pk_mul_f32 {vr(NB+r,2)}, {vr(NB+r,2)}, {vr(RS+r,2)} neg_lo:[1,0] neg_hi:[1,0]")
    for c in range(4):
        for r in range(8):
            src = XR + 2 * r + (c >> 1)
            A(f"v_and_b32 v{X+8*c+r}, 0xffff0000, v{src}" if c & 1 else f"v_lshlrev_b32 v{X+8*c+r}, 16, v{src}")
        for r in range(0, 8, 2): A(f"v_pk_fma_f32 {vr(U+8*c+r,2)}, {vr(X+8*c+r,2)}, {vr(RS+r,2)}, {vr(NB+r,2)}")
        for k in range(4): A(f"v_cvt_pk_bf16_f32 v{UP+4*c+k}, v{U+8*c+7-2*k}, v{U+8*c+6-2*k}")
        A(f"ds_write_b128 v235, {vr(UP+4*c,4)} offset:{c * 4608}")
    A("s_waitcnt lgkmcnt(0)\ns_barrier")
    stamp(2)
    for c in range(4):
        ba = "v236" if c < 2 else "v237"; co = (c & 1) * K1_CH
        A(f"ds_write_b128 {ba}, {vr(X+8*c,4)} offset:{co}\nds_write_b128 {ba}, {vr(X+8*c+4,4)} offset:{co+16}")
    A(f"""
    s_cmp_lg_u32 s4, 0
    s_cbranch_scc1 K1_NOBUMP
    v_and_b32 v6, 31, v1
    v_lshlrev_b32 v6, 2, v6
    v_mov_b32 v7, s54
    s_lshl_b32 s52, s2, 7
    s_add_u32 s52, s52, {WS_HR1:#x}
    buffer_store_dword v7, v6, s[12:15], s52 offen sc1
    K1_NOBUMP:
    s_waitcnt lgkmcnt(0)
    s_barrier
    s_branch K2_LOADER
    """)
    A("K1_PEND:\ns_mov_b32 m0, s55\ns_waitcnt lgkmcnt(0)")
    FA, FB = 112, 144
    def kmf(tb, first):
        for ks in range(8):
            A(f"ds_read_b128 {vr(FA+4*ks,4)}, v228 offset:{tb + TAB_HI + ks*32}\nds_read_b128 {vr(FB+4*ks,4)}, v228 offset:{tb + ks*32}")
        for ks in range(8):
            A(f"s_waitcnt lgkmcnt({14-2*ks})")
            A(f"v_mfma_f32_32x32x16_bf16 {vr(ACC,16)}, {vr(FA+4*ks,4)}, {vr(FB+4*ks,4)}, {'0' if first and ks == 0 else vr(ACC,16)}")
    kmf(0, True)
    for i in range(0, 32, 2): A(f"v_mov_b64 {vr(16+i,2)}, 0")
    stamp(12)
    A("s_barrier")
    A(f"v_add_u32 v228, {K1_TB}, v228")
    kmf(0, False)
    a = lambda r: f"v{ACC+r}"
    O = 112
    def pk(d, x, y): A(f"v_cvt_pk_bf16_f32 v{d}, {x}, {y}")
    A(f"""
    s_mov_b64 exec, 0xff
    ds_write_addtid_b32 v240
    s_mov_b64 exec, -1
    s_lshr_b64 s[44:45], s[44:45], s62
    s_lshl_b32 s44, s44, 16
    v_mov_b32 v2, s44
    v_cndmask_b32 v2, 0, v2, s[50:51]
    s_nop 4
    v_add_f32 {a(0)}, {a(0)}, v2
    v_readlane_b32 s52, {a(10)}, 63
    v_readfirstlane_b32 s53, {a(0)}
    """)
    pk(O+0, a(0), a(1)); pk(O+1, a(2), a(3)); pk(O+2, a(1), a(2)); pk(O+3, a(3), a(4))
    A(f"ds_write_b64 v229, {vr(O,2)} offset:32\nds_write_b64 v229, {vr(O+2,2)} offset:{KC1+32}")
    p, q, r_ = a(5), a(6), a(7)
    pk(O+4, p, p); pk(O+5, q, r_); pk(O+6, p, q); pk(O+7, r_, r_)
    A(f"ds_write_b64 v229, {vr(O+4,2)} offset:{32+512}\nds_write_b64 v229, {vr(O+6,2)} offset:{KC1+32+512}")
    p, q, r_ = a(8), a(9), a(10)
    pk(O+8, p, p); pk(O+9, p, q); pk(O+10, q, q); pk(O+11, r_, r_)
    pk(O+12, p, p); pk(O+13, q, q); pk(O+14, q, r_); pk(O+15, r_, r_)
    A(f"ds_write_b128 v230, {vr(O+8,4)} offset:{32+1024}\nds_write_b128 v230, {vr(O+12,4)} offset:{KC1+32+1024}")
    A(f"""
    v_cvt_pk_bf16_f32 v2, 0, s53
    v_cvt_pk_bf16_f32 v3, s52, s52
    v_cvt_pk_bf16_f32 v4, s52, 0
    v_cndmask_b32 v2, 0, v2, s[36:37]
    v_cndmask_b32 v3, 0, v3, s[38:39]
    v_cndmask_b32 v4, v3, v4, s[48:49]
    s_mov_b64 exec, 0xff
    ds_write_addtid_b32 v2 offset:{KC1}
    s_mov_b64 exec, 0xffff
    ds_write_addtid_b32 v4 offset:{32+2048}
    ds_write_addtid_b32 v3 offset:{KC1+32+2048}
    s_mov_b64 exec, -1
    """)
    pk(5, a(11), a(12))
    D = 16; SET = [48, 96]
    def loads(st, extra, which="AB"):
        ops = []; Ab, Bb = SET[st], SET[st] + 16
        for k in range(8):
            o = (k & 1) * 128 + extra // 4
            if "B" in which: ops.append(f"ds_read_b128 {vr(Bb+4*k,4)}, v234 offset:{512*(7-k) + extra}")
            if "A" in which and k < 4:
                ops.append(f"ds_read2_b32 {vr(Ab+4*k,2)}, v{232 + k//2} offset0:{o} offset1:{o+1}")
                ops.append(f"ds_read2_b32 {vr(Ab+4*k+2,2)}, v{232 + k//2} offset0:{o+2} offset1:{o+3}")
        return ops
    def mfmas(st):
        Ab, Bb = SET[st], SET[st] + 16
        return [f"v_mfma_f32_16x16x32_bf16 {vr(D+4*i,4)}, {vr(Ab+4*s1,4)}, {vr(Bb+4*(i-s1),4)}, {vr(D+4*i,4)}" for s1 in range(4) for i in range(s1, 8)]
    RK = 144; A32 = 176; WF = 180; U9 = 180; WD_ = 196; BS = 196
    A(f"""
    ds_write_b16 v231, v5 offset:{4 + 126}
    ds_write_b16 v231, v5 offset:{320 + 4 + 124}
    ds_write_b16_d16_hi v231, v5 offset:{4 + 126 - 64}
    ds_write_b16_d16_hi v231, v5 offset:{320 + 4 + 124 - 64}
    ds_read2_b32 {vr(A32,2)}, v239 offset0:0 offset1:1
    ds_read2_b32 {vr(A32+2,2)}, v239 offset0:2 offset1:3
    """)
    for o in loads(0, 0, "A"): A(o)
    for ty in range(2):
        for oi in range(4):
            o = ty * 160 + (48 - 16 * oi) // 2
            A(f"ds_read2_b32 {vr(RK+(ty*4+oi)*4,2)}, v236 offset0:{o} offset1:{o+1}\nds_read2_b32 {vr(RK+(ty*4+oi)*4+2,2)}, v236 offset0:{o+8} offset1:{o+9}")
    A("s_barrier")
    stamp(2)
    bl = loads(0, 0, "B")
    for o in bl[:4]: A(o)
    for k in range(4): A(f"ds_read_b128 {vr(U9+4*k,4)}, v234 offset:{512*(7-k) + 16}")
    for o in bl[4:]: A(o)
    B0 = SET[0] + 16
    A("s_mov_b32 s52, 0\ns_waitcnt lgkmcnt(8)")
    for k in range(4): A(f"v_mfma_f32_16x16x32_bf16 {vr(WD_+4*k,4)}, {vr(B0+4*k,4)}, v[244:247], 0")
    A("s_waitcnt lgkmcnt(4)")
    for k in range(4): A(f"v_mfma_f32_16x16x32_bf16 {vr(WD_+16+4*k,4)}, {vr(U9+4*k,4)}, v[248:251], 0")
    for i in range(4, 8): A(f"v_mfma_f32_16x16x32_bf16 {vr(D+4*i,4)}, {vr(A32,4)}, {vr(B0+4*(i-4),4)}, {vr(D+4*i,4)}")
    far = [f"v_mfma_f32_16x16x32_bf16 {vr(D+4*i,4)}, {vr(WF+(ty*2+ks)*4,4)}, {vr(RK+(ty*4+i-4-2*ks)*4,4)}, {vr(D+4*i,4)}"
           for ty in range(2) for i, ks in [(4, 0), (5, 0), (6, 0), (7, 0), (6, 1), (7, 1)]]
    def fin(i):
        ops = [f"v_pk_add_f32 {vr(D+4*i,2)}, {vr(D+4*i,2)}, {vr(BS+4*i,2)}", f"v_pk_add_f32 {vr(D+4*i+2,2)}, {vr(D+4*i+2,2)}, {vr(BS+4*i+2,2)}",
               f"v_cvt_pk_bf16_f32 v{48+2*i}, v{D+4*i}, v{D+4*i+1}", f"v_cvt_pk_bf16_f32 v{48+2*i+1}, v{D+4*i+2}, v{D+4*i+3}"]
        if i & 1:
            o = 48 + 2 * (i - 1)
            ops += ["s_nop 1", f"v_permlane16_swap_b32 v{o}, v{o+2}", f"v_permlane16_swap_b32 v{o+1}, v{o+3}",
                    f"buffer_store_dwordx4 {vr(o,4)}, v237, s[12:15], s47 offen offset:{512*(i-1)} sc1"]
        return ops
    def body(last):
        for st in range(2):
            A("s_waitcnt lgkmcnt(0)")
            m = mfmas(st)
            if last and st == 1:
                Ab, Bb = SET[st], SET[st] + 16
                pend = []
                for i in range(8):
                    for s1 in range(min(i, 3) + 1):
                        A(f"v_mfma_f32_16x16x32_bf16 {vr(D+4*i,4)}, {vr(Ab+4*s1,4)}, {vr(Bb+4*(i-s1),4)}, {vr(D+4*i,4)}")
                        for _ in range(2):
                            if pend: A(pend.pop(0))
                    if i >= 3: pend += fin(i - 3)
                for o in pend: A(o)
                for i in range(5, 8):
                    for o in fin(i): A(o)
                continue
            A("s_add_u32 s52, s52, 1")
            ld = loads(1 - st, 64 * (st + 1))
            if last:
                cv = [f"v_cvt_pk_bf16_f32 v{WF+k}, v{WD_+2*k}, v{WD_+2*k+1}" for k in range(16)]
                ld = [x + "\n" + y for x, y in zip(ld, cv)]
                ld += ["s_lshl_b32 s47, s5, 12", f"s_add_u32 s47, s47, {WS_HT:#x}"]
                ld += [f"ds_read_b128 {vr(BS+4*i,4)}, v235 offset:{K1_BASE + 1024*i}" for i in range(8)]
                m = m + far
            for k, x in enumerate(m):
                A(x)
                if k < len(ld): A(ld[k])
                if not last and st == 1 and 20 <= k < 23:
                    rr = (232, 233, 234)[k - 20]; A(f"v_add_u32 v{rr}, 128, v{rr}")
    A(".p2align 3\nK1_CONV:")
    body(False)
    A(f"s_cmp_lg_u32 s52, {E('BDAT', 4)}\ns_cbranch_scc1 K1_CONV2\ns_barrier\nK1_CONV2:\ns_cmp_lt_u32 s52, 6\ns_cbranch_scc1 K1_CONV")
    body(True)
    A("s_branch K2_COMP")

    A(f"""
    K1_PREP:
    s_sub_u32 s3, s2, 160
    s_lshl_b32 s46, s3, 3
    s_add_u32 s46, s46, s60
    s_add_u32 s46, s46, {NT1 - 432}
    s_lshl_b32 s47, s3, 2
    s_add_u32 s47, s47, s4
    s_add_u32 s47, s47, {NT0}
    s_cmp_lt_u32 s3, 54
    s_cselect_b32 s46, s47, s46
    s_cselect_b32 s44, s61, 1
    s_cselect_b32 s47, 1024, 0
    s_mul_i32 s45, s60, 42
    s_add_u32 s45, s45, s3
    s_add_u32 s45, s45, {NT1 + 336 - 54}
    s_add_u32 s47, s47, s45
    """)
    rowaddr(46, "v4", "v5"); rowaddr(47, "v12", "v13")
    A(f"""
    s_waitcnt lgkmcnt(0)
    s_load_dword s54, s[6:7], 0
    s_mov_b32 s12, s6
    s_mov_b32 s13, s7
    s_mov_b32 s14, {WS_SIZE:#x}
    s_mov_b32 s15, 0x00020000
    s_cmp_eq_u32 s44, 0
    s_cbranch_scc1 K1_PREPW
    """)
    rowload(48, "v4", "v5")
    A("s_cmp_lt_u32 s47, 1024\ns_cselect_b32 s45, 2, 1\ns_cbranch_scc0 K1_ST0")
    rowload(64, "v12", "v13")
    A(f"""
    K1_ST0:
    s_lshl_b32 s46, s46, 4
    s_add_u32 s46, s46, {WS_ST:#x}
    s_lshl_b32 s47, s47, 4
    s_add_u32 s47, s47, {WS_ST:#x}
    s_waitcnt vmcnt(0) lgkmcnt(0)
    s_add_u32 s53, s54, {TAG_INC:#x}
    K1_ST1:
    """)
    rowstats("s46")
    for r in range(0, 10, 2): A(f"v_mov_b64 {vr(48+r,2)}, {vr(64+r,2)}")
    A("s_mov_b32 s46, s47\ns_sub_u32 s45, s45, 1\ns_cmp_lg_u32 s45, 0\ns_cbranch_scc1 K1_ST1")
    stamp(1)
    A(f"""
    s_barrier
    s_cmp_eq_u32 s61, 0
    s_cbranch_scc1 K1_PREPD
    s_barrier
    s_mov_b32 s54, s53
    v_mov_b32 v8, {K1_CNT}
    s_mov_b32 s52, 0
    K1_WD:
    ds_read_b32 v9, v8 offset:4
    s_add_u32 s52, s52, 1
    s_waitcnt lgkmcnt(0)
    v_cmp_ne_u32 vcc, 4, v9
    s_cmp_lt_u32 s52, 0x100000
    s_cbranch_vccz K1_WD2
    s_sleep 4
    s_cbranch_scc1 K1_WD
    K1_WD2:
    s_lshl_b32 s3, s2, 7
    s_add_u32 s3, s3, {WS_HR1 - 160*128:#x}
    v_mov_b32 v5, s3
    """)
    poll("K1_PHR1", "v5", "v6", slp=8)
    A(f"""
    s_branch K2_LOADER
    K1_PREPW:
    s_cmp_ge_u32 s3, 27
    s_cselect_b32 s40, 1, 0
    s_cselect_b32 s8, s38, s36
    s_cselect_b32 s9, s39, s37
    s_mul_i32 s41, s40, 27
    s_sub_u32 s41, s3, s41
    s_mov_b32 s10, {640*1728*2}
    s_mov_b32 s11, 0x00020000
    v_lshrrev_b32 v2, 3, v1
    v_and_b32 v3, 7, v1
    v_and_b32 v4, 6, v2
    v_xor_b32 v3, v3, v4
    v_mul_u32_u24 v2, 3456, v2
    v_lshl_add_u32 v2, v3, 4, v2
    s_lshl_b32 s42, s41, 7
    s_mul_i32 s43, s4, 552960
    s_add_u32 s42, s42, s43
    s_mul_i32 s44, s4, 20480
    s_mov_b32 s45, 0
    K1_PW_LD:
    s_mov_b32 m0, s44
    s_add_u32 s44, s44, 1024
    s_add_u32 s45, s45, 1
    buffer_load_dwordx4 v2, s[8:11], s42 offen lds
    s_add_u32 s42, s42, 27648
    s_cmp_lg_u32 s45, {E('PACE', 5)}
    s_cbranch_scc1 K1_PW_L2
    s_barrier
    K1_PW_L2:
    s_cmp_lt_u32 s45, 20
    s_cbranch_scc1 K1_PW_LD
    v_lshrrev_b32 v2, 2, v1
    v_and_b32 v3, 6, v2
    v_bfe_u32 v4, v1, 1, 1
    s_lshl_b32 s43, s4, 1
    v_add_u32 v4, s43, v4
    v_xor_b32 v3, v3, v4
    v_lshlrev_b32 v2, 7, v2
    v_lshl_add_u32 v2, v3, 4, v2
    v_and_b32 v3, 1, v1
    v_lshl_add_u32 v2, v3, 3, v2
    v_add_u32 v4, 40960, v2
    s_lshl_b32 s43, s41, 2
    s_add_u32 s43, s43, s4
    s_mul_i32 s44, s43, 9363
    s_lshr_b32 s44, s44, 16
    s_mul_i32 s45, s44, 7
    s_sub_u32 s45, s43, s45
    s_mul_i32 s46, s44, {20*14*1024}
    s_add_u32 s46, s46, {WS_W1P:#x}
    s_cmp_gt_u32 s45, 3
    s_cselect_b32 s47, 3, 0
    s_add_u32 s47, s47, s45
    s_mul_i32 s48, s40, 3
    s_add_u32 s47, s47, s48
    s_lshl_b32 s47, s47, 10
    v_bfe_u32 v6, v1, 2, 1
    v_bfe_u32 v7, v1, 3, 1
    v_xor_b32 v6, v6, v7
    v_mul_u32_u24 v6, 12, v6
    s_and_b32 s48, s45, 3
    s_cmp_eq_u32 s48, 2
    s_cselect_b32 s48, -1, 0
    v_and_b32 v6, s48, v6
    v_xor_b32 v5, v6, v1
    v_lshlrev_b32 v5, 4, v5
    v_add_u32 v5, s47, v5
    v_and_b32 v6, 7, v1
    v_and_b32 v7, 48, v1
    v_add_u32 v6, v6, v7
    s_lshl_b32 s48, s40, 3
    v_add_u32 v6, s48, v6
    v_lshlrev_b32 v6, 4, v6
    v_bfe_u32 v7, v1, 3, 1
    v_mul_u32_u24 v7, 7168, v7
    v_add3_u32 v6, v6, v7, 0
    v_add_u32 v6, 6144, v6
    s_cmp_eq_u32 s45, 3
    s_cselect_b64 vcc, -1, 0
    s_nop 1
    v_cndmask_b32 v5, v5, v6, vcc
    s_waitcnt vmcnt(0)
    s_barrier
    """)
    stamp(2)
    F = 16
    for ks in range(20):
        base = "v2" if ks < 10 else "v4"; o = (ks % 10) * 4096
        A(f"ds_read_b64_tr_b16 {vr(F+4*ks,2)}, {base} offset:{o}\nds_read_b64_tr_b16 {vr(F+4*ks+2,2)}, {base} offset:{o+2048}")
    A("v_mov_b32 v8, 0\nv_mov_b32 v9, 0\nv_mov_b32 v10, 0x3f803f80\ns_mov_b32 s47, 0xffff0000\ns_waitcnt lgkmcnt(0)")
    for i in range(0, 80, 2): A(f"v_dot2c_f32_bf16 v8, v10, v{F+i}\nv_dot2c_f32_bf16 v9, v10, v{F+i+1}")
    A("""
    s_nop 2
    v_add_f32 v8, v8, v9
    v_mov_b32 v9, v8
    s_nop 1
    v_permlane16_swap_b32 v8, v9
    s_nop 1
    v_add_f32 v8, v8, v9
    v_mov_b32 v9, v8
    s_nop 1
    v_permlane32_swap_b32 v8, v9
    s_nop 1
    v_add_f32 v8, v8, v9
    v_mul_f32 v8, 0xbacccccd, v8
    s_mov_b32 s47, 0x3f80
    s_mov_b32 s48, 0x3f800000
    .p2align 3
    """)
    for ks in range(20):
        for i in range(4):
            r = F + 4 * ks + i; t = 100 + 2 * i
            A(f"v_dot2_f32_bf16 v{t}, v{r}, s47, v8\nv_dot2_f32_bf16 v{t+1}, v{r}, s48, v8")
        for i in range(4):
            r = F + 4 * ks + i; t = 100 + 2 * i
            A(f"v_cvt_pk_bf16_f32 v{r}, v{t}, v{t+1}")
        A(f"buffer_store_dwordx4 {vr(F+4*ks,4)}, v5, s[12:15], s46 offen sc1\ns_add_u32 s46, s46, {14*1024}")
    A("s_branch K2_COMPP")
    tabv = [Q_TILES[r][hf] for r in range(7) for hf in range(2)]
    t64 = sum(v << (4 * i) for i, v in enumerate(tabv))
    A(f"""
    K1_PREPD:
    s_sub_u32 s3, s3, 54
    s_cmp_lt_u32 s3, 36
    s_cbranch_scc1 K1_PD0
    s_barrier
    s_branch K2_COMPP
    K1_PD0:
    """)
    srd(8, 92, 1728 * 640 * 2)
    for i in range(5):
        A(f"""
        v_add_u32 v2, {64*i}, v1
        v_mul_u32_u24 v3, 6554, v2
        v_lshrrev_b32 v3, 16, v3
        v_mul_u32_u24 v4, 1120, v3
        v_lshl_add_u32 v{40+i}, v2, 4, v4
        v_lshrrev_b32 v{45+i}, 4, v3
        """)
    A(f"""
    s_mul_i32 s40, s3, 12
    s_mul_i32 s41, s4, 3
    s_add_u32 s40, s40, s41
    s_mul_i32 s49, s4, 15360
    s_mov_b32 s45, 0
    K1_PD1:
    s_lshr_b32 s36, s40, 3
    s_mul_i32 s37, s36, 9363
    s_lshr_b32 s37, s37, 16
    s_mul_i32 s38, s37, 7
    s_sub_u32 s38, s36, s38
    s_lshl_b32 s39, s38, 3
    s_mov_b32 s50, {t64 & 0xffffffff:#x}
    s_mov_b32 s51, {t64 >> 32:#x}
    s_lshr_b64 s[50:51], s[50:51], s39
    s_mul_i32 s37, s37, 14
    s_and_b32 s48, s50, 15
    s_add_u32 s48, s48, s37
    s_lshr_b32 s50, s50, 4
    s_and_b32 s50, s50, 15
    s_add_u32 s50, s50, s37
    s_min_u32 s50, s50, 107
    s_sub_u32 s50, s50, s48
    s_sub_u32 s50, s50, 1
    s_mul_i32 s39, s50, 20480
    s_mul_i32 s48, s48, 20480
    s_and_b32 s37, s40, 7
    s_mul_i32 s37, s37, 160
    s_add_u32 s48, s48, s37
    """)
    for i in range(5):
        A(f"s_add_u32 m0, s49, {1024*i}\nv_mad_u32_u24 v2, v{45+i}, s39, v{40+i}\nbuffer_load_dwordx4 v2, s[8:11], s48 offen lds")
    A(f"""
    s_add_u32 s40, s40, 1
    s_add_u32 s49, s49, 5120
    s_add_u32 s45, s45, 1
    s_cmp_lt_u32 s45, 3
    s_cbranch_scc1 K1_PD1
    s_sub_u32 s40, s40, 3
    s_sub_u32 s49, s49, 15360
    v_lshrrev_b32 v6, 4, v1
    v_bfe_u32 v7, v1, 2, 2
    v_and_b32 v8, 3, v1
    v_lshlrev_b32 v5, 4, v1
    s_waitcnt vmcnt(0)
    s_barrier
    """)
    stamp(2)
    A(f"""
    K1_PD3:
    s_lshr_b32 s36, s40, 3
    s_mul_i32 s37, s36, 9363
    s_lshr_b32 s37, s37, 16
    s_mul_i32 s38, s37, 7
    s_sub_u32 s38, s36, s38
    s_and_b32 s38, s38, 1
    v_lshlrev_b32 v2, s38, v6
    v_lshl_add_u32 v2, v2, 2, v7
    v_mul_u32_u24 v2, 160, v2
    v_lshl_add_u32 v2, v8, 3, v2
    v_add_u32 v2, s49, v2
    s_cmp_eq_u32 s38, 1
    s_movk_i32 s38, 2560
    s_cselect_b32 s38, 640, s38
    v_add_u32 v3, s38, v2
    s_and_b32 s37, s40, 7
    s_mul_i32 s37, s37, {54*5120}
    s_mul_i32 s36, s36, 5120
    s_add_u32 s50, s37, s36
    s_add_u32 s50, s50, {WS_WDP:#x}
    s_add_u32 s51, s50, 4096
    """)
    for t in range(5): A(f"ds_read_b64_tr_b16 {vr(16+4*t,2)}, v2 offset:{32*t}\nds_read_b64_tr_b16 {vr(16+4*t+2,2)}, v3 offset:{32*t}")
    A("s_waitcnt lgkmcnt(0)")
    for t in range(5): A(f"buffer_store_dwordx4 {vr(16+4*t,4)}, v5, s[12:15], {'s50' if t < 4 else 's51'} offen offset:{1024*(t&3)} sc1")
    A("""
    s_add_u32 s40, s40, 1
    s_add_u32 s49, s49, 5120
    s_sub_u32 s45, s45, 1
    s_cmp_lg_u32 s45, 0
    s_cbranch_scc1 K1_PD3
    s_branch K2_COMPP
    """)

    A("K2_LOADER:")
    map2()
    RW = 16
    A(f"""
    s_mul_i32 s35, s37, {54*5120}
    s_add_u32 s35, s35, {WS_WDP:#x}
    s_mul_i32 s26, s4, 15360
    s_add_u32 s29, s35, s26
    s_add_u32 s29, s29, 153600
    v_min_u32 v5, 35, v1
    v_lshlrev_b32 v5, 7, v5
    v_add_u32 v5, {WS_FP + 214*128:#x}, v5
    """)
    def batch(b):
        for i in range(15):
            A(f"buffer_load_dwordx4 {vr(RW+(b*15+i)*4,4)}, v4, s[12:15], s29 offen offset:{1024*(i&3)} sc1")
            if (i & 3) == 3: A("s_add_u32 s29, s29, 4096")
        if b == 0: A(f"s_add_u32 s29, s29, {61440 - 12288}")
    A(f"""
    s_mul_i32 s20, s17, 7
    s_lshr_b32 s20, s20, 2
    v_and_b32 v7, 3, v1
    v_min_u32 v7, 2, v7
    v_add_u32 v7, s20, v7
    v_min_u32 v7, 26, v7
    v_bfe_u32 v6, v1, 2, 1
    v_mad_u32_u24 v7, v6, 27, v7
    v_lshlrev_b32 v7, 7, v7
    v_add_u32 v10, {WS_FP + 160*128:#x}, v7
    v_lshrrev_b32 v8, 4, v1
    v_and_b32 v6, 15, v1
    v_lshlrev_b32 v7, 1, v8
    v_xor_b32 v2, v6, v7
    v_xor_b32 v3, 8, v2
    v_lshlrev_b32 v7, 12, v8
    v_lshl_add_u32 v2, v2, 4, v7
    v_lshl_add_u32 v3, v3, 4, v7
    s_lshl_b32 s20, s4, 16
    s_lshl_b32 s21, s16, 8
    s_add_u32 s20, s20, s21
    s_add_u32 s20, s20, {WS_HT:#x}
    s_mul_i32 s21, s17, {20*14*1024}
    s_mul_i32 s22, s4, 7168
    s_add_u32 s21, s21, s22
    s_add_u32 s21, s21, {WS_W1P:#x}
    s_lshl_b32 s23, s4, 12
    s_add_u32 s23, s23, {XS}
    s_add_u32 s24, s22, {WB + WSL}
    s_mov_b32 s33, {XS}
    s_mov_b32 s34, {WSL}
    v_min_u32 v7, 39, v1
    v_lshrrev_b32 v8, 2, v7
    v_and_b32 v7, 3, v7
    v_lshl_add_u32 v7, v8, 4, v7
    s_lshl_b32 s22, s4, 2
    v_add_u32 v7, s22, v7
    v_min_u32 v8, 48, v1
    s_mul_i32 s22, s4, 9
    s_add_u32 s22, s22, {214 - 40}
    v_add_u32 v8, s22, v8
    v_cmp_gt_u32 vcc, 40, v1
    s_nop 1
    v_cndmask_b32 v7, v8, v7, vcc
    v_lshlrev_b32 v7, 7, v7
    v_add_u32 v7, {WS_FP:#x}, v7
    v_mov_b32 v8, {K1_CNT}
    """)
    def dma_x():
        A("""
        s_mov_b32 m0, s23
        s_add_u32 s25, s20, 15360
        buffer_load_dwordx4 v2, s[12:15], s20 offen sc1 lds
        s_add_u32 s27, s20, 30720
        buffer_load_dwordx4 v3, s[12:15], s25 offen offset:1024 sc1 lds
        s_add_u32 s25, s20, 46080
        buffer_load_dwordx4 v2, s[12:15], s27 offen offset:2048 sc1 lds
        s_add_u32 s20, s20, 0x40000
        buffer_load_dwordx4 v3, s[12:15], s25 offen offset:3072 sc1 lds
        """)
    def dma_w():
        A("s_mov_b32 m0, s24\ns_add_u32 s25, s21, 4096")
        for i in range(4): A(f"buffer_load_dwordx4 v4, s[12:15], s21 offen offset:{1024*i} sc1 lds")
        A(f"s_add_u32 m0, s24, 4096\ns_add_u32 s21, s21, {WSL}")
        for i in range(3): A(f"buffer_load_dwordx4 v4, s[12:15], s25 offen offset:{1024*i} sc1 lds")
    stamp(3)
    poll("K2_P1", "v10", "v6", slp=8)
    stamp(4)
    dma_w(); A(f"s_add_u32 s24, s24, {WSL}")
    dma_w(); A(f"s_sub_u32 s24, s24, {2*WSL}")
    A(f"""
    s_mov_b32 s52, 0
    K2_WL:
    ds_read_b32 v9, v8 offset:4
    s_add_u32 s52, s52, 1
    s_waitcnt lgkmcnt(0)
    v_cmp_ne_u32 vcc, 4, v9
    s_cmp_lt_u32 s52, 0x100000
    s_cbranch_vccz K2_WL_D
    s_sleep 2
    s_cbranch_scc1 K2_WL
    K2_WL_D:
    s_cmp_lt_u32 s2, 160
    s_cbranch_scc1 K2_NOH2
    s_lshl_b32 s3, s2, 7
    s_add_u32 s3, s3, {WS_HR2 - 160*128:#x}
    v_mov_b32 v11, s3
    """)
    poll("K2_PH2", "v11", "v6", slp=8)
    A("K2_NOH2:")
    stamp(5)
    dma_w(); A(f"s_add_u32 s24, s24, {WSL}")
    A("s_waitcnt vmcnt(0)")
    stamp(6)
    poll("K2_PC", "v7", "v6", slp=4)
    stamp(7)
    dma_x(); A(f"s_add_u32 s23, s23, {XS}")
    dma_x(); A(f"s_sub_u32 s23, s23, {2*XS}")
    dma_x(); A(f"s_add_u32 s23, s23, {XS}")
    A("s_waitcnt vmcnt(8)\ns_barrier")
    EX = [int(x) for x in os.environ.get("EX", "4,2,2,2,2,2,1,0").split(",")]
    rl = [0]
    def regload(n):
        for _ in range(n):
            i = rl[0]; rl[0] += 1
            b, j = divmod(i, 15)
            A(f"buffer_load_dwordx4 {vr(RW+i*4,4)}, v4, s[12:15], s29 offen offset:{1024*(j&3)} sc1")
            if (j & 3) == 3: A("s_add_u32 s29, s29, 4096")
            if i == 14: A(f"s_add_u32 s29, s29, {61440 - 12288}")
    regload(EX[0])
    for st in range(3, 10):
        k = st - 2
        younger = (4 + EX[0]) if k == 1 else (EX[k-2] + 11 + EX[k-1])
        A(f"s_waitcnt vmcnt({younger})\ns_barrier")
        dma_x(); dma_w()
        regload(EX[k])
        if (st + 1) % 3 == 2: A(f"s_sub_u32 s23, s23, {2*XS}\ns_sub_u32 s24, s24, {2*WSL}")
        else: A(f"s_add_u32 s23, s23, {XS}\ns_add_u32 s24, s24, {WSL}")
    def range_dma():
        A("s_mov_b32 m0, s23\ns_add_u32 s25, s35, s23")
        for i in range(4): A(f"buffer_load_dwordx4 v4, s[12:15], s25 offen offset:{1024*i} sc1 lds")
        A("s_mov_b32 m0, s24\ns_add_u32 s25, s35, s24")
        for i in range(4): A(f"buffer_load_dwordx4 v4, s[12:15], s25 offen offset:{1024*i} sc1 lds")
        A("s_add_u32 m0, s24, 4096\ns_add_u32 s25, s25, 4096")
        for i in range(3): A(f"buffer_load_dwordx4 v4, s[12:15], s25 offen offset:{1024*i} sc1 lds")
    A(f"s_waitcnt vmcnt({EX[6] + 11 + EX[7]})\ns_barrier")
    range_dma()
    A(f"s_sub_u32 s23, s23, {2*XS}\ns_sub_u32 s24, s24, {2*WSL}\ns_waitcnt vmcnt({EX[7] + 11})\ns_barrier")
    stamp(8)
    range_dma()
    A(f"""
    s_add_u32 s23, s23, {XS}
    s_add_u32 s24, s24, {WSL}
    v_lshrrev_b32 v5, 3, v1
    v_and_b32 v6, 7, v1
    v_lshlrev_b32 v5, 12, v5
    v_lshl_add_u32 v7, v6, 4, v5
    s_mul_i32 s20, s37, {80*4096}
    s_lshl_b32 s21, s36, 7
    s_add_u32 s20, s20, s21
    s_add_u32 s20, s20, {WS_HT:#x}
    s_lshl_b32 s21, s4, 15
    s_add_u32 s20, s20, s21
    s_lshl_b32 s21, s4, 10
    s_add_u32 s22, s21, {G1_END}
    s_add_u32 s21, s21, {RES_LDS}
    v_add_u32 v5, s26, v4
    v_add_u32 v6, 61440, v5
    s_barrier
    """)
    B11 = E("B11", 1)
    if B11: A("s_barrier")
    range_dma()
    for i in range(4): A(f"s_add_u32 m0, s22, {4096*i}\ns_add_u32 s25, s35, m0\nbuffer_load_dwordx4 v4, s[12:15], s25 offen sc1 lds")
    for i in range(2): A(f"s_add_u32 m0, s21, {4096*i}\ns_add_u32 s25, s20, {0x20000*i}\nbuffer_load_dwordx4 v7, s[12:15], s25 offen sc1 lds")
    A(f"""
    s_cmp_lt_u32 s4, 2
    s_cbranch_scc0 K2_LR
    s_add_u32 m0, s22, {4096*4}
    s_add_u32 s25, s35, m0
    buffer_load_dwordx4 v4, s[12:15], s25 offen sc1 lds
    s_branch K2_LR2
    K2_LR:
    s_add_u32 m0, s21, {8192 - 2048}
    s_add_u32 s25, s20, {0x40000 - 0x10000}
    buffer_load_dwordx4 v7, s[12:15], s25 offen sc1 lds
    K2_LR2:
    """)
    rest = 30 - rl[0]
    regload(rest)
    stamp(9)
    A(f"s_waitcnt vmcnt({min(rest, 15) if not E('S0ALL', 0) else 0})\ns_barrier\ns_barrier")
    for i in range(15): A(f"ds_write_b128 v5, {vr(RW+i*4,4)} offset:{1024*i}")
    A("s_waitcnt vmcnt(0) lgkmcnt(0)\ns_barrier")
    for i in range(15): A(f"ds_write_b128 v6, {vr(RW+(15+i)*4,4)} offset:{1024*i}")
    A("s_waitcnt lgkmcnt(0)\ns_barrier")
    A(f"s_or_b32 s3, s2, s4\ns_cmp_lg_u32 s3, 0\ns_cbranch_scc1 K2_LEND\nv_lshlrev_b32 v5, 7, v1\nv_add_u32 v5, {WS_FP + 160*128:#x}, v5")
    poll("K2_PE0", "v5", "v6")
    A("v_add_u32 v5, 4096, v5")
    poll("K2_PE1", "v5", "v6")
    A("v_mov_b32 v6, 0\nv_mov_b32 v7, s54\nglobal_store_dword v6, v7, s[6:7] sc1\nK2_LEND:")
    finish()

    A(f"K2_COMPP:\ns_waitcnt lgkmcnt(0)\ns_add_u32 s54, s54, {TAG_INC:#x}")
    A("K2_COMP:")
    A(f"""
    v_mov_b32 v2, {K1_CNT}
    v_mov_b32 v3, 1
    v_mov_b32 v13, s54
    s_mov_b64 exec, 1
    ds_add_u32 v2, v3
    s_mov_b64 exec, -1
    """)
    stamp(3)
    map2()
    A(f"""
    v_lshrrev_b32 v5, 2, v1
    v_and_b32 v6, 7, v5
    v_and_b32 v7, 3, v1
    v_lshlrev_b32 v5, 8, v5
    v_lshl_add_u32 v5, v7, 3, v5
    v_add_u32 v5, {XS}, v5
    s_lshl_b32 s25, s18, 2
    """)
    for a_ in range(4): A(f"s_add_u32 s26, s25, {a_}\nv_xor_b32 v7, s26, v6\nv_lshl_add_u32 v{8+a_}, v7, 5, v5")
    A(f"s_mul_i32 s25, s19, 7168\ns_add_u32 s25, s25, {WB + WSL}\nv_add_u32 v12, s25, v4")
    ACC = 16; SETS = [128, 172]
    srd(8, 94, 2048 * 640 * 2)
    A(f"""
    v_mov_b32 v216, 0x3f803f80
    v_mov_b32 v217, 0x3f803f80
    v_mov_b32 v218, 0x3f803f80
    v_mov_b32 v219, 0x3f803f80
    s_mov_b32 s33, {XS}
    s_mov_b32 s34, {WSL}
    s_mov_b32 s27, 0
    s_mov_b32 s28, 1
    s_cmp_lt_u32 s2, 160
    s_cselect_b32 s20, s57, s2
    s_lshl_b32 s20, s20, 7
    s_add_u32 s20, s20, {WS_FP:#x}
    v_and_b32 v14, 31, v1
    v_lshlrev_b32 v14, 2, v14
    v_lshrrev_b32 v5, 5, v1
    v_mul_u32_u24 v5, {WS_HR2 - WS_FP:#x}, v5
    v_add_u32 v14, v14, v5
    s_waitcnt vmcnt(0)
    s_mov_b64 exec, 1
    ds_add_rtn_u32 v5, v2, v3 offset:4
    s_mov_b64 exec, -1
    s_waitcnt lgkmcnt(0)
    v_readfirstlane_b32 s21, v5
    s_cmp_lg_u32 s21, 3
    s_cbranch_scc1 K2_NOFLAG
    buffer_store_dword v13, v14, s[12:15], s20 offen sc1
    K2_NOFLAG:
    """)
    stamp(4)
    for i in range(0, 112, 2): A(f"v_mov_b64 {vr(ACC+i,2)}, 0")
    def reads(st, ks, stats):
        b = SETS[st]
        xo = [f"ds_read_b64_tr_b16 {vr(b+4*a_+2*hh,2)}, v{8+a_} offset:{ks*8192 + hh*4096}" for a_ in range(4) for hh in range(2)]
        wo = [] if stats else [f"ds_read_b128 {vr(b+16+4*w,4)}, v12 offset:{ks*14336 + w*1024}" for w in range(7)]
        return wo[:1] + xo + wo[1:]
    def mf(st, stats):
        b = SETS[st]
        if stats:
            return [f"v_mfma_f32_16x16x32_bf16 {vr(ACC+4*a_,4)}, {vr(b+4*a_,4)}, {vr(b+4*a_,4)}, {vr(ACC+4*a_,4)}" for a_ in range(4)] + \
                   [f"v_mfma_f32_16x16x32_bf16 {vr(ACC+16+4*a_,4)}, v[216:219], {vr(b+4*a_,4)}, {vr(ACC+16+4*a_,4)}" for a_ in range(4)]
        return [f"v_mfma_f32_16x16x32_bf16 {vr(ACC+(w*4+a_)*4,4)}, {vr(b+16+4*w,4)}, {vr(b+4*a_,4)}, {vr(ACC+(w*4+a_)*4,4)}" for w in range(7) for a_ in range(4)]
    A(f"""
    s_lshr_b32 s20, s17, 1
    s_mul_i32 s20, s20, 7
    s_and_b32 s21, s17, 1
    s_lshl_b32 s22, s21, 2
    s_add_u32 s22, s22, s20
    s_lshl_b32 s23, s16, 3
    s_lshl_b32 s24, s18, 2
    s_add_u32 s23, s23, s24
    s_mul_i32 s23, s23, 55296
    s_add_u32 s23, s23, {WS_HF:#x}
    s_lshl_b32 s24, s19, 1
    s_add_u32 s24, s24, s22
    s_lshl_b32 s24, s24, 10
    s_add_u32 s40, s24, s23
    s_add_u32 s25, s22, 1
    s_lshl_b32 s25, s25, 10
    s_lshl_b32 s26, s19, 9
    s_add_u32 s25, s25, s26
    s_add_u32 s26, s20, 3
    s_lshl_b32 s26, s26, 10
    s_lshl_b32 s29, s21, 9
    s_add_u32 s26, s26, s29
    s_cmp_eq_u32 s17, 15
    s_cselect_b32 s25, s26, s25
    s_add_u32 s41, s25, s23
    s_add_u32 s26, s26, s23
    s_lshl_b32 s29, s19, 8
    s_add_u32 s42, s26, s29
    s_cmp_eq_u32 s17, 15
    s_cselect_b32 s42, 0x40000000, s42
    v_and_b32 v5, 31, v1
    v_lshlrev_b32 v5, 4, v5
    v_lshrrev_b32 v6, 5, v1
    v_mul_u32_u24 v6, 55296, v6
    v_add_u32 v220, v5, v6
    v_and_b32 v7, 15, v1
    v_lshl_add_u32 v7, v7, 4, v6
    v_bfe_u32 v5, v1, 4, 1
    v_mul_u32_u24 v5, 110592, v5
    v_add_u32 v221, v7, v5
    """)
    A("s_barrier")
    stamp(5)
    for o in reads(0, 0, False): A(o)
    A("s_cmp_eq_u32 s17, 15\ns_cselect_b32 s29, s19, 0\ns_cmp_eq_u32 s29, 1\ns_cbranch_scc1 K2_SLOOP")
    def weave(m, others):
        n = len(m); k = len(others); idx = 0
        for t, x in enumerate(m):
            A(x)
            want = (k * (t + 1) + n - 1) // n if k > n else min(k, t + 1)
            while idx < want: A(others[idx]); idx += 1
        while idx < k: A(others[idx]); idx += 1
    def loop(label, stats, tail=None):
        A(f".p2align 3\n{label}:\ns_waitcnt lgkmcnt(0)\ns_add_u32 s27, s27, 1")
        adv = ["s_add_u32 s28, s28, 1\ns_cmp_eq_u32 s28, 3",
               f"s_cselect_b32 s30, {(-2*XS) & 0xffffffff:#x}, s33", f"s_cselect_b32 s31, {(-2*WSL) & 0xffffffff:#x}, s34",
               "s_cselect_b32 s28, 0, s28\nv_add_u32 v8, s30, v8", "v_add_u32 v9, s30, v9\nv_add_u32 v10, s30, v10",
               "v_add_u32 v11, s30, v11\nv_add_u32 v12, s31, v12"]
        weave(mf(0, stats), reads(1, 1, stats) + adv)
        A(f"s_waitcnt lgkmcnt(0)\ns_cmp_lt_u32 s27, 10\ns_cbranch_scc0 {label}_T\ns_barrier")
        weave(mf(1, stats), reads(0, 0, stats))
        A(f"s_branch {label}\n{label}_T:\ns_barrier")
        if tail: tail()
        else:
            for x in mf(1, stats): A(x)
    acc = lambda w, a_: ACC + (w * 4 + a_) * 4
    T = 128
    def prod(w, a_, o):
        g, u = acc(w, a_), acc(w + 3, a_)
        return [f"v_pk_mul_f32 {vr(g,2)}, {vr(g,2)}, {vr(u,2)}", f"v_pk_mul_f32 {vr(g+2,2)}, {vr(g+2,2)}, {vr(u+2,2)}",
                f"v_cvt_pk_bf16_f32 v{o}, v{g}, v{g+1}", f"v_cvt_pk_bf16_f32 v{o+1}, v{g+2}, v{g+3}"]
    def tail():
        b = SETS[1]
        one = lambda w, a_: f"v_mfma_f32_16x16x32_bf16 {vr(acc(w,a_),4)}, {vr(b+16+4*w,4)}, {vr(b+4*a_,4)}, {vr(acc(w,a_),4)}"
        groups = [[(0, a_), (3, a_), (1, a_), (4, a_)] for a_ in range(4)] + [[(2, 0), (5, 0), (2, 1), (5, 1)], [(2, 2), (5, 2), (2, 3), (5, 3)], [(6, a_) for a_ in range(4)]]
        def post(gi):
            if gi < 4:
                return prod(0, gi, T + 4 * gi) + prod(1, gi, T + 4 * gi + 2) + [f"buffer_store_dwordx4 {vr(T+4*gi,4)}, v4, s[12:15], s40 offen sc1\ns_add_u32 s40, s40, 55296"]
            if gi < 6:
                a0 = 2 * (gi - 4); o = T + 16 + 2 * a0
                return prod(2, a0, o) + prod(2, a0 + 1, o + 2) + ["s_nop 1", f"v_permlane32_swap_b32 v{o}, v{o+2}", f"v_permlane32_swap_b32 v{o+1}, v{o+3}",
                        f"buffer_store_dwordx4 {vr(o,4)}, v220, s[12:15], s41 offen sc1\ns_add_u32 s41, s41, 110592"]
            ops = []
            for a_ in (0, 2):
                x, y = acc(6, a_), acc(6, a_ + 1)
                ops += [f"v_permlane32_swap_b32 v{x+e}, v{y+e}" for e in range(4)]
            for a_ in (0, 2):
                x, y = acc(6, a_), acc(6, a_ + 1)
                ops += [f"v_pk_mul_f32 {vr(x,2)}, {vr(x,2)}, {vr(y,2)}", f"v_pk_mul_f32 {vr(x+2,2)}, {vr(x+2,2)}, {vr(y+2,2)}",
                        f"v_cvt_pk_bf16_f32 v{T+24+a_}, v{x}, v{x+1}", f"v_cvt_pk_bf16_f32 v{T+25+a_}, v{x+2}, v{x+3}"]
            return ops + ["s_nop 1", f"v_permlane16_swap_b32 v{T+24}, v{T+26}", f"v_permlane16_swap_b32 v{T+25}, v{T+27}",
                          f"buffer_store_dwordx4 {vr(T+24,4)}, v221, s[12:15], s42 offen sc1"]
        pend = []
        for gi, g in enumerate(groups):
            if gi >= 3: pend += post(gi - 3)
            for w, a_ in g:
                A(one(w, a_))
                for _ in range(2):
                    if pend: A(pend.pop(0))
        for gi in range(4, 7): pend += post(gi)
        for o in pend: A(o)
    loop("K2_LOOP", False, tail)
    stamp(6)
    A("K2_FIN:")
    if B11: A("s_barrier")
    stamp(7)
    AC2 = 16; WS2 = [56, 76, 168]; HB = 96; DH = E("DH", 6); HR = 144
    A(f"""
    v_and_b32 v2, {(1 << (FSH - 2)) - 1}, v1
    v_lshlrev_b32 v5, 2, v2
    v_and_b32 v2, 31, v1
    v_lshlrev_b32 v6, {FSH}, v2
    s_lshl_b32 s20, s16, 1
    s_add_u32 s20, s20, s18
    s_lshl_b32 s20, s20, 5
    s_lshl_b32 s21, s17, 1
    s_add_u32 s20, s20, s21
    s_add_u32 s20, s20, s19
    s_lshl_b32 s20, s20, {FSH}
    s_add_u32 s20, s20, {WS_FH:#x}
    s_lshl_b32 s21, s36, {FSH + 5}
    s_add_u32 s21, s21, {WS_FH:#x}
    v_mov_b32 v7, s54
    s_lshl_b32 s22, s36, 2
    s_add_u32 s22, s22, s4
    s_mul_i32 s23, s22, 55296
    s_xor_b32 s24, s22, 1
    s_mul_i32 s24, s24, 55296
    v_add_u32 v8, s23, v4
    v_add_u32 v9, s24, v4
    s_lshl_b32 s23, s19, 10
    s_add_u32 s23, s23, {WS_HF:#x}
    s_mul_i32 s24, s19, 5120
    v_add_u32 v10, s24, v4
    v_add_u32 v11, 61440, v10
    v_add_u32 v12, 122880, v10
    v_and_b32 v2, 15, v1
    v_lshrrev_b32 v3, 4, v1
    v_lshrrev_b32 v14, 2, v1
    v_lshlrev_b32 v14, 7, v14
    v_and_b32 v13, 3, v1
    v_lshl_add_u32 v14, v13, 3, v14
    s_lshl_b32 s24, s4, 5
    s_add_u32 s24, s24, {RES_LDS}
    v_add_u32 v14, s24, v14
    v_lshlrev_b32 v13, 2, v2
    s_lshl_b32 s22, s22, 4
    s_lshl_b32 s25, s22, 2
    s_add_u32 s25, s25, {WS_R2:#x}
    s_mul_i32 s26, s22, 1280
    s_mul_i32 s27, s37, 160
    s_add_u32 s26, s26, s27
    v_mul_u32_u24 v15, 1280, v2
    v_lshl_add_u32 v165, v3, 3, v15
    v_lshrrev_b32 v2, 1, v3
    v_lshl_add_u32 v15, v2, 4, v15
    v_and_b32 v2, 1, v3
    v_lshl_add_u32 v15, v2, 5, v15
    s_mul_i32 s27, s4, 5120
    s_add_u32 s27, s27, {24*5120}
    s_xor_b32 s28, s4, 1
    s_mul_i32 s28, s28, 5120
    s_add_u32 s28, s28, {24*5120}
    v_add_u32 v166, s27, v4
    v_add_u32 v167, s28, v4
    """)
    for i in range(0, 40, 2): A(f"v_mov_b64 {vr(AC2+i,2)}, 0")
    A("s_waitcnt vmcnt(0)\nbuffer_store_dword v7, v5, s[12:15], s20 offen sc1")
    stamp(8)
    def wread(n):
        off = (2 * n if n < 15 else 2 * (n - 15)) * 5120
        return [f"ds_read_b128 {vr(WS2[n%3]+4*t,4)}, v{10 + off // 61440} offset:{off % 61440 + 1024*t}" for t in range(5)]
    A("s_barrier")
    stamp(9)
    for o in wread(0) + wread(1): A(o)
    if E("OWNACK", 1): A("s_waitcnt vmcnt(0)")
    poll("K2_POLL", "v6", "v3", soff="s21", slp=2)
    stamp(10)
    def hload(n):
        b = HB + (n % DH) * 8
        return [f"buffer_load_dwordx4 {vr(b,4)}, v8, s[12:15], s23 offen sc1", f"buffer_load_dwordx4 {vr(b+4,4)}, v9, s[12:15], s23 offen sc1", "s_add_u32 s23, s23, 2048"]
    A("buffer_load_dword v164, v13, s[12:15], s25 offen sc1")
    for n in range(DH):
        for o in hload(n): A(o)
    for n in range(27):
        A(f"s_waitcnt vmcnt({2 * (min(26, n + DH - 1) - n)}) lgkmcnt({5 if n < 26 else 0})")
        b = HB + (n % DH) * 8
        m = [f"v_mfma_f32_16x16x32_bf16 {vr(AC2+(a_*5+t)*4,4)}, {vr(WS2[n%3]+4*t,4)}, {vr(b+4*a_,4)}, {vr(AC2+(a_*5+t)*4,4)}" for a_ in (1, 0) for t in range(5)]
        oth = wread(n + 2) if n < 25 else []
        if n == 25: oth = [f"ds_read_b64_tr_b16 {vr(188+2*t,2)}, v14 offset:{2048*t}" for t in range(5)]
        if n == 26:
            for t in range(5):
                oth += [f"v_lshlrev_b32 v{HR+4*t}, 16, v{188+2*t}\nv_and_b32 v{HR+4*t+1}, 0xffff0000, v{188+2*t}",
                        f"v_lshlrev_b32 v{HR+4*t+2}, 16, v{189+2*t}\nv_and_b32 v{HR+4*t+3}, 0xffff0000, v{189+2*t}"]
        if n in (4, 10, 19): oth = [None] * 3 + ["s_waitcnt lgkmcnt(0)\ns_barrier"] + oth
        for k, x in enumerate(m):
            A(x)
            if k < len(oth) and oth[k]: A(oth[k])
        if n + DH < 27:
            for o in hload(n + DH): A(o)
    stamp(11)
    A("s_nop 2")
    for t in range(5): A(f"ds_write_b128 v167, {vr(AC2+(5+t)*4,4)} offset:{1024*t}")
    A("s_waitcnt lgkmcnt(0)\ns_barrier")
    R = 56
    for t in range(5): A(f"ds_read_b128 {vr(R+4*t,4)}, v166 offset:{1024*t}")
    for t in range(5):
        A(f"s_waitcnt lgkmcnt({4-t})")
        for e in (0, 2): A(f"v_pk_add_f32 {vr(AC2+4*t+e,2)}, {vr(AC2+4*t+e,2)}, {vr(R+4*t+e,2)}")
        for e in (0, 2): A(f"v_pk_fma_f32 {vr(AC2+4*t+e,2)}, {vr(AC2+4*t+e,2)}, v[164:165], {vr(HR+4*t+e,2)} op_sel_hi:[1,0,1]")
        A(f"v_cvt_pk_bf16_f32 v{80+2*t}, v{AC2+4*t}, v{AC2+4*t+1}\nv_cvt_pk_bf16_f32 v{80+2*t+1}, v{AC2+4*t+2}, v{AC2+4*t+3}")
        if t in (1, 3):
            o = 80 + 2 * (t - 1)
            A(f"s_nop 1\nv_permlane16_swap_b32 v{o}, v{o+2}\nv_permlane16_swap_b32 v{o+1}, v{o+3}\nbuffer_store_dwordx4 {vr(o,4)}, v15, s[8:11], s26 offen offset:{32*(t-1)}")
    A("buffer_store_dwordx2 v[88:89], v165, s[8:11], s26 offen offset:128")
    finish()
    loop("K2_SLOOP", True)
    A(f"""
    v_and_b32 v5, 3, v1
    v_bfe_u32 v6, v1, 2, 2
    v_lshrrev_b32 v7, 4, v1
    v_cmp_eq_u32 s[20:21], 1, v5
    v_cmp_eq_u32 s[22:23], 2, v5
    v_cmp_eq_u32 s[24:25], 3, v5
    v_cmp_eq_u32 s[26:27], v6, v7
    v_and_b32 v5, 15, v1
    v_lshlrev_b32 v5, 2, v5
    s_lshl_b32 s28, s16, 9
    s_lshl_b32 s29, s18, 8
    s_add_u32 s28, s28, s29
    s_add_u32 s28, s28, {WS_R2:#x}
    """)
    for a_ in range(4):
        g = ACC + 4 * a_; s_ = ACC + 16 + 4 * a_
        A(f"""
        v_cndmask_b32 v{g}, v{g}, v{g+1}, s[20:21]
        v_cndmask_b32 v{g}, v{g}, v{g+2}, s[22:23]
        v_cndmask_b32 v{g}, v{g}, v{g+3}, s[24:25]
        v_mul_f32 v{s_}, 0x3acccccd, v{s_}
        v_mul_f32 v{g}, 0x3acccccd, v{g}
        v_fma_f32 v{g}, -v{s_}, v{s_}, v{g}
        v_max_f32 v{g}, 0, v{g}
        v_cvt_pk_bf16_f32 v{g}, v{g}, v{g}
        v_lshlrev_b32 v{g}, 16, v{g}
        v_add_f32 v{g}, 0x3727c5ac, v{g}
        v_cvt_pk_bf16_f32 v{g}, v{g}, v{g}
        v_lshlrev_b32 v{g}, 16, v{g}
        v_sqrt_f32 v{g}, v{g}
        s_nop 0
        v_cvt_pk_bf16_f32 v{g}, v{g}, v{g}
        v_lshlrev_b32 v{g}, 16, v{g}
        v_mul_f32 v{g}, v{g}, v{g}
        v_rcp_f32 v{g}, v{g}
        """)
    A("s_mov_b64 exec, s[26:27]")
    for a_ in range(4): A(f"buffer_store_dword v{ACC+4*a_}, v5, s[12:15], s28 offen offset:{64*a_} sc1")
    A("s_mov_b64 exec, -1\ns_branch K2_FIN\nK_END:\ns_endpgm")

def main(out):
    gen()
    hdr = open("sequential_preLN__ssm_conv_s4__glu_gated_bilinear__prompt.s.ref").read().split("; Override launch")[0]
    s = hdr + f"; @launch grid=(256,1,1) block=(512,1,1) lds={LDS_SIZE}\n"
    s += f'.amdgcn_target "amdgcn-amd-amdhsa--gfx950"\n.text\n.globl {KNAME}\n.p2align 8\n.type {KNAME},@function\n{KNAME}:\n'
    s += A.text().replace("CNTADDR", str(K1_CNT)).replace("XGN", "0" if E("NOXG", 0) else "5").replace("XGLIM", "0" if E("NOXG", 0) else "0x40000") + "CODE_END:\n"
    s += f""".section .rodata,"a"
.p2align 6
.amdhsa_kernel {KNAME}
  .amdhsa_next_free_vgpr 252
  .amdhsa_next_free_sgpr 96
  .amdhsa_accum_offset 252
  .amdhsa_group_segment_fixed_size 0
  .amdhsa_kernarg_size 128
  .amdhsa_user_sgpr_count 2
  .amdhsa_user_sgpr_kernarg_segment_ptr 1
  .amdhsa_system_sgpr_workgroup_id_x 1
.end_amdhsa_kernel
"""
    open(out, "w").write(s)
if __name__ == "__main__":
    main(sys.argv[1] if len(sys.argv) > 1 else "f.s")
```

```python
import sys, os
E = lambda k, d: int(os.environ.get(k, d))
KNAME = "sequential_preLN__ssm_conv_s4__glu_gated_bilinear__prompt_kernel"
WS_ST    = 0x1000
WS_R2    = 0x8000
WS_HT    = 0x10000
WS_W1P   = 0x290000
WS_WDP   = 0x6F0000
WS_HF    = int(os.environ.get('HFOFF', '0x910000'), 0)
WS_PROF  = 0xFE0000
WS_XG    = 0x1100000
WS_FH    = 0x1840000
WS_FH2   = 0x1850000
WS_FP    = 0x1860000
WS_HR1   = 0x1870000
WS_HR2   = 0x1878000
WS_FE    = 0x1880000
WS_SIZE  = 0x1900000
PROF = E("PROF", 0)
NST = 14
PROF_WAVES = 8
PROF_RANGES = [(0, [(0, 160, 0, 4, NST), (0, 160, 4, 8, NST), (160, 214, 0, 4, NST), (160, 214, 4, 8, NST), (214, 250, 0, 4, NST), (214, 250, 4, 8, NST)])]

class Asm:
    def __init__(self): self.l = []
    def __call__(self, s):
        for x in s.split("\n"):
            x = x.strip()
            if x: self.l.append(("" if x.endswith(":") else "    ") + x)
    def text(self): return "\n".join(self.l) + "\n"
def vr(a, n=1): return f"v{a}" if n == 1 else f"v[{a}:{a+n-1}]"
def sr(a, n=1): return f"s{a}" if n == 1 else f"s[{a}:{a+n-1}]"
A = Asm()
DIAG = os.environ.get("DIAG")
_fin = [0]
def stamp(i, wait=True):
    if PROF or (DIAG and str(i) in DIAG.split(",")[:2]):
        A(f"{'s_memrealtime' if (DIAG or E('RT', 0)) else 's_memtime'} s[{64+2*i}:{65+2*i}]")
        if wait: A("s_waitcnt lgkmcnt(0)")
def finish():
    if DIAG:
        a, b, mult, wg, wv = map(int, DIAG.split(","))
        _fin[0] += 1; n = _fin[0]
        A(f"""
        s_waitcnt vmcnt(0)
        s_memrealtime s[{64+2*(NST-1)}:{65+2*(NST-1)}]
        s_cmp_lg_u32 s2, {wg}
        s_cbranch_scc1 DG_E{n}
        s_cmp_lg_u32 s60, {wv}
        s_cbranch_scc1 DG_E{n}
        s_waitcnt lgkmcnt(0)
        s_sub_u32 s20, s{64+2*b}, s{64+2*a}
        s_min_u32 s20, s20, 5000
        s_mul_i32 s20, s20, {mult}
        s_add_u32 s20, s20, s{64+2*(NST-1)}
        DG_L{n}:
        s_memrealtime s[22:23]
        s_waitcnt lgkmcnt(0)
        s_sub_u32 s21, s20, s22
        s_cmp_gt_i32 s21, 0
        s_cbranch_scc1 DG_L{n}
        DG_E{n}:
        """)
    if PROF:
        A("s_waitcnt vmcnt(0)")
        stamp(NST - 1)
        A(f"s_lshl_b32 s62, s2, 3\ns_add_u32 s62, s62, s60\ns_lshl_b32 s62, s62, 6\ns_add_u32 s62, s62, {WS_PROF:#x}\nv_mov_b32 v1, 0")
        for i in range(NST):
            A(f"v_mov_b32 v0, s{64+2*i}\nbuffer_store_dword v0, v1, s[12:15], s62 offen offset:{4*i}")
    A("s_endpgm")
def srd(d, base, size):
    A(f"s_mov_b32 s{d}, s{base}\ns_mov_b32 s{d+1}, s{base+1}\ns_mov_b32 s{d+2}, {size:#x}\ns_mov_b32 s{d+3}, 0x00020000")
def cmul(d, a, b):
    A(f"v_pk_mul_f32 {vr(d,2)}, {vr(a,2)}, {vr(b,2)} op_sel_hi:[1,0]")
    A(f"v_pk_fma_f32 {vr(d,2)}, {vr(a,2)}, {vr(b,2)}, {vr(d,2)} op_sel:[1,1,0] op_sel_hi:[0,1,1] neg_lo:[1,0,0]")
def poll(lbl, va, vt, soff="0", slp=2):
    A(f"""
    s_mov_b32 s52, 0
    {lbl}:
    buffer_load_dword {vt}, {va}, s[12:15], {soff} offen sc1
    s_add_u32 s52, s52, 1
    s_waitcnt vmcnt(0)
    v_cmp_ne_u32 vcc, s54, {vt}
    s_cmp_lt_u32 s52, 0x40000
    s_cbranch_vccz {lbl}_D
    s_mov_b64 exec, vcc
    s_sleep {slp}
    s_cbranch_scc1 {lbl}
    {lbl}_D:
    s_mov_b64 exec, -1
    """)

def q_of(c, tau):
    base = (c >> 1) * 7
    if c == 15: return {0: (base + 4, 0), 1: (base + 4, 1), 2: (base + 3, 1)}[tau]
    o = base + (4 if (c & 1) else 0)
    if tau == 3: return (base + 3, c & 1)
    return {0: (o, 0), 1: (o, 1), 2: (o + 1, 0), 6: (o + 1, 1), 4: (o + 2, 0), 5: (o + 2, 1)}[tau]
Q_TILES = {}
for phi in range(108):
    q, hf = q_of(phi // 7, phi % 7)
    Q_TILES.setdefault(q, [None, None])[hf] = phi

def newq(q):
    cp, r = divmod(q, 7)
    return 3 * cp + (r >> 1) if r & 1 else 23 + 4 * cp + (r >> 1)
assert sorted(newq(q) for q in range(54)) == list(range(54))
TAB_STRIDE = 272
TAB_HI = 32 * TAB_STRIDE
K1_TAB = 2 * TAB_HI
K1_CH = K1_TAB
K1_TB = 4 * K1_TAB
KC1 = 2240
K1_BASE = 4608
K1_UREV = 8 * K1_TAB
K1_SCR = K1_UREV + 4 * 4608
K1_R = K1_SCR + 512
K1_CNT = K1_R + 4 * 1280
K1_SCR2 = TAB_HI + 29 * TAB_STRIDE + 48
LDS_SIZE = 163840
assert K1_CNT + 512 == LDS_SIZE
TAG_INC = 0x9E3779B9
HI_ROWS = [(0, 4), (1, 5), (2, 6), (3, 7), (4, 8), (256, 260), (258, 262), (260, 264),
           (512, 768), (516, 772), (520, 776), (1032, 1288), (1544, 1800)]
def hi_rows_of(e):
    return [(r & 3) + 8 * (r >> 2) + 4 * h for r, p in enumerate(HI_ROWS) for h, ee in enumerate(p) if ee == e]
XS = 16384; WSL = 28672; WB = 3 * XS; G1_END = WB + 3 * WSL; RES_LDS = 153600
FSH = 6

def map2():
    A("""
    s_and_b32 s3, s2, 7
    s_lshr_b32 s5, s2, 3
    s_lshr_b32 s36, s3, 1
    s_lshl_b32 s36, s36, 3
    s_and_b32 s37, s5, 7
    s_add_u32 s36, s36, s37
    s_and_b32 s16, s3, 1
    s_lshl_b32 s38, s16, 2
    s_lshl_b32 s16, s16, 3
    s_add_u32 s16, s16, s37
    s_lshr_b32 s18, s5, 3
    s_add_u32 s37, s38, s18
    s_lshr_b32 s17, s3, 1
    s_lshl_b32 s17, s17, 2
    s_add_u32 s17, s17, s18
    s_lshr_b32 s18, s4, 1
    s_and_b32 s19, s4, 1
    v_lshlrev_b32 v4, 4, v1
    """)


def rowaddr(t, va, vb):
    A(f"""
    s_lshr_b32 s42, s{t}, 8
    s_lshl_b32 s42, s42, 9
    s_bfe_u32 s43, s{t}, 0x40002
    s_lshl_b32 s43, s43, 5
    s_add_u32 s42, s42, s43
    s_bfe_u32 s43, s{t}, 0x20006
    s_lshl_b32 s43, s43, 1
    s_add_u32 s42, s42, s43
    s_and_b32 s43, s{t}, 3
    s_lshl_b32 s43, s43, 3
    s_add_u32 s42, s42, s43
    v_lshrrev_b32 v7, 5, v1
    v_add_u32 v7, s42, v7
    v_mul_u32_u24 v7, 1280, v7
    v_and_b32 {vb}, 31, v1
    v_lshl_add_u32 {va}, {vb}, 4, v7
    v_lshl_add_u32 {vb}, {vb}, 3, v7
    """)
def rowload(b, va, vb):
    A(f"global_load_dwordx4 {vr(b,4)}, {va}, s[16:17]\nglobal_load_dwordx4 {vr(b+4,4)}, {va}, s[16:17] offset:512\nglobal_load_dwordx2 {vr(b+8,2)}, {vb}, s[16:17] offset:1024")
def rowstats(soff):
    A("v_mov_b32 v60, 0\nv_mov_b32 v61, 0\nv_mov_b32 v62, 0x3f803f80\nv_lshrrev_b32 v63, 5, v1\nv_lshlrev_b32 v63, 3, v63")
    for r in range(48, 58): A(f"v_dot2c_f32_bf16 v60, v62, v{r}\nv_dot2c_f32_bf16 v61, v{r}, v{r}")
    A("s_nop 2")
    for rot in (8, 4, 2, 1):
        A(f"v_add_f32_dpp v60, v60, v60 row_ror:{rot} row_mask:0xf bank_mask:0xf\nv_add_f32_dpp v61, v61, v61 row_ror:{rot} row_mask:0xf bank_mask:0xf\ns_nop 0")
    A(f"""
    v_mov_b32 v58, v60
    v_mov_b32 v59, v61
    s_nop 1
    v_permlane16_swap_b32 v60, v58
    v_permlane16_swap_b32 v61, v59
    s_nop 0
    v_pk_add_f32 v[60:61], v[60:61], v[58:59]
    v_mul_f32 v60, 0x3acccccd, v60
    v_mul_f32 v61, 0x3acccccd, v61
    v_fma_f32 v61, -v60, v60, v61
    v_max_f32 v61, 0, v61
    v_cvt_pk_bf16_f32 v61, v61, v61
    v_lshlrev_b32 v61, 16, v61
    v_add_f32 v61, 0x3727c5ac, v61
    v_cvt_pk_bf16_f32 v61, v61, v61
    v_lshlrev_b32 v61, 16, v61
    v_sqrt_f32 v61, v61
    s_nop 0
    v_cvt_pk_bf16_f32 v60, v60, v61
    v_mov_b32 v61, s53
    buffer_store_dwordx2 v[60:61], v63, s[12:15], {soff} offen sc1
    """)
NWR = E("NWR", 1)
NEK = 2 * (2 + NWR)
ELAG = E("ELAG", 5)
NCW = E("NCW", 2)
NT0 = 160 * NCW
NT1 = NT0 + 216
WSOFF = int(os.environ.get("WSOFF", "0"), 0)
WSOFF_CODE = f"s_add_u32 s6, s6, {WSOFF:#x}\ns_addc_u32 s7, s7, 0\ns_cmp_eq_u32 s61, 0" if WSOFF else ""
def gen():
    G = 16; P = 10
    A("s_cmp_ge_u32 s2, 256\ns_cbranch_scc1 K_END")
    stamp(0, False)
    A(f"""
    s_load_dwordx16 s[16:31], s[0:1], 0
    s_load_dwordx2 s[32:33], s[0:1], 64
    s_load_dwordx4 s[36:39], s[0:1], 80
    s_load_dwordx4 s[92:95], s[0:1], 96
    s_load_dwordx2 s[6:7], s[0:1], 120
    v_lshrrev_b32 v2, 6, v0
    v_and_b32 v1, 63, v0
    v_readfirstlane_b32 s60, v2
    v_and_b32 v0, 255, v0
    s_getpc_b64 s[62:63]
    K1_PC:
    s_lshr_b32 s40, s2, 3
    s_and_b32 s40, s40, 3
    s_lshl_b32 s40, s40, 13
    v_lshl_add_u32 v8, v1, 7, s40
    v_min_u32 v8, CODE_END - K1_PC - 4, v8
    s_cmp_lg_u32 s60, 3
    s_cbranch_scc1 K1_NOPF
    s_cmp_lt_u32 s2, {E('PFMIN', 160)}
    s_cbranch_scc1 K1_NOPF2
    global_load_dword v9, v8, s[62:63]
    K1_NOPF2:
    v_mov_b32 v8, {K1_CNT}
    v_mov_b64 v[10:11], 0
    ds_write_b64 v8, v[10:11]
    ds_write_b64 v8, v[10:11] offset:8
    K1_NOPF:
    s_and_b32 s4, s60, 3
    s_lshr_b32 s61, s60, 2
    s_and_b32 s40, s2, 7
    s_lshr_b32 s41, s2, 3
    s_mul_i32 s57, s40, 20
    s_add_u32 s57, s57, s41
    s_lshl_b32 s5, s57, 2
    s_add_u32 s5, s5, s4
    s_lshl_b32 s43, s5, 8
    v_lshl_add_u32 v6, v1, 2, s43
    s_lshl_b32 s3, s57, 3
    s_mul_i32 s55, s4, {K1_CH}
    v_mul_u32_u24 v238, 10240, v0
    v_add_u32 v238, s3, v238
    s_mul_i32 s46, s41, 103
    v_lshrrev_b32 v2, 1, v0
    v_min_u32 v2, 102, v2
    v_add_u32 v2, s46, v2
    v_min_u32 v2, 2047, v2
    v_mul_u32_u24 v2, 1280, v2
    v_and_b32 v3, 1, v0
    v_mul_u32_u24 v3, 156, v3
    s_mul_i32 s46, s40, 160
    v_add3_u32 v2, v2, v3, s46
    s_cmp_ge_u32 s2, 160
    s_cbranch_scc1 K1_PREP
    s_mul_i32 s59, s60, 160
    s_add_u32 s59, s59, s2
    """)
    rowaddr(59, "v4", "v5")
    A(f"""
    s_cmp_lt_u32 s60, {NCW}
    s_waitcnt lgkmcnt(0)
    s_cbranch_scc0 K1_NOS
    """)
    rowload(48, "v4", "v5")
    A("""
    K1_NOS:
    s_cmp_eq_u32 s61, 0
    s_cbranch_scc1 K1_NOT
    global_load_dword v242, v2, s[16:17]
    K1_NOT:
    """)
    for i in range(6): A(f"global_load_dword v{P+i}, v6, {sr(18+2*i,2)}")
    A("""
    s_load_dword s54, s[6:7], 0
    s_load_dwordx2 s[42:43], s[30:31], s3
    s_load_dwordx2 s[44:45], s[32:33], s3
    s_cbranch_scc1 K1_C
    """)
    XR = 32
    srd(12, 6, WS_SIZE)
    A(f"""
    v_lshlrev_b32 v235, 4, v0
    v_sub_u32 v235, {K1_UREV + 4080}, v235
    v_lshlrev_b32 v236, 5, v0
    v_add_u32 v236, {K1_BASE}, v236
    v_add_u32 v237, {2*K1_CH}, v236
    s_lshl_b32 s58, s4, 12
    s_add_u32 s58, s58, {WS_ST:#x}
    v_lshlrev_b32 v5, 4, v1
    v_add_u32 v239, 5120, v238
    s_waitcnt vmcnt(0)
    """)
    def gather(k): A(f"global_load_dwordx2 {vr(XR+2*k,2)}, v{238 + k//4}, s[16:17] offset:{(k%4)*1280}")
    NG0 = E("NG0", 2)
    for k in range(NG0): gather(k)
    A("s_branch K1_C0")
    A("K1_C:")
    A(f"""
    s_mul_i32 s56, s4, 4608
    s_add_u32 s56, s56, {K1_UREV}
    s_mul_i32 s46, s4, 1280
    s_add_u32 s46, s46, {K1_R}
    s_mov_b32 m0, s46
    v_mov_b64 v[240:241], 0
    v_and_b32 v46, 31, v1
    v_lshrrev_b32 v47, 5, v1
    v_mul_u32_u24 v228, {TAB_STRIDE}, v46
    v_lshl_add_u32 v228, v47, 4, v228
    v_add_u32 v228, s55, v228
    v_lshlrev_b32 v2, 4, v46
    v_add_u32 v2, s55, v2
    v_lshl_add_u32 v229, v47, 3, v2
    v_lshl_add_u32 v230, v47, 9, v2
    v_and_b32 v2, 1, v46
    v_mul_u32_u24 v2, 640, v2
    v_and_b32 v3, 30, v46
    v_lshl_add_u32 v3, v47, 5, v3
    v_sub_u32 v2, v2, v3
    v_add_u32 v231, s46, v2
    v_lshl_add_u32 v2, v1, 3, s56
    ds_write_b64 v2, v[240:241] offset:4096
    """)
    for k in range(5): A(f"ds_write_addtid_b32 v240 offset:{256*k}")
    srd(12, 6, WS_SIZE)
    A(f"""
    v_and_b32 v2, 15, v1
    v_lshrrev_b32 v3, 4, v1
    v_add_u32 v4, 1, v2
    v_and_b32 v5, 1, v4
    v_mul_u32_u24 v5, {KC1}, v5
    v_and_b32 v4, 0xfffe, v4
    v_lshl_add_u32 v4, v4, 1, v5
    v_lshl_add_u32 v4, v3, 4, v4
    v_add_u32 v232, s55, v4
    v_add_u32 v233, 1024, v232
    v_add_u32 v239, 2048, v232
    v_lshlrev_b32 v4, 5, v2
    v_lshlrev_b32 v5, 4, v3
    v_sub_u32 v234, v5, v4
    v_add_u32 v234, {4064 - 3584}, v234
    v_add_u32 v234, s56, v234
    v_lshl_add_u32 v235, v2, 6, v5
    v_add_u32 v235, s55, v235
    v_sub_u32 v6, 15, v2
    v_lshl_add_u32 v6, v3, 2, v6
    v_and_b32 v7, 1, v6
    v_mul_u32_u24 v7, 320, v7
    v_and_b32 v6, 0xfffe, v6
    v_lshl_add_u32 v6, v6, 1, v7
    v_add3_u32 v236, v6, 4, s46
    v_lshrrev_b32 v5, 1, v3
    v_lshl_add_u32 v4, v5, 4, v4
    v_and_b32 v5, 1, v3
    v_lshl_add_u32 v237, v5, 9, v4
    v_cmp_eq_u32 s[36:37], 7, v1
    v_cmp_gt_u32 s[38:39], 2, v1
    v_cmp_eq_u32 s[48:49], 2, v1
    v_cmp_eq_u32 s[50:51], 0, v1
    v_lshl_add_u32 v4, v3, 3, v2
    s_mov_b32 s46, 0x10001
    """)
    for ty, (c, wdt) in enumerate([(-20, 7), (-19, 9)]):
        A(f"v_add_u32 v5, {c + 20}, v4\nv_min_u32 v5, 31, v5\nv_mov_b32 v6, {((1 << wdt) - 1) << 20:#x}\nv_lshrrev_b32 v6, v5, v6\nv_and_b32 v6, 0xff, v6\nv_lshl_or_b32 v6, v6, 15, v6")
        for j in range(4):
            A(f"v_lshrrev_b32 v7, {2*j}, v6\nv_and_b32 v7, s46, v7\nv_mul_u32_u24 v{244+4*ty+j}, 0x3f80, v7")
    A(f"""
    s_cmp_lt_u32 s60, {NCW}
    s_cbranch_scc0 K1_CW
    s_lshl_b32 s59, s59, 4
    s_add_u32 s59, s59, {WS_ST:#x}
    s_waitcnt vmcnt(6) lgkmcnt(0)
    s_add_u32 s53, s54, {TAG_INC:#x}
    """)
    rowstats("s59")
    A("s_waitcnt vmcnt(1)\ns_branch K1_C0\nK1_CW:\ns_waitcnt vmcnt(0)")
    A("K1_C0:")
    ACC = 96; DT = 9
    Z1, Z8, Z16, Z256 = 48, 50, 52, 54
    BB, CC = 56, 58
    T0 = 60
    H = {e: 72 + 2 * e for e in range(9)}
    CV = [90, 91, 92, 93, 94, 95]; cvi = [0]
    def put(src, rows, hi):
        t = CV[cvi[0] % len(CV)]; cvi[0] += 1
        A(f"v_cvt_pk_bf16_f32 v{t}, v{src}, {'-' if hi else ''}v{src+1}")
        for r in rows: A(f"ds_write_addtid_b32 v{t} offset:{r*TAB_STRIDE + (TAB_HI if hi else 0)}")
    SPLIT = E("SPLIT", 0)
    A(f"""
    s_lshl_b32 s62, s4, 4
    s_mov_b32 s59, s61
    s_waitcnt lgkmcnt(0)
    s_add_u32 s54, s54, {TAG_INC:#x}
    """)
    stamp(1)
    A(f"""
    s_lshr_b64 s[42:43], s[42:43], s62
    s_lshl_b32 s42, s42, 16
    v_mov_b32 v{DT}, s42
    v_mul_f32 v{DT}, 0x3fb8aa3b, v{DT}
    v_exp_f32 v{DT}, v{DT}
    s_nop 0
    v_cvt_pk_bf16_f32 v{DT}, v{DT}, v{DT}
    v_lshlrev_b32 v{DT}, 16, v{DT}
    K1_PASS:
    s_mul_i32 s56, s59, {K1_TB}
    s_add_u32 s56, s56, s55
    s_mov_b32 m0, s56
    s_lshl_b32 s47, s59, 4
    v_lshrrev_b32 v{T0}, s47, v{P}
    v_lshrrev_b32 v{T0+1}, s47, v{P+1}
    v_lshlrev_b32 v{T0}, 16, v{T0}
    v_lshlrev_b32 v{T0+1}, 16, v{T0+1}
    v_mul_f32 v{T0}, v{T0}, v{DT}
    v_mul_f32 v{T0+1}, v{T0+1}, v{DT}
    v_mul_f32 v{T0+8}, 0x3fb8aa3b, v{T0}
    v_mul_f32 v{T0+9}, 0.15915494, v{T0+1}
    s_cmp_eq_u32 s61, 0
    """)
    if SPLIT: A("s_cbranch_scc0 K1_HI")
    A(f"""
    v_mul_f32 v{T0+2}, 0x41000000, v{T0+8}
    v_mul_f32 v{T0+3}, 0x41000000, v{T0+9}
    v_fract_f32 v{T0+3}, v{T0+3}
    v_exp_f32 v{T0+2}, v{T0+2}
    v_cos_f32 v{Z8}, v{T0+3}
    v_sin_f32 v{Z8+1}, v{T0+3}
    v_mov_b32 v95, 0x3f80
    .p2align 3
    ds_write_addtid_b32 v95 offset:0
    v_pk_mul_f32 {vr(Z8,2)}, {vr(Z8,2)}, {vr(T0+2,2)} op_sel_hi:[1,0]
    """)
    cmul(Z16, Z8, Z8)
    put(Z8, [1], False); put(Z16, [2], False)
    Lreg = {1: Z8, 2: Z16}
    gk = [NG0]
    def maybe_gather():
        if gk[0] < min(8, NG0 + E("NG1", 4)):
            A(f"s_cbranch_scc1 K1_NG{gk[0]}")
            gather(gk[0])
            A(f"K1_NG{gk[0]}:\ns_nop 0")
            gk[0] += 1
    for l in range(3, 32):
        d = T0 + 2 * (l % 4); Lreg[l] = d
        cmul(d, Lreg[l-2], Z16); put(d, [l], False)
        if l in (12, 26) and not SPLIT: maybe_gather()
    if SPLIT: A("s_cmp_eq_u32 s59, 0\ns_cbranch_scc0 K1_PEND\nK1_HI:")
    A(f"""
    v_lshrrev_b32 v{BB}, s47, v{P+2}
    v_lshrrev_b32 v{BB+1}, s47, v{P+3}
    v_lshrrev_b32 v{CC}, s47, v{P+4}
    v_lshrrev_b32 v{CC+1}, s47, v{P+5}
    v_lshlrev_b32 v{BB}, 16, v{BB}
    v_lshlrev_b32 v{BB+1}, 16, v{BB+1}
    v_lshlrev_b32 v{CC}, 16, v{CC}
    v_lshlrev_b32 v{CC+1}, 16, v{CC+1}
    v_mul_f32 v{T0+4}, 0x43800000, v{T0+8}
    v_mul_f32 v{T0+5}, 0x43800000, v{T0+9}
    v_fract_f32 v{T0+9}, v{T0+9}
    v_fract_f32 v{T0+5}, v{T0+5}
    v_exp_f32 v{T0+8}, v{T0+8}
    v_exp_f32 v{T0+4}, v{T0+4}
    v_cos_f32 v{Z1}, v{T0+9}
    v_sin_f32 v{Z1+1}, v{T0+9}
    v_cos_f32 v{Z256}, v{T0+5}
    v_sin_f32 v{Z256+1}, v{T0+5}
    v_mul_f32 v{BB}, v{BB}, v{DT}
    v_mul_f32 v{BB+1}, v{BB+1}, v{DT}
    .p2align 3
    """)
    cmul(H[0], CC, BB)
    A(f"v_pk_mul_f32 {vr(Z1,2)}, {vr(Z1,2)}, {vr(T0+8,2)} op_sel_hi:[1,0]")
    A(f"v_pk_mul_f32 {vr(Z256,2)}, {vr(Z256,2)}, {vr(T0+4,2)} op_sel_hi:[1,0]")
    put(H[0], hi_rows_of(0), True)
    for e in range(1, 9):
        cmul(H[e], H[e-1], Z1); put(H[e], hi_rows_of(e), True)
        if e == 3 or (SPLIT and e == 8): maybe_gather()
    cur = {e: H[e] for e in (0, 2, 4, 6, 8)}
    spare = [H[1], H[3], H[5], H[7], T0, T0 + 2]
    for blk, es in [(1, (0, 2, 4, 6, 8)), (2, (0, 4, 8)), (3, (0, 4, 8)), (4, (8,)), (5, (8,)), (6, (8,)), (7, (8,))]:
        for e in es:
            d = spare.pop(0); cmul(d, cur[e], Z256); put(d, hi_rows_of(256 * blk + e), True)
            spare.append(cur[e]); cur[e] = d
        if blk == 2 or (SPLIT and blk == 7): maybe_gather()
    if SPLIT: A("s_mov_b32 s59, 1\ns_cbranch_scc1 K1_PASS")
    else: A("s_cbranch_scc1 K1_PEND")
    stamp(12)
    A("s_mov_b32 s52, 0\ns_waitcnt lgkmcnt(0)\ns_barrier")
    for k in range(gk[0], 8): gather(k)
    A("K1_POLL:")
    for k in range(4): A(f"buffer_load_dwordx4 {vr(G+4*k,4)}, v5, s[12:15], s58 offen offset:{1024*k} sc1")
    A("s_add_u32 s52, s52, 1\ns_waitcnt vmcnt(0)")
    for k in range(8): A(f"v_xor_b32 v{48+k}, s54, v{G+2*k+1}")
    A("""
    v_or3_b32 v48, v48, v49, v50
    v_or3_b32 v51, v51, v52, v53
    v_or3_b32 v48, v48, v54, v55
    v_or_b32 v48, v48, v51
    v_cmp_ne_u32 vcc, 0, v48
    s_cmp_lt_u32 s52, 0x40000
    s_cbranch_vccz K1_GOT
    s_sleep 4
    s_cbranch_scc1 K1_POLL
    K1_GOT:
    """)
    stamp(10)
    if PROF: A("s_add_u32 s86, s64, s52")
    X = 48; RS, NB = 80, 88; U = 112; UP = 96
    for r in range(8):
        A(f"v_and_b32 v{RS+r}, 0xffff0000, v{G+2*r}\nv_rcp_f32 v{RS+r}, v{RS+r}\nv_lshlrev_b32 v{NB+r}, 16, v{G+2*r}")
    for r in range(0, 8, 2):
        A(f"v_pk_mul_f32 {vr(NB+r,2)}, {vr(NB+r,2)}, {vr(RS+r,2)} neg_lo:[1,0] neg_hi:[1,0]")
    for c in range(4):
        for r in range(8):
            src = XR + 2 * r + (c >> 1)
            A(f"v_and_b32 v{X+8*c+r}, 0xffff0000, v{src}" if c & 1 else f"v_lshlrev_b32 v{X+8*c+r}, 16, v{src}")
        for r in range(0, 8, 2): A(f"v_pk_fma_f32 {vr(U+8*c+r,2)}, {vr(X+8*c+r,2)}, {vr(RS+r,2)}, {vr(NB+r,2)}")
        for k in range(4): A(f"v_cvt_pk_bf16_f32 v{UP+4*c+k}, v{U+8*c+7-2*k}, v{U+8*c+6-2*k}")
        A(f"ds_write_b128 v235, {vr(UP+4*c,4)} offset:{c * 4608}")
    A("s_waitcnt lgkmcnt(0)\ns_barrier")
    stamp(2)
    for c in range(4):
        ba = "v236" if c < 2 else "v237"; co = (c & 1) * K1_CH
        A(f"ds_write_b128 {ba}, {vr(X+8*c,4)} offset:{co}\nds_write_b128 {ba}, {vr(X+8*c+4,4)} offset:{co+16}")
    A(f"""
    s_cmp_lg_u32 s4, 0
    s_cbranch_scc1 K1_NOBUMP
    v_and_b32 v6, 31, v1
    v_lshlrev_b32 v6, 2, v6
    v_mov_b32 v7, s54
    s_lshl_b32 s52, s2, 7
    s_add_u32 s52, s52, {WS_HR1:#x}
    buffer_store_dword v7, v6, s[12:15], s52 offen sc1
    K1_NOBUMP:
    s_waitcnt lgkmcnt(0)
    s_barrier
    s_branch K2_LOADER
    """)
    A("K1_PEND:\ns_mov_b32 m0, s55\ns_waitcnt lgkmcnt(0)")
    FA, FB = 112, 144
    def kmf(tb, first):
        for ks in range(8):
            A(f"ds_read_b128 {vr(FA+4*ks,4)}, v228 offset:{tb + TAB_HI + ks*32}\nds_read_b128 {vr(FB+4*ks,4)}, v228 offset:{tb + ks*32}")
        for ks in range(8):
            A(f"s_waitcnt lgkmcnt({14-2*ks})")
            A(f"v_mfma_f32_32x32x16_bf16 {vr(ACC,16)}, {vr(FA+4*ks,4)}, {vr(FB+4*ks,4)}, {'0' if first and ks == 0 else vr(ACC,16)}")
    kmf(0, True)
    for i in range(0, 32, 2): A(f"v_mov_b64 {vr(16+i,2)}, 0")
    stamp(12)
    A("s_barrier")
    A(f"v_add_u32 v228, {K1_TB}, v228")
    kmf(0, False)
    a = lambda r: f"v{ACC+r}"
    O = 112
    def pk(d, x, y): A(f"v_cvt_pk_bf16_f32 v{d}, {x}, {y}")
    A(f"""
    s_mov_b64 exec, 0xff
    ds_write_addtid_b32 v240
    s_mov_b64 exec, -1
    s_lshr_b64 s[44:45], s[44:45], s62
    s_lshl_b32 s44, s44, 16
    v_mov_b32 v2, s44
    v_cndmask_b32 v2, 0, v2, s[50:51]
    s_nop 4
    v_add_f32 {a(0)}, {a(0)}, v2
    v_readlane_b32 s52, {a(10)}, 63
    v_readfirstlane_b32 s53, {a(0)}
    """)
    pk(O+0, a(0), a(1)); pk(O+1, a(2), a(3)); pk(O+2, a(1), a(2)); pk(O+3, a(3), a(4))
    A(f"ds_write_b64 v229, {vr(O,2)} offset:32\nds_write_b64 v229, {vr(O+2,2)} offset:{KC1+32}")
    p, q, r_ = a(5), a(6), a(7)
    pk(O+4, p, p); pk(O+5, q, r_); pk(O+6, p, q); pk(O+7, r_, r_)
    A(f"ds_write_b64 v229, {vr(O+4,2)} offset:{32+512}\nds_write_b64 v229, {vr(O+6,2)} offset:{KC1+32+512}")
    p, q, r_ = a(8), a(9), a(10)
    pk(O+8, p, p); pk(O+9, p, q); pk(O+10, q, q); pk(O+11, r_, r_)
    pk(O+12, p, p); pk(O+13, q, q); pk(O+14, q, r_); pk(O+15, r_, r_)
    A(f"ds_write_b128 v230, {vr(O+8,4)} offset:{32+1024}\nds_write_b128 v230, {vr(O+12,4)} offset:{KC1+32+1024}")
    A(f"""
    v_cvt_pk_bf16_f32 v2, 0, s53
    v_cvt_pk_bf16_f32 v3, s52, s52
    v_cvt_pk_bf16_f32 v4, s52, 0
    v_cndmask_b32 v2, 0, v2, s[36:37]
    v_cndmask_b32 v3, 0, v3, s[38:39]
    v_cndmask_b32 v4, v3, v4, s[48:49]
    s_mov_b64 exec, 0xff
    ds_write_addtid_b32 v2 offset:{KC1}
    s_mov_b64 exec, 0xffff
    ds_write_addtid_b32 v4 offset:{32+2048}
    ds_write_addtid_b32 v3 offset:{KC1+32+2048}
    s_mov_b64 exec, -1
    """)
    pk(5, a(11), a(12))
    D = 16; SET = [48, 96]
    def loads(st, extra, which="AB"):
        ops = []; Ab, Bb = SET[st], SET[st] + 16
        for k in range(8):
            o = (k & 1) * 128 + extra // 4
            if "B" in which: ops.append(f"ds_read_b128 {vr(Bb+4*k,4)}, v234 offset:{512*(7-k) + extra}")
            if "A" in which and k < 4:
                ops.append(f"ds_read2_b32 {vr(Ab+4*k,2)}, v{232 + k//2} offset0:{o} offset1:{o+1}")
                ops.append(f"ds_read2_b32 {vr(Ab+4*k+2,2)}, v{232 + k//2} offset0:{o+2} offset1:{o+3}")
        return ops
    def mfmas(st):
        Ab, Bb = SET[st], SET[st] + 16
        return [f"v_mfma_f32_16x16x32_bf16 {vr(D+4*i,4)}, {vr(Ab+4*s1,4)}, {vr(Bb+4*(i-s1),4)}, {vr(D+4*i,4)}" for s1 in range(4) for i in range(s1, 8)]
    RK = 144; A32 = 176; WF = 180; U9 = 180; WD_ = 196; BS = 196
    A(f"""
    ds_write_b16 v231, v5 offset:{4 + 126}
    ds_write_b16 v231, v5 offset:{320 + 4 + 124}
    ds_write_b16_d16_hi v231, v5 offset:{4 + 126 - 64}
    ds_write_b16_d16_hi v231, v5 offset:{320 + 4 + 124 - 64}
    ds_read2_b32 {vr(A32,2)}, v239 offset0:0 offset1:1
    ds_read2_b32 {vr(A32+2,2)}, v239 offset0:2 offset1:3
    """)
    for o in loads(0, 0, "A"): A(o)
    for ty in range(2):
        for oi in range(4):
            o = ty * 160 + (48 - 16 * oi) // 2
            A(f"ds_read2_b32 {vr(RK+(ty*4+oi)*4,2)}, v236 offset0:{o} offset1:{o+1}\nds_read2_b32 {vr(RK+(ty*4+oi)*4+2,2)}, v236 offset0:{o+8} offset1:{o+9}")
    A("s_barrier")
    stamp(2)
    bl = loads(0, 0, "B")
    for o in bl[:4]: A(o)
    for k in range(4): A(f"ds_read_b128 {vr(U9+4*k,4)}, v234 offset:{512*(7-k) + 16}")
    for o in bl[4:]: A(o)
    B0 = SET[0] + 16
    A("s_mov_b32 s52, 0\ns_waitcnt lgkmcnt(8)")
    for k in range(4): A(f"v_mfma_f32_16x16x32_bf16 {vr(WD_+4*k,4)}, {vr(B0+4*k,4)}, v[244:247], 0")
    A("s_waitcnt lgkmcnt(4)")
    for k in range(4): A(f"v_mfma_f32_16x16x32_bf16 {vr(WD_+16+4*k,4)}, {vr(U9+4*k,4)}, v[248:251], 0")
    for i in range(4, 8): A(f"v_mfma_f32_16x16x32_bf16 {vr(D+4*i,4)}, {vr(A32,4)}, {vr(B0+4*(i-4),4)}, {vr(D+4*i,4)}")
    far = [f"v_mfma_f32_16x16x32_bf16 {vr(D+4*i,4)}, {vr(WF+(ty*2+ks)*4,4)}, {vr(RK+(ty*4+i-4-2*ks)*4,4)}, {vr(D+4*i,4)}"
           for ty in range(2) for i, ks in [(4, 0), (5, 0), (6, 0), (7, 0), (6, 1), (7, 1)]]
    def fin(i):
        ops = [f"v_pk_add_f32 {vr(D+4*i,2)}, {vr(D+4*i,2)}, {vr(BS+4*i,2)}", f"v_pk_add_f32 {vr(D+4*i+2,2)}, {vr(D+4*i+2,2)}, {vr(BS+4*i+2,2)}",
               f"v_cvt_pk_bf16_f32 v{48+2*i}, v{D+4*i}, v{D+4*i+1}", f"v_cvt_pk_bf16_f32 v{48+2*i+1}, v{D+4*i+2}, v{D+4*i+3}"]
        if i & 1:
            o = 48 + 2 * (i - 1)
            ops += ["s_nop 1", f"v_permlane16_swap_b32 v{o}, v{o+2}", f"v_permlane16_swap_b32 v{o+1}, v{o+3}",
                    f"buffer_store_dwordx4 {vr(o,4)}, v237, s[12:15], s47 offen offset:{512*(i-1)} sc1"]
        return ops
    def body(last):
        for st in range(2):
            A("s_waitcnt lgkmcnt(0)")
            m = mfmas(st)
            if last and st == 1:
                Ab, Bb = SET[st], SET[st] + 16
                pend = []
                for i in range(8):
                    for s1 in range(min(i, 3) + 1):
                        A(f"v_mfma_f32_16x16x32_bf16 {vr(D+4*i,4)}, {vr(Ab+4*s1,4)}, {vr(Bb+4*(i-s1),4)}, {vr(D+4*i,4)}")
                        for _ in range(2):
                            if pend: A(pend.pop(0))
                    if i >= 3: pend += fin(i - 3)
                for o in pend: A(o)
                for i in range(5, 8):
                    for o in fin(i): A(o)
                continue
            A("s_add_u32 s52, s52, 1")
            ld = loads(1 - st, 64 * (st + 1))
            if last:
                cv = [f"v_cvt_pk_bf16_f32 v{WF+k}, v{WD_+2*k}, v{WD_+2*k+1}" for k in range(16)]
                ld = [x + "\n" + y for x, y in zip(ld, cv)]
                ld += ["s_lshl_b32 s47, s5, 12", f"s_add_u32 s47, s47, {WS_HT:#x}"]
                ld += [f"ds_read_b128 {vr(BS+4*i,4)}, v235 offset:{K1_BASE + 1024*i}" for i in range(8)]
                m = m + far
            for k, x in enumerate(m):
                A(x)
                if k < len(ld): A(ld[k])
                if not last and st == 1 and 20 <= k < 23:
                    rr = (232, 233, 234)[k - 20]; A(f"v_add_u32 v{rr}, 128, v{rr}")
    A(".p2align 3\nK1_CONV:")
    body(False)
    A(f"s_cmp_lg_u32 s52, {E('BDAT', 2)}\ns_cbranch_scc1 K1_CONV2\ns_barrier\nK1_CONV2:\ns_cmp_lt_u32 s52, 6\ns_cbranch_scc1 K1_CONV")
    body(True)
    A("s_branch K2_COMP")

    A(f"""
    K1_PREP:
    s_sub_u32 s3, s2, 160
    s_lshl_b32 s46, s3, 3
    s_add_u32 s46, s46, s60
    s_add_u32 s46, s46, {NT1 - 432}
    s_lshl_b32 s47, s3, 2
    s_add_u32 s47, s47, s4
    s_add_u32 s47, s47, {NT0}
    s_cmp_lt_u32 s3, 54
    s_cselect_b32 s46, s47, s46
    s_cselect_b32 s44, s61, 1
    s_cselect_b32 s47, 1024, 0
    s_mul_i32 s45, s60, 42
    s_add_u32 s45, s45, s3
    s_add_u32 s45, s45, {NT1 + 336 - 54}
    s_add_u32 s47, s47, s45
    """)
    rowaddr(46, "v4", "v5"); rowaddr(47, "v12", "v13")
    A(f"""
    s_waitcnt lgkmcnt(0)
    s_load_dword s54, s[6:7], 0
    s_mov_b32 s12, s6
    s_mov_b32 s13, s7
    s_mov_b32 s14, {WS_SIZE:#x}
    s_mov_b32 s15, 0x00020000
    s_cmp_eq_u32 s44, 0
    s_cbranch_scc1 K1_PREPW
    """)
    rowload(48, "v4", "v5")
    A("s_cmp_lt_u32 s47, 1024\ns_cselect_b32 s45, 2, 1\ns_cbranch_scc0 K1_ST0")
    rowload(64, "v12", "v13")
    A(f"""
    K1_ST0:
    s_lshl_b32 s46, s46, 4
    s_add_u32 s46, s46, {WS_ST:#x}
    s_lshl_b32 s47, s47, 4
    s_add_u32 s47, s47, {WS_ST:#x}
    s_waitcnt vmcnt(0) lgkmcnt(0)
    s_add_u32 s53, s54, {TAG_INC:#x}
    K1_ST1:
    """)
    rowstats("s46")
    for r in range(0, 10, 2): A(f"v_mov_b64 {vr(48+r,2)}, {vr(64+r,2)}")
    A("s_mov_b32 s46, s47\ns_sub_u32 s45, s45, 1\ns_cmp_lg_u32 s45, 0\ns_cbranch_scc1 K1_ST1")
    stamp(1)
    A(f"""
    s_barrier
    s_cmp_eq_u32 s61, 0
    s_cbranch_scc1 K1_PREPD
    s_barrier
    s_mov_b32 s54, s53
    v_mov_b32 v8, {K1_CNT}
    s_mov_b32 s52, 0
    K1_WD:
    ds_read_b32 v9, v8 offset:4
    s_add_u32 s52, s52, 1
    s_waitcnt lgkmcnt(0)
    v_cmp_ne_u32 vcc, 4, v9
    s_cmp_lt_u32 s52, 0x100000
    s_cbranch_vccz K1_WD2
    s_sleep 4
    s_cbranch_scc1 K1_WD
    K1_WD2:
    s_cmp_lt_u32 s2, {E('HR1MIN', 250)}
    s_cbranch_scc1 K2_LOADER
    s_lshl_b32 s3, s2, 7
    s_add_u32 s3, s3, {WS_HR1 - 160*128:#x}
    v_mov_b32 v5, s3
    """)
    poll("K1_PHR1", "v5", "v6", slp=8)
    A(f"""
    s_branch K2_LOADER
    K1_PREPW:
    s_cmp_ge_u32 s3, 27
    s_cselect_b32 s40, 1, 0
    s_cselect_b32 s8, s38, s36
    s_cselect_b32 s9, s39, s37
    s_mul_i32 s41, s40, 27
    s_sub_u32 s41, s3, s41
    s_mov_b32 s10, {640*1728*2}
    s_mov_b32 s11, 0x00020000
    v_lshrrev_b32 v2, 3, v1
    v_and_b32 v3, 7, v1
    v_and_b32 v4, 6, v2
    v_xor_b32 v3, v3, v4
    v_mul_u32_u24 v2, 3456, v2
    v_lshl_add_u32 v2, v3, 4, v2
    s_lshl_b32 s42, s41, 7
    s_mul_i32 s43, s4, 552960
    s_add_u32 s42, s42, s43
    s_mul_i32 s44, s4, 20480
    s_mov_b32 s45, 0
    K1_PW_LD:
    s_mov_b32 m0, s44
    s_add_u32 s44, s44, 1024
    s_add_u32 s45, s45, 1
    buffer_load_dwordx4 v2, s[8:11], s42 offen lds
    s_add_u32 s42, s42, 27648
    s_cmp_lg_u32 s45, {E('PACE', 5)}
    s_cbranch_scc1 K1_PW_L2
    s_barrier
    K1_PW_L2:
    s_cmp_lt_u32 s45, 20
    s_cbranch_scc1 K1_PW_LD
    v_lshrrev_b32 v2, 2, v1
    v_and_b32 v3, 6, v2
    v_bfe_u32 v4, v1, 1, 1
    s_lshl_b32 s43, s4, 1
    v_add_u32 v4, s43, v4
    v_xor_b32 v3, v3, v4
    v_lshlrev_b32 v2, 7, v2
    v_lshl_add_u32 v2, v3, 4, v2
    v_and_b32 v3, 1, v1
    v_lshl_add_u32 v2, v3, 3, v2
    v_add_u32 v4, 40960, v2
    s_lshl_b32 s43, s41, 2
    s_add_u32 s43, s43, s4
    s_mul_i32 s44, s43, 9363
    s_lshr_b32 s44, s44, 16
    s_mul_i32 s45, s44, 7
    s_sub_u32 s45, s43, s45
    s_mul_i32 s46, s44, {20*14*1024}
    s_add_u32 s46, s46, {WS_W1P:#x}
    s_cmp_gt_u32 s45, 3
    s_cselect_b32 s47, 3, 0
    s_add_u32 s47, s47, s45
    s_mul_i32 s48, s40, 3
    s_add_u32 s47, s47, s48
    s_lshl_b32 s47, s47, 10
    v_bfe_u32 v6, v1, 2, 1
    v_bfe_u32 v7, v1, 3, 1
    v_xor_b32 v6, v6, v7
    v_mul_u32_u24 v6, 12, v6
    s_and_b32 s48, s45, 3
    s_cmp_eq_u32 s48, 2
    s_cselect_b32 s48, -1, 0
    v_and_b32 v6, s48, v6
    v_xor_b32 v5, v6, v1
    v_lshlrev_b32 v5, 4, v5
    v_add_u32 v5, s47, v5
    v_and_b32 v6, 7, v1
    v_and_b32 v7, 48, v1
    v_add_u32 v6, v6, v7
    s_lshl_b32 s48, s40, 3
    v_add_u32 v6, s48, v6
    v_lshlrev_b32 v6, 4, v6
    v_bfe_u32 v7, v1, 3, 1
    v_mul_u32_u24 v7, 7168, v7
    v_add3_u32 v6, v6, v7, 0
    v_add_u32 v6, 6144, v6
    s_cmp_eq_u32 s45, 3
    s_cselect_b64 vcc, -1, 0
    s_nop 1
    v_cndmask_b32 v5, v5, v6, vcc
    s_waitcnt vmcnt(0)
    s_barrier
    """)
    stamp(2)
    F = 16
    for ks in range(20):
        base = "v2" if ks < 10 else "v4"; o = (ks % 10) * 4096
        A(f"ds_read_b64_tr_b16 {vr(F+4*ks,2)}, {base} offset:{o}\nds_read_b64_tr_b16 {vr(F+4*ks+2,2)}, {base} offset:{o+2048}")
    A("v_mov_b32 v8, 0\nv_mov_b32 v9, 0\nv_mov_b32 v10, 0x3f803f80\ns_mov_b32 s47, 0xffff0000\ns_waitcnt lgkmcnt(0)")
    for i in range(0, 80, 2): A(f"v_dot2c_f32_bf16 v8, v10, v{F+i}\nv_dot2c_f32_bf16 v9, v10, v{F+i+1}")
    A("""
    s_nop 2
    v_add_f32 v8, v8, v9
    v_mov_b32 v9, v8
    s_nop 1
    v_permlane16_swap_b32 v8, v9
    s_nop 1
    v_add_f32 v8, v8, v9
    v_mov_b32 v9, v8
    s_nop 1
    v_permlane32_swap_b32 v8, v9
    s_nop 1
    v_add_f32 v8, v8, v9
    v_mul_f32 v8, 0xbacccccd, v8
    s_mov_b32 s47, 0x3f80
    s_mov_b32 s48, 0x3f800000
    .p2align 3
    """)
    for ks in range(20):
        for i in range(4):
            r = F + 4 * ks + i; t = 100 + 2 * i
            A(f"v_dot2_f32_bf16 v{t}, v{r}, s47, v8\nv_dot2_f32_bf16 v{t+1}, v{r}, s48, v8")
        for i in range(4):
            r = F + 4 * ks + i; t = 100 + 2 * i
            A(f"v_cvt_pk_bf16_f32 v{r}, v{t}, v{t+1}")
        A(f"buffer_store_dwordx4 {vr(F+4*ks,4)}, v5, s[12:15], s46 offen sc1\ns_add_u32 s46, s46, {14*1024}")
        if ks == NEK + ELAG - 1:
            A(f"""
            v_mov_b32 v11, {K1_CNT}
            v_mov_b32 v12, 1
            s_waitcnt vmcnt({ELAG})
            s_mov_b64 exec, 1
            ds_add_rtn_u32 v13, v11, v12 offset:8
            s_mov_b64 exec, -1
            s_add_u32 s44, s54, {TAG_INC:#x}
            v_and_b32 v14, 31, v1
            v_lshlrev_b32 v14, 2, v14
            v_mov_b32 v15, s44
            s_lshl_b32 s45, s2, 7
            s_add_u32 s45, s45, {WS_FE:#x}
            s_waitcnt lgkmcnt(0)
            v_readfirstlane_b32 s44, v13
            s_cmp_lg_u32 s44, 3
            s_cbranch_scc1 K1_NOFE
            buffer_store_dword v15, v14, s[12:15], s45 offen sc1
            K1_NOFE:
            """)
            stamp(1)
    A("s_branch K2_COMPP")
    tabv = [Q_TILES[r][hf] for r in range(7) for hf in range(2)]
    t64 = sum(v << (4 * i) for i, v in enumerate(tabv))
    A(f"""
    K1_PREPD:
    s_sub_u32 s3, s3, 54
    s_cmp_lt_u32 s3, 36
    s_cbranch_scc1 K1_PD0
    s_barrier
    s_branch K2_COMPP
    K1_PD0:
    """)
    srd(8, 92, 1728 * 640 * 2)
    for i in range(5):
        A(f"""
        v_add_u32 v2, {64*i}, v1
        v_mul_u32_u24 v3, 6554, v2
        v_lshrrev_b32 v3, 16, v3
        v_mul_u32_u24 v4, 1120, v3
        v_lshl_add_u32 v{40+i}, v2, 4, v4
        v_lshrrev_b32 v{45+i}, 4, v3
        """)
    A(f"""
    s_mul_i32 s40, s3, 12
    s_add_u32 s40, s40, s4
    s_mul_i32 s49, s4, 15360
    s_mov_b32 s45, 0
    K1_PD1:
    s_lshr_b32 s36, s40, 3
    s_mul_i32 s37, s36, 9363
    s_lshr_b32 s37, s37, 16
    s_mul_i32 s38, s37, 7
    s_sub_u32 s38, s36, s38
    s_lshl_b32 s39, s38, 3
    s_mov_b32 s50, {t64 & 0xffffffff:#x}
    s_mov_b32 s51, {t64 >> 32:#x}
    s_lshr_b64 s[50:51], s[50:51], s39
    s_mul_i32 s37, s37, 14
    s_and_b32 s48, s50, 15
    s_add_u32 s48, s48, s37
    s_lshr_b32 s50, s50, 4
    s_and_b32 s50, s50, 15
    s_add_u32 s50, s50, s37
    s_min_u32 s50, s50, 107
    s_sub_u32 s50, s50, s48
    s_sub_u32 s50, s50, 1
    s_mul_i32 s39, s50, 20480
    s_mul_i32 s48, s48, 20480
    s_and_b32 s37, s40, 7
    s_mul_i32 s37, s37, 160
    s_add_u32 s48, s48, s37
    """)
    for i in range(5):
        A(f"s_add_u32 m0, s49, {1024*i}\nv_mad_u32_u24 v2, v{45+i}, s39, v{40+i}\nbuffer_load_dwordx4 v2, s[8:11], s48 offen lds")
    A(f"""
    s_add_u32 s40, s40, 4
    s_add_u32 s49, s49, 5120
    s_add_u32 s45, s45, 1
    s_cmp_lt_u32 s45, 3
    s_cbranch_scc1 K1_PD1
    s_sub_u32 s40, s40, 12
    s_sub_u32 s49, s49, 15360
    v_lshrrev_b32 v6, 4, v1
    v_bfe_u32 v7, v1, 2, 2
    v_and_b32 v8, 3, v1
    v_lshlrev_b32 v5, 4, v1
    s_waitcnt vmcnt(0)
    s_barrier
    """)
    stamp(2)
    A(f"""
    K1_PD3:
    s_lshr_b32 s36, s40, 3
    s_mul_i32 s37, s36, 9363
    s_lshr_b32 s37, s37, 16
    s_mul_i32 s38, s37, 7
    s_sub_u32 s38, s36, s38
    s_lshr_b32 s39, s38, 1
    s_mul_i32 s36, s37, 3
    s_lshl_b32 s37, s37, 2
    s_add_u32 s37, s37, 23
    s_and_b32 s38, s38, 1
    s_cselect_b32 s36, s36, s37
    s_add_u32 s36, s36, s39
    v_lshlrev_b32 v2, s38, v6
    v_lshl_add_u32 v2, v2, 2, v7
    v_mul_u32_u24 v2, 160, v2
    v_lshl_add_u32 v2, v8, 3, v2
    v_add_u32 v2, s49, v2
    s_cmp_eq_u32 s38, 1
    s_movk_i32 s38, 2560
    s_cselect_b32 s38, 640, s38
    v_add_u32 v3, s38, v2
    s_and_b32 s37, s40, 7
    s_mul_i32 s37, s37, {54*5120}
    s_mul_i32 s36, s36, 5120
    s_add_u32 s50, s37, s36
    s_add_u32 s50, s50, {WS_WDP:#x}
    s_add_u32 s51, s50, 4096
    """)
    for t in range(5): A(f"ds_read_b64_tr_b16 {vr(16+4*t,2)}, v2 offset:{32*t}\nds_read_b64_tr_b16 {vr(16+4*t+2,2)}, v3 offset:{32*t}")
    A("s_waitcnt lgkmcnt(0)")
    for t in range(5): A(f"buffer_store_dwordx4 {vr(16+4*t,4)}, v5, s[12:15], {'s50' if t < 4 else 's51'} offen offset:{1024*(t&3)} sc1")
    A("""
    s_add_u32 s40, s40, 4
    s_add_u32 s49, s49, 5120
    s_sub_u32 s45, s45, 1
    s_cmp_lg_u32 s45, 0
    s_cbranch_scc1 K1_PD3
    s_branch K2_COMPP
    """)

    A("K2_LOADER:")
    map2()
    RW = 16
    A(f"""
    s_mul_i32 s35, s37, {54*5120}
    s_add_u32 s35, s35, {WS_WDP:#x}
    s_mul_i32 s26, s4, 15360
    s_add_u32 s29, s35, s26
    s_add_u32 s29, s29, 153600
    v_min_u32 v5, 35, v1
    v_lshlrev_b32 v5, 7, v5
    v_add_u32 v5, {WS_FP + 214*128:#x}, v5
    """)
    def batch(b):
        for i in range(15):
            A(f"buffer_load_dwordx4 {vr(RW+(b*15+i)*4,4)}, v4, s[12:15], s29 offen offset:{1024*(i&3)} sc1")
            if (i & 3) == 3: A("s_add_u32 s29, s29, 4096")
        if b == 0: A(f"s_add_u32 s29, s29, {61440 - 12288}")
    A(f"""
    s_mul_i32 s20, s17, 7
    s_lshr_b32 s20, s20, 2
    v_and_b32 v7, 3, v1
    v_min_u32 v7, 2, v7
    v_add_u32 v7, s20, v7
    v_min_u32 v7, 26, v7
    v_bfe_u32 v6, v1, 2, 1
    v_mad_u32_u24 v7, v6, 27, v7
    v_add_u32 v12, 160, v7
    v_lshlrev_b32 v7, 7, v7
    v_add_u32 v10, {WS_FE + 160*128:#x}, v7
    v_lshrrev_b32 v8, 4, v1
    v_and_b32 v6, 15, v1
    v_lshlrev_b32 v7, 1, v8
    v_xor_b32 v2, v6, v7
    v_xor_b32 v3, 8, v2
    v_lshlrev_b32 v7, 12, v8
    v_lshl_add_u32 v2, v2, 4, v7
    v_lshl_add_u32 v3, v3, 4, v7
    s_lshl_b32 s20, s4, 16
    s_lshl_b32 s21, s16, 8
    s_add_u32 s20, s20, s21
    s_add_u32 s20, s20, {WS_HT:#x}
    s_mul_i32 s21, s17, {20*14*1024}
    s_mul_i32 s22, s4, 7168
    s_add_u32 s21, s21, s22
    s_add_u32 s21, s21, {WS_W1P:#x}
    s_lshl_b32 s23, s4, 12
    s_add_u32 s23, s23, {XS}
    s_add_u32 s24, s22, {WB + WSL}
    s_mov_b32 s33, {XS}
    s_mov_b32 s34, {WSL}
    v_min_u32 v7, 39, v1
    v_lshrrev_b32 v8, 2, v7
    v_and_b32 v7, 3, v7
    v_lshl_add_u32 v7, v8, 4, v7
    s_lshl_b32 s22, s4, 2
    v_add_u32 v7, s22, v7
    v_min_u32 v8, 48, v1
    s_mul_i32 s22, s4, 9
    s_add_u32 s22, s22, {214 - 40}
    v_add_u32 v8, s22, v8
    v_cmp_gt_u32 vcc, 40, v1
    s_nop 1
    v_cndmask_b32 v7, v8, v7, vcc
    v_cmp_gt_u32 vcc, 56, v1
    s_nop 1
    v_cndmask_b32 v7, v12, v7, vcc
    v_lshlrev_b32 v7, 7, v7
    v_add_u32 v7, {WS_FP:#x}, v7
    v_mov_b32 v8, {K1_CNT}
    """)
    def dma_x():
        A("""
        s_mov_b32 m0, s23
        s_add_u32 s25, s20, 15360
        buffer_load_dwordx4 v2, s[12:15], s20 offen sc1 lds
        s_add_u32 s27, s20, 30720
        buffer_load_dwordx4 v3, s[12:15], s25 offen offset:1024 sc1 lds
        s_add_u32 s25, s20, 46080
        buffer_load_dwordx4 v2, s[12:15], s27 offen offset:2048 sc1 lds
        s_add_u32 s20, s20, 0x40000
        buffer_load_dwordx4 v3, s[12:15], s25 offen offset:3072 sc1 lds
        """)
    def dma_w():
        A("s_mov_b32 m0, s24\ns_add_u32 s25, s21, 4096")
        for i in range(4): A(f"buffer_load_dwordx4 v4, s[12:15], s21 offen offset:{1024*i} sc1 lds")
        A(f"s_add_u32 m0, s24, 4096\ns_add_u32 s21, s21, {WSL}")
        for i in range(3): A(f"buffer_load_dwordx4 v4, s[12:15], s25 offen offset:{1024*i} sc1 lds")
    stamp(3)
    poll("K2_P1", "v10", "v6", slp=8)
    stamp(4)
    dma_w(); A(f"s_add_u32 s24, s24, {WSL}")
    dma_w(); A(f"s_sub_u32 s24, s24, {2*WSL}")
    WR = RW + (56 - 7 * NWR) * 4
    for st in range(NWR):
        A("s_add_u32 s25, s21, 4096")
        for i in range(7): A(f"buffer_load_dwordx4 {vr(WR+(st*7+i)*4,4)}, v4, s[12:15], {'s21' if i < 4 else 's25'} offen offset:{1024*(i&3)} sc1")
        A(f"s_add_u32 s21, s21, {WSL}")
    def put_w(st):
        A("v_add_u32 v12, s24, v4")
        for i in range(7): A(f"ds_write_b128 v12, {vr(WR+((st-2)*7+i)*4,4)} offset:{1024*i}")
    A(f"""
    s_mov_b32 s52, 0
    K2_WL:
    ds_read_b32 v9, v8 offset:4
    s_add_u32 s52, s52, 1
    s_waitcnt lgkmcnt(0)
    v_cmp_ne_u32 vcc, 4, v9
    s_cmp_lt_u32 s52, 0x100000
    s_cbranch_vccz K2_WL_D
    s_sleep 2
    s_cbranch_scc1 K2_WL
    K2_WL_D:
    s_cmp_lt_u32 s2, 160
    s_cbranch_scc1 K2_NOH2
    s_lshl_b32 s3, s2, 7
    s_add_u32 s3, s3, {WS_HR2 - 160*128:#x}
    v_mov_b32 v11, s3
    """)
    poll("K2_PH2", "v11", "v6", slp=8)
    A("K2_NOH2:")
    stamp(5)
    A(f"""
    s_lshl_b32 s31, s4, 10
    s_add_u32 s30, s35, s31
    v_lshrrev_b32 v240, 3, v1
    v_and_b32 v241, 7, v1
    v_lshlrev_b32 v240, 12, v240
    v_lshl_add_u32 v242, v241, 4, v240
    s_mul_i32 s40, s37, {80*4096}
    s_lshl_b32 s41, s36, 7
    s_add_u32 s40, s40, s41
    s_add_u32 s40, s40, {WS_HT:#x}
    s_lshl_b32 s41, s4, 15
    s_add_u32 s40, s40, s41
    s_add_u32 s42, s31, {G1_END}
    s_add_u32 s41, s31, {RES_LDS}
    v_add_u32 v240, s26, v4
    v_add_u32 v243, 61440, v240
    v_add_u32 v244, s31, v4
    v_add_u32 v245, 0x10000, v244
    v_lshl_add_u32 v241, s4, 3, v241
    v_lshlrev_b32 v241, {FSH}, v241
    s_lshl_b32 s38, s36, {FSH + 5}
    s_add_u32 s39, s38, {WS_FH2:#x}
    s_add_u32 s38, s38, {WS_FH:#x}
    """)
    NE0 = E("NE0", 14)
    if NE0: A("buffer_load_dword v6, v5, s[12:15], 0 offen sc1")
    if NWR: A(f"s_waitcnt vmcnt({1 if NE0 else 0})"); put_w(2)
    else: dma_w()
    A(f"s_add_u32 s24, s24, {WSL}")
    if NE0:
        A("s_waitcnt vmcnt(0)\nv_cmp_ne_u32 vcc, s54, v6\ns_cbranch_vccz K2_WOK")
        poll("K2_PW", "v5", "v6", slp=4)
        A("K2_WOK:")
        for i in range(NE0): A(f"buffer_load_dwordx4 {vr(RW+i*4,4)}, v4, s[12:15], s30 offen sc1\ns_add_u32 s30, s30, 4096")
    if E("WAITB", 0): A("s_waitcnt vmcnt(0)")
    stamp(6)
    poll("K2_PC", "v7", "v6", slp=4)
    A(f"s_setprio {E('LPRIO', 0)}")
    stamp(7)
    dma_x(); A(f"s_add_u32 s23, s23, {XS}")
    dma_x(); A(f"s_sub_u32 s23, s23, {2*XS}")
    dma_x(); A(f"s_add_u32 s23, s23, {XS}")
    vq = ["X0"] * 4 + ["X1"] * 4 + ["X2"] * 4
    def wait_for(tag, extra=""):
        last = max(i for i, t in enumerate(vq) if t == tag)
        A(f"s_waitcnt vmcnt({min(63, len(vq) - 1 - last)}) {extra}")
    NF0 = 26
    rl = [NE0]
    vq = ["F0a"] + vq
    def regload(n):
        for _ in range(min(n, 56 - rl[0])):
            i = rl[0]; rl[0] += 1
            if i < NF0:
                A(f"buffer_load_dwordx4 {vr(RW+i*4,4)}, v4, s[12:15], s30 offen sc1\ns_add_u32 s30, s30, 4096"); vq.append("F0a" if i < 13 else "F0b")
            else:
                b, j = divmod(i - NF0, 15)
                A(f"buffer_load_dwordx4 {vr(RW+i*4,4)}, v4, s[12:15], s29 offen offset:{1024*(j&3)} sc1"); vq.append(f"B{b}")
                if (j & 3) == 3: A("s_add_u32 s29, s29, 4096")
                if i - NF0 == 14: A(f"s_add_u32 s29, s29, {61440 - 12288}")
    wait_for("X0", "lgkmcnt(0)"); A("s_barrier")
    EX = [int(x) for x in os.environ.get("EX", "8,2,2,1,0,0,0,0,0,12,12").split(",")]
    regload(EX[0])
    for st in range(3, 10):
        k = st - 2
        wait_for(f"X{k}", "lgkmcnt(0)"); A("s_barrier")
        dma_x()
        if st < 2 + NWR: put_w(st); vq += [f"X{st}"] * 4
        elif st == 9:
            ld = lambda base, i: A(f"buffer_load_dwordx4 v4, s[12:15], {base} offen offset:{1024*i} sc1 lds")
            A("s_add_u32 m0, s24, 4096\ns_add_u32 s25, s21, 4096"); ld("s25", 1); ld("s25", 2)
            A("s_mov_b32 m0, s24\ns_nop 0"); ld("s21", 2)
            vq += ["X9"] * 7
            wait_for("X8"); A("s_barrier")
            ld("s21", 0); ld("s21", 1); ld("s21", 3)
            A("s_add_u32 m0, s24, 4096\ns_nop 0"); ld("s25", 0)
            vq += ["X9b"] * 4
        else: dma_w(); vq += [f"X{st}"] * 11
        regload(EX[k])
        if st < 9:
            if (st + 1) % 3 == 2: A(f"s_sub_u32 s23, s23, {2*XS}\ns_sub_u32 s24, s24, {2*WSL}")
            else: A(f"s_add_u32 s23, s23, {XS}\ns_add_u32 s24, s24, {WSL}")
    A(f"s_add_u32 s24, s24, {WSL}")
    regload(EX[8])
    wait_for("X9"); A("s_barrier")
    stamp(8)
    regload(EX[9])
    wait_for("X9b"); A("s_barrier")
    regload(EX[10])
    assert rl[0] >= NF0
    def tailres():
        for i in range(4): A(f"s_add_u32 m0, s42, {4096*i}\ns_add_u32 s25, s35, m0\nbuffer_load_dwordx4 v4, s[12:15], s25 offen sc1 lds")
        for i in range(2): A(f"s_add_u32 m0, s41, {4096*i}\ns_add_u32 s25, s40, {0x20000*i}\nbuffer_load_dwordx4 v242, s[12:15], s25 offen sc1 lds")
        A(f"""
        s_cmp_lt_u32 s4, 2
        s_cbranch_scc0 K2_LR
        s_add_u32 m0, s42, {4096*4}
        s_add_u32 s25, s35, m0
        buffer_load_dwordx4 v4, s[12:15], s25 offen sc1 lds
        s_branch K2_LR2
        K2_LR:
        s_add_u32 m0, s41, {8192 - 2048}
        s_add_u32 s25, s40, {0x40000 - 0x10000}
        buffer_load_dwordx4 v242, s[12:15], s25 offen sc1 lds
        K2_LR2:
        """)
        vq.extend(["D"] * 7)
    def fw(i): A(f"ds_write_b128 {'v244' if i < 16 else 'v245'}, {vr(RW+i*4,4)} offset:{4096*(i & 15)}")
    def check(lbl, soff):
        A(f"v_cmp_ne_u32 vcc, s54, v11\ns_cbranch_vccz {lbl}_OK")
        poll(lbl, "v241", "v11", soff=soff, slp=4)
        A(f"{lbl}_OK:")
    TRE = E("TRE", 1)
    if TRE: tailres()
    wait_for("F0a"); A("s_barrier")
    dl = ["s_mov_b32 m0, s24\ns_add_u32 s25, s35, s24\nbuffer_load_dwordx4 v4, s[12:15], s25 offen sc1 lds"] + \
         [f"buffer_load_dwordx4 v4, s[12:15], s25 offen offset:{1024*i} sc1 lds" for i in (1, 2, 3)] + \
         ["s_add_u32 m0, s24, 4096\ns_add_u32 s25, s25, 4096\nbuffer_load_dwordx4 v4, s[12:15], s25 offen sc1 lds"] + \
         [f"buffer_load_dwordx4 v4, s[12:15], s25 offen offset:{1024*i} sc1 lds" for i in (1, 2)]
    PA = E("PA", 26)
    LIM = E("LIM", 56)
    for i in range(NF0):
        if i == 13: wait_for("F0b")
        if i == PA:
            A("buffer_load_dword v11, v241, s[12:15], s38 offen sc1"); vq.append("PA")
        fw(i)
        if dl: A(dl.pop(0)); vq.append("D")
        elif rl[0] < LIM and i < PA: regload(1)
    if PA >= NF0:
        A("buffer_load_dword v11, v241, s[12:15], s38 offen sc1"); vq.append("PA")
    stamp(9)
    wait_for("PA", "lgkmcnt(0)")
    check("K2_PA", "s38")
    A("s_barrier")
    stamp(10)
    if not TRE: tailres()
    regload(max(0, NF0 + 15 - rl[0]))
    wait_for(vq[-1]); A("s_barrier")
    A("buffer_load_dword v11, v241, s[12:15], s39 offen sc1"); vq.append("PB")
    NWB = E("NWB", 4)
    for i in range(NWB): A(f"ds_write_b128 v240, {vr(RW+(NF0+i)*4,4)} offset:{1024*i}")
    wait_for("PB")
    check("K2_PB", "s39")
    A("s_barrier")
    regload(56 - rl[0])
    for i in range(NWB, 15): A(f"ds_write_b128 v240, {vr(RW+(NF0+i)*4,4)} offset:{1024*i}")
    A("s_waitcnt lgkmcnt(0)\ns_barrier")
    A("s_waitcnt vmcnt(0)")
    for i in range(15): A(f"ds_write_b128 v243, {vr(RW+(NF0+15+i)*4,4)} offset:{1024*i}")
    A("s_waitcnt lgkmcnt(0)\ns_barrier")
    A(f"s_or_b32 s3, s2, s4\ns_cmp_lg_u32 s3, 0\ns_cbranch_scc1 K2_LEND\nv_lshlrev_b32 v5, 7, v1\nv_add_u32 v5, {WS_FP + 160*128:#x}, v5")
    poll("K2_PE0", "v5", "v6")
    A("v_add_u32 v5, 4096, v5")
    poll("K2_PE1", "v5", "v6")
    A("v_mov_b32 v6, 0\nv_mov_b32 v7, s54\nglobal_store_dword v6, v7, s[6:7] sc1\nK2_LEND:")
    finish()

    A(f"K2_COMPP:\ns_waitcnt lgkmcnt(0)\ns_add_u32 s54, s54, {TAG_INC:#x}")
    A("K2_COMP:")
    A(f"""
    v_mov_b32 v2, {K1_CNT}
    v_mov_b32 v3, 1
    v_mov_b32 v13, s54
    s_mov_b64 exec, 1
    ds_add_u32 v2, v3
    s_mov_b64 exec, -1
    """)
    stamp(3)
    map2()
    A(f"""
    v_lshrrev_b32 v5, 2, v1
    v_and_b32 v6, 7, v5
    v_and_b32 v7, 3, v1
    v_lshlrev_b32 v5, 8, v5
    v_lshl_add_u32 v5, v7, 3, v5
    v_add_u32 v5, {XS}, v5
    s_lshl_b32 s25, s18, 2
    """)
    for a_ in range(4): A(f"s_add_u32 s26, s25, {a_}\nv_xor_b32 v7, s26, v6\nv_lshl_add_u32 v{8+a_}, v7, 5, v5")
    A(f"s_mul_i32 s25, s19, 7168\ns_add_u32 s25, s25, {WB + WSL}\nv_add_u32 v12, s25, v4")
    ACC = 16; SETS = [128, 172]
    srd(8, 94, 2048 * 640 * 2)
    A(f"""
    v_mov_b32 v216, 0x3f803f80
    v_mov_b32 v217, 0x3f803f80
    v_mov_b32 v218, 0x3f803f80
    v_mov_b32 v219, 0x3f803f80
    s_mov_b32 s33, {XS}
    s_mov_b32 s34, {WSL}
    s_mov_b32 s27, 0
    s_mov_b32 s28, 1
    s_cmp_lt_u32 s2, 160
    s_cselect_b32 s20, s57, s2
    s_lshl_b32 s20, s20, 7
    s_add_u32 s20, s20, {WS_FP:#x}
    v_and_b32 v14, 31, v1
    v_lshlrev_b32 v14, 2, v14
    v_lshrrev_b32 v5, 5, v1
    v_mul_u32_u24 v5, {WS_HR2 - WS_FP:#x}, v5
    v_add_u32 v14, v14, v5
    s_waitcnt vmcnt(0)
    s_mov_b64 exec, 1
    ds_add_rtn_u32 v5, v2, v3 offset:4
    s_mov_b64 exec, -1
    s_waitcnt lgkmcnt(0)
    v_readfirstlane_b32 s21, v5
    s_cmp_lg_u32 s21, 3
    s_cbranch_scc1 K2_NOFLAG
    buffer_store_dword v13, v14, s[12:15], s20 offen sc1
    K2_NOFLAG:
    """)
    stamp(4)
    for i in range(0, 112, 2): A(f"v_mov_b64 {vr(ACC+i,2)}, 0")
    def reads(st, ks, stats):
        b = SETS[st]
        xo = [f"ds_read_b64_tr_b16 {vr(b+4*a_+2*hh,2)}, v{8+a_} offset:{ks*8192 + hh*4096}" for a_ in range(4) for hh in range(2)]
        wo = [] if stats else [f"ds_read_b128 {vr(b+16+4*w,4)}, v12 offset:{ks*14336 + w*1024}" for w in range(7)]
        return wo[:1] + xo + wo[1:]
    def mf(st, stats):
        b = SETS[st]
        if stats:
            return [f"v_mfma_f32_16x16x32_bf16 {vr(ACC+4*a_,4)}, {vr(b+4*a_,4)}, {vr(b+4*a_,4)}, {vr(ACC+4*a_,4)}" for a_ in range(4)] + \
                   [f"v_mfma_f32_16x16x32_bf16 {vr(ACC+16+4*a_,4)}, v[216:219], {vr(b+4*a_,4)}, {vr(ACC+16+4*a_,4)}" for a_ in range(4)]
        return [f"v_mfma_f32_16x16x32_bf16 {vr(ACC+(w*4+a_)*4,4)}, {vr(b+16+4*w,4)}, {vr(b+4*a_,4)}, {vr(ACC+(w*4+a_)*4,4)}" for w in range(7) for a_ in range(4)]
    A(f"""
    s_lshr_b32 s20, s17, 1
    s_mul_i32 s20, s20, 3
    s_and_b32 s21, s17, 1
    s_lshl_b32 s23, s16, 3
    s_lshl_b32 s24, s18, 2
    s_add_u32 s23, s23, s24
    s_mul_i32 s23, s23, 55296
    s_add_u32 s23, s23, {WS_HF:#x}
    s_lshl_b32 s24, s17, 1
    s_add_u32 s24, s24, s19
    s_add_u32 s24, s24, 23
    s_lshl_b32 s24, s24, 10
    s_add_u32 s40, s24, s23
    s_lshl_b32 s25, s21, 1
    s_add_u32 s25, s25, s20
    s_lshl_b32 s25, s25, 10
    s_lshl_b32 s26, s19, 9
    s_add_u32 s25, s25, s26
    s_add_u32 s26, s20, 1
    s_lshl_b32 s26, s26, 10
    s_lshl_b32 s29, s21, 9
    s_add_u32 s26, s26, s29
    s_cmp_eq_u32 s17, 15
    s_cselect_b32 s25, s26, s25
    s_add_u32 s41, s25, s23
    s_add_u32 s26, s26, s23
    s_lshl_b32 s29, s19, 8
    s_add_u32 s42, s26, s29
    s_cmp_eq_u32 s17, 15
    s_cselect_b32 s42, 0x40000000, s42
    v_and_b32 v5, 31, v1
    v_lshlrev_b32 v5, 4, v5
    v_lshrrev_b32 v6, 5, v1
    v_mul_u32_u24 v6, 55296, v6
    v_add_u32 v220, v5, v6
    v_and_b32 v7, 15, v1
    v_lshl_add_u32 v7, v7, 4, v6
    v_bfe_u32 v5, v1, 4, 1
    v_mul_u32_u24 v5, 110592, v5
    v_add_u32 v221, v7, v5
    v_and_b32 v2, {(1 << (FSH - 2)) - 1}, v1
    v_lshlrev_b32 v14, 2, v2
    s_lshl_b32 s20, s16, 1
    s_add_u32 s20, s20, s18
    s_lshl_b32 s20, s20, 5
    s_lshl_b32 s21, s17, 1
    s_add_u32 s20, s20, s21
    s_add_u32 s20, s20, s19
    s_lshl_b32 s20, s20, {FSH}
    s_add_u32 s43, s20, {WS_FH:#x}
    s_add_u32 s44, s20, {WS_FH2:#x}
    s_lshl_b32 s22, s36, 2
    s_add_u32 s22, s22, s4
    s_mul_i32 s23, s22, 55296
    s_xor_b32 s24, s22, 1
    s_mul_i32 s24, s24, 55296
    v_add_u32 v222, s23, v4
    v_add_u32 v223, s24, v4
    s_lshl_b32 s45, s19, 10
    s_add_u32 s45, s45, {WS_HF:#x}
    s_mul_i32 s24, s19, 5120
    v_add_u32 v224, s24, v4
    v_add_u32 v225, 61440, v224
    v_add_u32 v226, 122880, v224
    v_and_b32 v2, 15, v1
    v_lshrrev_b32 v3, 4, v1
    v_lshrrev_b32 v5, 2, v1
    v_lshlrev_b32 v5, 7, v5
    v_and_b32 v6, 3, v1
    v_lshl_add_u32 v5, v6, 3, v5
    s_lshl_b32 s24, s4, 5
    s_add_u32 s24, s24, {RES_LDS}
    v_add_u32 v227, s24, v5
    v_lshlrev_b32 v228, 2, v2
    s_lshl_b32 s22, s22, 4
    s_lshl_b32 s46, s22, 2
    s_add_u32 s46, s46, {WS_R2:#x}
    s_mul_i32 s47, s22, 1280
    s_mul_i32 s24, s37, 160
    s_add_u32 s47, s47, s24
    v_mul_u32_u24 v5, 1280, v2
    v_lshl_add_u32 v229, v3, 3, v5
    v_lshrrev_b32 v2, 1, v3
    v_lshl_add_u32 v5, v2, 4, v5
    v_and_b32 v2, 1, v3
    v_lshl_add_u32 v230, v2, 5, v5
    s_mul_i32 s24, s4, 5120
    s_add_u32 s24, s24, {24*5120}
    v_add_u32 v231, s24, v4
    s_xor_b32 s24, s4, 1
    s_mul_i32 s24, s24, 5120
    s_add_u32 s24, s24, {24*5120}
    v_add_u32 v232, s24, v4
    """)
    A("s_barrier")
    stamp(5)
    for o in reads(0, 0, False): A(o)
    A("s_cmp_eq_u32 s17, 15\ns_cselect_b32 s29, s19, 0\ns_cmp_eq_u32 s29, 1\ns_cbranch_scc1 K2_STAT")
    def weave(m, others):
        n = len(m); k = len(others); idx = 0
        for t, x in enumerate(m):
            A(x)
            want = (k * (t + 1) + n - 1) // n if k > n else min(k, t + 1)
            while idx < want: A(others[idx]); idx += 1
        while idx < k: A(others[idx]); idx += 1
    def loop(label, stats):
        nit = 10 if stats else 7
        A(f".p2align 3\n{label}:\ns_waitcnt lgkmcnt(0)\ns_add_u32 s27, s27, 1")
        adv = ["s_add_u32 s28, s28, 1\ns_cmp_eq_u32 s28, 3",
               f"s_cselect_b32 s30, {(-2*XS) & 0xffffffff:#x}, s33", f"s_cselect_b32 s31, {(-2*WSL) & 0xffffffff:#x}, s34",
               "s_cselect_b32 s28, 0, s28\nv_add_u32 v8, s30, v8", "v_add_u32 v9, s30, v9\nv_add_u32 v10, s30, v10",
               "v_add_u32 v11, s30, v11\nv_add_u32 v12, s31, v12"]
        weave(mf(0, stats), reads(1, 1, stats) + adv)
        if stats:
            A(f"s_waitcnt lgkmcnt(0)\ns_cmp_lt_u32 s27, 10\ns_cbranch_scc0 {label}_T\ns_barrier")
            weave(mf(1, stats), reads(0, 0, stats))
            A(f"s_branch {label}\n{label}_T:\ns_barrier\ns_barrier")
            for x in mf(1, stats): A(x)
        else:
            A("s_waitcnt lgkmcnt(0)\ns_barrier")
            weave(mf(1, stats), reads(0, 0, stats))
            A(f"s_cmp_lt_u32 s27, 7\ns_cbranch_scc1 {label}")
    acc = lambda w, a_: ACC + (w * 4 + a_) * 4
    T = 234
    def prod(w, a_, o):
        g, u = acc(w, a_), acc(w + 3, a_)
        return [f"v_pk_mul_f32 {vr(g,2)}, {vr(g,2)}, {vr(u,2)}", f"v_pk_mul_f32 {vr(g+2,2)}, {vr(g+2,2)}, {vr(u+2,2)}",
                f"v_cvt_pk_bf16_f32 v{o}, v{g}, v{g+1}", f"v_cvt_pk_bf16_f32 v{o+1}, v{g+2}, v{g+3}"]
    loop("K2_LOOP", False)
    A(f"v_subrev_u32 v8, {2*XS}, v8\nv_subrev_u32 v9, {2*XS}, v9\nv_subrev_u32 v10, {2*XS}, v10\nv_subrev_u32 v11, {2*XS}, v11\nv_subrev_u32 v15, {2*WSL}, v12")
    WA, WBs = [2, 5, 6], [0, 3, 1, 4]
    seq = [(0, kk) for kk in range(6)] + [(1, kk) for kk in range(6)]
    G0 = [128, 132, 136, 140, 152, 164, 168, 144]
    G1 = [172, 176, 180, 184, 188, 192, 196, 200]
    G2_ = [204, 208, 212, 216, 248, 148, 156, 160]
    GR = [G0, G1, G2_]
    def xreg(idx, a_): return GR[idx % 3][a_]
    def wreg_(idx, w): return GR[idx % 3][4 + (WBs if seq[idx][0] else WA).index(w)]
    def treads(idx):
        part, kk = seq[idx]; slot = (2, 0, 1)[kk >> 1]; ks = kk & 1
        xo = [f"ds_read_b64_tr_b16 {vr(xreg(idx,a_)+2*hh,2)}, v{8+a_} offset:{slot*XS + ks*8192 + hh*4096}" for a_ in range(4) for hh in range(2)]
        wreg, wo_ = ("v12", 0) if slot == 2 else ("v15", slot * WSL)
        wo = [f"ds_read_b128 {vr(wreg_(idx,w),4)}, {wreg} offset:{wo_ + ks*14336 + w*1024}" for w in (WBs if part else WA)]
        return wo[:1] + xo + wo[1:]
    epiA = []
    for a0 in (0, 2):
        o = T + 2 * a0
        epiA += prod(2, a0, o) + prod(2, a0 + 1, o + 2) + ["s_nop 1", f"v_permlane32_swap_b32 v{o}, v{o+2}", f"v_permlane32_swap_b32 v{o+1}, v{o+3}",
                 f"buffer_store_dwordx4 {vr(o,4)}, v220, s[12:15], s41 offen sc1\ns_add_u32 s41, s41, 110592"]
    for a_ in (0, 2):
        x, y = acc(6, a_), acc(6, a_ + 1)
        epiA += [f"v_permlane32_swap_b32 v{x+e}, v{y+e}" for e in range(4)]
    for a_ in (0, 2):
        x, y = acc(6, a_), acc(6, a_ + 1)
        epiA += [f"v_pk_mul_f32 {vr(x,2)}, {vr(x,2)}, {vr(y,2)}", f"v_pk_mul_f32 {vr(x+2,2)}, {vr(x+2,2)}, {vr(y+2,2)}",
                 f"v_cvt_pk_bf16_f32 v{T+8+a_}, v{x}, v{x+1}", f"v_cvt_pk_bf16_f32 v{T+9+a_}, v{x+2}, v{x+3}"]
    epiA += ["s_nop 1", f"v_permlane16_swap_b32 v{T+8}, v{T+10}", f"v_permlane16_swap_b32 v{T+9}, v{T+11}",
             f"buffer_store_dwordx4 {vr(T+8,4)}, v221, s[12:15], s42 offen sc1"]
    FLA = E("FLA", 11)
    for idx, (part, kk) in enumerate(seq):
        one = lambda w, a_: f"v_mfma_f32_16x16x32_bf16 {vr(acc(w,a_),4)}, {vr(wreg_(idx,w),4)}, {vr(xreg(idx,a_),4)}, {vr(acc(w,a_),4)}"
        A(f"s_waitcnt lgkmcnt({len(treads(idx + 1)) if 0 < idx < 11 else 0})")
        if idx in (2, E('B9B', 7), 11): A("s_barrier")
        if E("G2ST", 0) and idx in (0, 6, 11): stamp({0: 1, 6: 2, 11: 3}[idx])
        if idx == FLA: A("s_waitcnt vmcnt(0)\nbuffer_store_dword v13, v14, s[12:15], s43 offen sc1")
        if E("G2ST", 0) and idx == 11: stamp(4)
        if idx < 11:
            m = [one(w, a_) for w in (WBs if part else WA) for a_ in range(4)]
            rd = treads(idx + 2) if idx < 10 else []
            if idx == 0:
                r1 = treads(1)
                rd = ["\n".join(r1[2*k: 2*k+2]) for k in range(6)] + ["s_barrier\n" + "\n".join(rd[0:2])] + ["\n".join(rd[2*k: 2*k+2]) for k in range(1, 6)]
            for k, x in enumerate(m):
                A(x)
                if k < len(rd): A(rd[k])
                if idx >= 6 and not (idx == 6 and k < 3):
                    for _ in range(E('EPR', 2)):
                        if epiA: A(epiA.pop(0))
        else:
            assert not epiA
            TB = 172
            pend = []
            for gi in range(4):
                if gi >= 3: pend += prod(0, 0, TB) + prod(1, 0, TB + 2)
                for w in WBs:
                    A(one(w, gi))
                    for _ in range(2):
                        if pend: A(pend.pop(0))
            for gi in range(4):
                if gi: pend += prod(0, gi, TB + 4 * gi) + prod(1, gi, TB + 4 * gi + 2)
                pend += [f"buffer_store_dwordx4 {vr(TB+4*gi,4)}, v4, s[12:15], s40 offen sc1\ns_add_u32 s40, s40, 55296"]
            for o in pend: A(o)
    A("K2_FIN:")
    stamp(6)
    AC2 = 16; WS2 = [56, 76, 168]; HB = 96; DH = E("DH", 6); HR = 144; SBS = E("SBS", 8)
    for i in range(0, 40, 2): A(f"v_mov_b64 {vr(AC2+i,2)}, 0")
    A("s_waitcnt vmcnt(0)\nbuffer_store_dword v13, v14, s[12:15], s44 offen sc1")
    stamp(8)
    def wread(n):
        off = (2 * n if n < 15 else 2 * (n - 15)) * 5120
        return [f"ds_read_b128 {vr(WS2[n%3]+4*t,4)}, v{224 + off // 61440} offset:{off % 61440 + 1024*t}" for t in range(5)]
    A("s_barrier")
    stamp(10)
    hq = []
    def hload(n):
        b = HB + (n % DH) * 8
        A(f"buffer_load_dwordx4 {vr(b,4)}, v222, s[12:15], s45 offen sc1\nbuffer_load_dwordx4 {vr(b+4,4)}, v223, s[12:15], s45 offen sc1\ns_add_u32 s45, s45, 2048")
        hq.extend([n, n])
    issue = {}
    for n in range(DH, 27): issue.setdefault(max(n - DH, SBS if n >= 11 else 0), []).append(n)
    for n in range(DH): hload(n)
    for o in wread(0) + wread(1): A(o)
    for n in range(27):
        last = max(i for i, t in enumerate(hq) if t == n)
        A(f"s_waitcnt vmcnt({len(hq) - 1 - last}) lgkmcnt({5 if n < 26 else 0})")
        if n == SBS:
            A("s_barrier")
            for x in [y for y in issue[n] if y - DH < n]: hload(x)
            issue[n] = [y for y in issue[n] if y - DH >= n]
            A("buffer_load_dword v164, v228, s[12:15], s46 offen sc1"); hq.append(-1)
        if E("G2ST", 0) and n in (5, 9, 12): stamp({5: 7, 9: 9, 12: 12}[n])
        b = HB + (n % DH) * 8
        m = [f"v_mfma_f32_16x16x32_bf16 {vr(AC2+(a_*5+t)*4,4)}, {vr(WS2[n%3]+4*t,4)}, {vr(b+4*a_,4)}, {vr(AC2+(a_*5+t)*4,4)}" for a_ in (1, 0) for t in range(5)]
        oth = wread(n + 2) if n < 25 else []
        if n == 25: oth = [f"ds_read_b64_tr_b16 {vr(188+2*t,2)}, v227 offset:{2048*t}" for t in range(5)]
        if n == 26:
            for t in range(5):
                oth += [f"v_lshlrev_b32 v{HR+4*t}, 16, v{188+2*t}\nv_and_b32 v{HR+4*t+1}, 0xffff0000, v{188+2*t}",
                        f"v_lshlrev_b32 v{HR+4*t+2}, 16, v{189+2*t}\nv_and_b32 v{HR+4*t+3}, 0xffff0000, v{189+2*t}"]
        if n in (4, E('S2AT', 13), 19): oth = [None] * 3 + ["s_waitcnt lgkmcnt(0)\ns_barrier"] + oth
        for k, x in enumerate(m):
            A(x)
            if k < len(oth) and oth[k]: A(oth[k])
        for x in issue.get(n, []): hload(x)
    stamp(11)
    A("s_nop 2")
    for t in range(5): A(f"ds_write_b128 v232, {vr(AC2+(5+t)*4,4)} offset:{1024*t}")
    A("s_waitcnt lgkmcnt(0)\ns_barrier")
    R = 56
    OF = os.environ.get("OUTF", "")
    for t in range(5): A(f"ds_read_b128 {vr(R+4*t,4)}, v231 offset:{1024*t}")
    for t in range(5):
        A(f"s_waitcnt lgkmcnt({4-t})")
        for e in (0, 2): A(f"v_pk_add_f32 {vr(AC2+4*t+e,2)}, {vr(AC2+4*t+e,2)}, {vr(R+4*t+e,2)}")
        for e in (0, 2): A(f"v_pk_fma_f32 {vr(AC2+4*t+e,2)}, {vr(AC2+4*t+e,2)}, v[164:165], {vr(HR+4*t+e,2)} op_sel_hi:[1,0,1]")
        A(f"v_cvt_pk_bf16_f32 v{80+2*t}, v{AC2+4*t}, v{AC2+4*t+1}\nv_cvt_pk_bf16_f32 v{80+2*t+1}, v{AC2+4*t+2}, v{AC2+4*t+3}")
        if t in (1, 3):
            o = 80 + 2 * (t - 1)
            A(f"s_nop 1\nv_permlane16_swap_b32 v{o}, v{o+2}\nv_permlane16_swap_b32 v{o+1}, v{o+3}\nbuffer_store_dwordx4 {vr(o,4)}, v230, s[8:11], s47 offen offset:{32*(t-1)} {OF}")
    A(f"buffer_store_dwordx2 v[88:89], v229, s[8:11], s47 offen offset:128 {OF}")
    finish()
    A("K2_STAT:\nbuffer_store_dword v13, v14, s[12:15], s43 offen sc1")
    loop("K2_SLOOP", True)
    A(f"""
    v_and_b32 v5, 3, v1
    v_bfe_u32 v6, v1, 2, 2
    v_lshrrev_b32 v7, 4, v1
    v_cmp_eq_u32 s[20:21], 1, v5
    v_cmp_eq_u32 s[22:23], 2, v5
    v_cmp_eq_u32 s[24:25], 3, v5
    v_cmp_eq_u32 s[26:27], v6, v7
    v_and_b32 v5, 15, v1
    v_lshlrev_b32 v5, 2, v5
    s_lshl_b32 s28, s16, 9
    s_lshl_b32 s29, s18, 8
    s_add_u32 s28, s28, s29
    s_add_u32 s28, s28, {WS_R2:#x}
    """)
    for a_ in range(4):
        g = ACC + 4 * a_; s_ = ACC + 16 + 4 * a_
        A(f"""
        v_cndmask_b32 v{g}, v{g}, v{g+1}, s[20:21]
        v_cndmask_b32 v{g}, v{g}, v{g+2}, s[22:23]
        v_cndmask_b32 v{g}, v{g}, v{g+3}, s[24:25]
        v_mul_f32 v{s_}, 0x3acccccd, v{s_}
        v_mul_f32 v{g}, 0x3acccccd, v{g}
        v_fma_f32 v{g}, -v{s_}, v{s_}, v{g}
        v_max_f32 v{g}, 0, v{g}
        v_cvt_pk_bf16_f32 v{g}, v{g}, v{g}
        v_lshlrev_b32 v{g}, 16, v{g}
        v_add_f32 v{g}, 0x3727c5ac, v{g}
        v_cvt_pk_bf16_f32 v{g}, v{g}, v{g}
        v_lshlrev_b32 v{g}, 16, v{g}
        v_sqrt_f32 v{g}, v{g}
        s_nop 0
        v_cvt_pk_bf16_f32 v{g}, v{g}, v{g}
        v_lshlrev_b32 v{g}, 16, v{g}
        v_mul_f32 v{g}, v{g}, v{g}
        v_rcp_f32 v{g}, v{g}
        """)
    A("s_mov_b64 exec, s[26:27]")
    for a_ in range(4): A(f"buffer_store_dword v{ACC+4*a_}, v5, s[12:15], s28 offen offset:{64*a_} sc1")
    A("s_mov_b64 exec, -1\ns_branch K2_FIN\nK_END:\ns_endpgm")

def main(out):
    gen()
    hdr = open("sequential_preLN__ssm_conv_s4__glu_gated_bilinear__prompt.s.ref").read().split("; Override launch")[0]
    s = hdr + f"; @launch grid=(256,1,1) block=(512,1,1) lds={LDS_SIZE}\n"
    s += f'.amdgcn_target "amdgcn-amd-amdhsa--gfx950"\n.text\n.globl {KNAME}\n.p2align 8\n.type {KNAME},@function\n{KNAME}:\n'
    s += A.text().replace("CNTADDR", str(K1_CNT)).replace("XGN", "0" if E("NOXG", 0) else "5").replace("XGLIM", "0" if E("NOXG", 0) else "0x40000") + "CODE_END:\n"
    s += f""".section .rodata,"a"
.p2align 6
.amdhsa_kernel {KNAME}
  .amdhsa_next_free_vgpr 252
  .amdhsa_next_free_sgpr 96
  .amdhsa_accum_offset 252
  .amdhsa_group_segment_fixed_size 0
  .amdhsa_kernarg_size 128
  .amdhsa_user_sgpr_count 2
  .amdhsa_user_sgpr_kernarg_segment_ptr 1
  .amdhsa_system_sgpr_workgroup_id_x 1
.end_amdhsa_kernel
"""
    open(out, "w").write(s)
if __name__ == "__main__":
    main(sys.argv[1] if len(sys.argv) > 1 else "f.s")
```

```python
import sys, os
E = lambda k, d: int(os.environ.get(k, d))
KNAME = "sequential_preLN__ssm_conv_s4__glu_gated_bilinear__prompt_kernel"
WS_ST    = 0x1000
WS_R2    = 0x8000
WS_HT    = 0x10000
WS_W1P   = 0x290000
WS_WDP   = 0x6F0000
WS_HF    = int(os.environ.get('HFOFF', '0x910000'), 0)
WS_PROF  = 0xFE0000
WS_XG    = 0x1100000
WS_FH    = 0x1840000
WS_FH2   = 0x1850000
WS_FP    = 0x1860000
WS_HR1   = 0x1870000
WS_HR2   = 0x1878000
WS_FE    = 0x1880000
WS_FA    = 0x1888000
WS_HA    = 0x1890000
WS_SIZE  = 0x1900000
PROF = E("PROF", 0)
NST = 14
PROF_WAVES = 8
PROF_RANGES = [(0, [(0, 160, 0, 4, NST), (0, 160, 4, 8, NST), (160, 214, 0, 4, NST), (160, 214, 4, 8, NST), (214, 250, 0, 4, NST), (214, 250, 4, 8, NST)])]

class Asm:
    def __init__(self): self.l = []
    def __call__(self, s):
        for x in s.split("\n"):
            x = x.strip()
            if x: self.l.append(("" if x.endswith(":") else "    ") + x)
    def text(self): return "\n".join(self.l) + "\n"
def vr(a, n=1): return f"v{a}" if n == 1 else f"v[{a}:{a+n-1}]"
def sr(a, n=1): return f"s{a}" if n == 1 else f"s[{a}:{a+n-1}]"
A = Asm()
DIAG = os.environ.get("DIAG")
_fin = [0]
def stamp(i, wait=True):
    if PROF or (DIAG and str(i) in DIAG.split(",")[:2]):
        A(f"{'s_memrealtime' if (DIAG or E('RT', 0)) else 's_memtime'} s[{64+2*i}:{65+2*i}]")
        if wait: A("s_waitcnt lgkmcnt(0)")
def finish():
    if DIAG:
        a, b, mult, wg, wv = map(int, DIAG.split(","))
        _fin[0] += 1; n = _fin[0]
        A(f"""
        s_waitcnt vmcnt(0)
        s_memrealtime s[{64+2*(NST-1)}:{65+2*(NST-1)}]
        s_cmp_lg_u32 s2, {wg}
        s_cbranch_scc1 DG_E{n}
        s_cmp_lg_u32 s60, {wv}
        s_cbranch_scc1 DG_E{n}
        s_waitcnt lgkmcnt(0)
        s_sub_u32 s20, s{64+2*b}, s{64+2*a}
        s_min_u32 s20, s20, 5000
        s_mul_i32 s20, s20, {mult}
        s_add_u32 s20, s20, s{64+2*(NST-1)}
        DG_L{n}:
        s_memrealtime s[22:23]
        s_waitcnt lgkmcnt(0)
        s_sub_u32 s21, s20, s22
        s_cmp_gt_i32 s21, 0
        s_cbranch_scc1 DG_L{n}
        DG_E{n}:
        """)
    if PROF:
        A("s_waitcnt vmcnt(0)")
        stamp(NST - 1)
        A(f"s_lshl_b32 s62, s2, 3\ns_add_u32 s62, s62, s60\ns_lshl_b32 s62, s62, 6\ns_add_u32 s62, s62, {WS_PROF:#x}\nv_mov_b32 v1, 0")
        for i in range(NST):
            A(f"v_mov_b32 v0, s{64+2*i}\nbuffer_store_dword v0, v1, s[12:15], s62 offen offset:{4*i}")
    A("s_endpgm")
def srd(d, base, size):
    A(f"s_mov_b32 s{d}, s{base}\ns_mov_b32 s{d+1}, s{base+1}\ns_mov_b32 s{d+2}, {size:#x}\ns_mov_b32 s{d+3}, 0x00020000")
def cmul(d, a, b):
    A(f"v_pk_mul_f32 {vr(d,2)}, {vr(a,2)}, {vr(b,2)} op_sel_hi:[1,0]")
    A(f"v_pk_fma_f32 {vr(d,2)}, {vr(a,2)}, {vr(b,2)}, {vr(d,2)} op_sel:[1,1,0] op_sel_hi:[0,1,1] neg_lo:[1,0,0]")
def poll(lbl, va, vt, soff="0", slp=2):
    A(f"""
    s_mov_b32 s52, 0
    {lbl}:
    buffer_load_dword {vt}, {va}, s[12:15], {soff} offen sc1
    s_add_u32 s52, s52, 1
    s_waitcnt vmcnt(0)
    v_cmp_ne_u32 vcc, s54, {vt}
    s_cmp_lt_u32 s52, 0x40000
    s_cbranch_vccz {lbl}_D
    s_mov_b64 exec, vcc
    s_sleep {slp}
    s_cbranch_scc1 {lbl}
    {lbl}_D:
    s_mov_b64 exec, -1
    """)

def q_of(c, tau):
    base = (c >> 1) * 7
    if c == 15: return {0: (base + 4, 0), 1: (base + 4, 1), 2: (base + 3, 1)}[tau]
    o = base + (4 if (c & 1) else 0)
    if tau == 3: return (base + 3, c & 1)
    return {0: (o, 0), 1: (o, 1), 2: (o + 1, 0), 6: (o + 1, 1), 4: (o + 2, 0), 5: (o + 2, 1)}[tau]
Q_TILES = {}
for phi in range(108):
    q, hf = q_of(phi // 7, phi % 7)
    Q_TILES.setdefault(q, [None, None])[hf] = phi

def newq(q):
    cp, r = divmod(q, 7)
    return 3 * cp + (r >> 1) if r & 1 else 23 + 4 * cp + (r >> 1)
assert sorted(newq(q) for q in range(54)) == list(range(54))
TAB_STRIDE = 272
TAB_HI = 32 * TAB_STRIDE
K1_TAB = 2 * TAB_HI
K1_CH = K1_TAB
K1_TB = 4 * K1_TAB
KC1 = 2240
K1_BASE = 4608
K1_UREV = 8 * K1_TAB
K1_SCR = K1_UREV + 4 * 4608
K1_R = K1_SCR + 512
K1_CNT = K1_R + 4 * 1280
K1_SCR2 = TAB_HI + 29 * TAB_STRIDE + 48
LDS_SIZE = 163840
assert K1_CNT + 512 == LDS_SIZE
TAG_INC = 0x9E3779B9
HI_ROWS = [(0, 4), (1, 5), (2, 6), (3, 7), (4, 8), (256, 260), (258, 262), (260, 264),
           (512, 768), (516, 772), (520, 776), (1032, 1288), (1544, 1800)]
def hi_rows_of(e):
    return [(r & 3) + 8 * (r >> 2) + 4 * h for r, p in enumerate(HI_ROWS) for h, ee in enumerate(p) if ee == e]
XS = 16384; WSL = 28672; WB = 3 * XS; G1_END = WB + 3 * WSL; RES_LDS = 153600
FSH = 6

def map2():
    A("""
    s_and_b32 s3, s2, 7
    s_lshr_b32 s5, s2, 3
    s_cmp_lt_u32 s5, 20
    s_cselect_b32 s16, 0, 20
    s_cselect_b32 s17, 5, 3
    s_cselect_b32 s18, 52, 86
    s_cselect_b32 s19, 0, 10
    s_sub_u32 s5, s5, s16
    s_mul_i32 s18, s5, s18
    s_lshr_b32 s18, s18, 8
    s_mul_i32 s36, s18, s17
    s_sub_u32 s5, s5, s36
    s_lshr_b32 s38, s3, 1
    s_and_b32 s3, s3, 1
    s_mul_i32 s36, s38, s17
    s_add_u32 s36, s36, s5
    s_add_u32 s36, s36, s16
    s_lshl_b32 s37, s3, 2
    s_add_u32 s37, s37, s18
    s_mul_i32 s16, s3, s17
    s_add_u32 s16, s16, s5
    s_add_u32 s16, s16, s19
    s_lshl_b32 s17, s38, 2
    s_add_u32 s17, s17, s18
    s_lshr_b32 s18, s4, 1
    s_and_b32 s19, s4, 1
    v_lshlrev_b32 v4, 4, v1
    """)

def rowaddr(t, va, vb):
    A(f"""
    s_lshr_b32 s42, s{t}, 8
    s_lshl_b32 s42, s42, 9
    s_bfe_u32 s43, s{t}, 0x40002
    s_lshl_b32 s43, s43, 5
    s_add_u32 s42, s42, s43
    s_bfe_u32 s43, s{t}, 0x20006
    s_lshl_b32 s43, s43, 1
    s_add_u32 s42, s42, s43
    s_and_b32 s43, s{t}, 3
    s_lshl_b32 s43, s43, 3
    s_add_u32 s42, s42, s43
    v_lshrrev_b32 v7, 5, v1
    v_add_u32 v7, s42, v7
    v_mul_u32_u24 v7, 1280, v7
    v_and_b32 {vb}, 31, v1
    v_lshl_add_u32 {va}, {vb}, 4, v7
    v_lshl_add_u32 {vb}, {vb}, 3, v7
    """)
def rowload(b, va, vb):
    A(f"global_load_dwordx4 {vr(b,4)}, {va}, s[16:17]\nglobal_load_dwordx4 {vr(b+4,4)}, {va}, s[16:17] offset:512\nglobal_load_dwordx2 {vr(b+8,2)}, {vb}, s[16:17] offset:1024")
def rowstats(soff):
    A("v_mov_b32 v60, 0\nv_mov_b32 v61, 0\nv_mov_b32 v62, 0x3f803f80\nv_lshrrev_b32 v63, 5, v1\nv_lshlrev_b32 v63, 3, v63")
    for r in range(48, 58): A(f"v_dot2c_f32_bf16 v60, v62, v{r}\nv_dot2c_f32_bf16 v61, v{r}, v{r}")
    A("s_nop 2")
    for rot in (8, 4, 2, 1):
        A(f"v_add_f32_dpp v60, v60, v60 row_ror:{rot} row_mask:0xf bank_mask:0xf\nv_add_f32_dpp v61, v61, v61 row_ror:{rot} row_mask:0xf bank_mask:0xf\ns_nop 0")
    A(f"""
    v_mov_b32 v58, v60
    v_mov_b32 v59, v61
    s_nop 1
    v_permlane16_swap_b32 v60, v58
    v_permlane16_swap_b32 v61, v59
    s_nop 0
    v_pk_add_f32 v[60:61], v[60:61], v[58:59]
    v_mul_f32 v60, 0x3acccccd, v60
    v_mul_f32 v61, 0x3acccccd, v61
    v_fma_f32 v61, -v60, v60, v61
    v_max_f32 v61, 0, v61
    v_cvt_pk_bf16_f32 v61, v61, v61
    v_lshlrev_b32 v61, 16, v61
    v_add_f32 v61, 0x3727c5ac, v61
    v_cvt_pk_bf16_f32 v61, v61, v61
    v_lshlrev_b32 v61, 16, v61
    v_sqrt_f32 v61, v61
    s_nop 0
    v_cvt_pk_bf16_f32 v60, v60, v61
    v_mov_b32 v61, s53
    buffer_store_dwordx2 v[60:61], v63, s[12:15], {soff} offen sc1
    """)
NWR = E("NWR", 1)
NEK = 2 * (2 + NWR)
ELAG = E("ELAG", 5)
NCW = E("NCW", 2)
NT0 = 160 * NCW
NT1 = NT0 + 216
WSOFF = int(os.environ.get("WSOFF", "0"), 0)
WSOFF_CODE = f"s_add_u32 s6, s6, {WSOFF:#x}\ns_addc_u32 s7, s7, 0\ns_cmp_eq_u32 s61, 0" if WSOFF else ""
def gen():
    G = 16; P = 10
    A("s_cmp_ge_u32 s2, 256\ns_cbranch_scc1 K_END")
    stamp(0, False)
    A(f"""
    s_load_dwordx16 s[16:31], s[0:1], 0
    s_load_dwordx2 s[32:33], s[0:1], 64
    s_load_dwordx4 s[36:39], s[0:1], 80
    s_load_dwordx4 s[92:95], s[0:1], 96
    s_load_dwordx2 s[6:7], s[0:1], 120
    v_lshrrev_b32 v2, 6, v0
    v_and_b32 v1, 63, v0
    v_readfirstlane_b32 s60, v2
    v_and_b32 v0, 255, v0
    s_getpc_b64 s[62:63]
    K1_PC:
    s_lshr_b32 s40, s2, 3
    s_and_b32 s40, s40, 7
    s_lshl_b32 s40, s40, 13
    v_lshl_add_u32 v8, v1, 7, s40
    v_min_u32 v8, CODE_END - K1_PC - 4, v8
    s_cmp_lg_u32 s60, 3
    s_cbranch_scc1 K1_NOPF
    s_cmp_lt_u32 s2, {E('PFMIN', 160)}
    s_cbranch_scc1 K1_NOPF2
    global_load_dword v9, v8, s[62:63]
    K1_NOPF2:
    v_mov_b32 v8, {K1_CNT}
    v_mov_b64 v[10:11], 0
    ds_write_b64 v8, v[10:11]
    ds_write_b64 v8, v[10:11] offset:8
    ds_write_b64 v8, v[10:11] offset:16
    K1_NOPF:
    s_and_b32 s4, s60, 3
    s_lshr_b32 s61, s60, 2
    s_and_b32 s40, s2, 7
    s_lshr_b32 s41, s2, 3
    s_mul_i32 s57, s40, 20
    s_add_u32 s57, s57, s41
    s_lshl_b32 s5, s57, 2
    s_add_u32 s5, s5, s4
    s_lshl_b32 s43, s5, 8
    v_lshl_add_u32 v6, v1, 2, s43
    s_lshl_b32 s3, s57, 3
    s_mul_i32 s55, s4, {K1_CH}
    v_mul_u32_u24 v238, 10240, v0
    v_add_u32 v238, s3, v238
    s_mul_i32 s46, s41, 103
    v_lshrrev_b32 v2, 1, v0
    v_min_u32 v2, 102, v2
    v_add_u32 v2, s46, v2
    v_min_u32 v2, 2047, v2
    v_mul_u32_u24 v2, 1280, v2
    v_and_b32 v3, 1, v0
    v_mul_u32_u24 v3, 156, v3
    s_mul_i32 s46, s40, 160
    v_add3_u32 v2, v2, v3, s46
    s_cmp_ge_u32 s2, 160
    s_cbranch_scc1 K1_PREP
    s_mul_i32 s59, s60, 160
    s_add_u32 s59, s59, s2
    """)
    rowaddr(59, "v4", "v5")
    A(f"""
    s_cmp_lt_u32 s59, 352
    s_waitcnt lgkmcnt(0)
    s_cbranch_scc0 K1_NOS
    """)
    rowload(48, "v4", "v5")
    A("""
    K1_NOS:
    s_cmp_eq_u32 s61, 0
    s_cbranch_scc1 K1_NOT
    global_load_dword v242, v2, s[16:17]
    K1_NOT:
    """)
    for i in range(6): A(f"global_load_dword v{P+i}, v6, {sr(18+2*i,2)}")
    A("""
    s_load_dword s54, s[6:7], 0
    s_load_dwordx2 s[42:43], s[30:31], s3
    s_load_dwordx2 s[44:45], s[32:33], s3
    s_cbranch_scc1 K1_C
    """)
    XR = 32
    srd(12, 6, WS_SIZE)
    A(f"""
    v_lshlrev_b32 v235, 4, v0
    v_sub_u32 v235, {K1_UREV + 4080}, v235
    v_lshlrev_b32 v236, 5, v0
    v_add_u32 v236, {K1_BASE}, v236
    v_add_u32 v237, {2*K1_CH}, v236
    s_lshl_b32 s58, s4, 12
    s_add_u32 s58, s58, {WS_ST:#x}
    v_lshlrev_b32 v5, 4, v1
    v_add_u32 v239, 5120, v238
    s_waitcnt vmcnt(0)
    """)
    def gather(k): A(f"global_load_dwordx2 {vr(XR+2*k,2)}, v{238 + k//4}, s[16:17] offset:{(k%4)*1280}")
    NG0 = E("NG0", 2)
    for k in range(NG0): gather(k)
    A("s_branch K1_C0")
    A("K1_C:")
    A(f"""
    s_mul_i32 s56, s4, 4608
    s_add_u32 s56, s56, {K1_UREV}
    s_mul_i32 s46, s4, 1280
    s_add_u32 s46, s46, {K1_R}
    s_mov_b32 m0, s46
    v_mov_b64 v[240:241], 0
    v_and_b32 v46, 31, v1
    v_lshrrev_b32 v47, 5, v1
    v_mul_u32_u24 v228, {TAB_STRIDE}, v46
    v_lshl_add_u32 v228, v47, 4, v228
    v_add_u32 v228, s55, v228
    v_lshlrev_b32 v2, 4, v46
    v_add_u32 v2, s55, v2
    v_lshl_add_u32 v229, v47, 3, v2
    v_lshl_add_u32 v230, v47, 9, v2
    v_and_b32 v2, 1, v46
    v_mul_u32_u24 v2, 640, v2
    v_and_b32 v3, 30, v46
    v_lshl_add_u32 v3, v47, 5, v3
    v_sub_u32 v2, v2, v3
    v_add_u32 v231, s46, v2
    v_lshl_add_u32 v2, v1, 3, s56
    ds_write_b64 v2, v[240:241] offset:4096
    """)
    for k in range(5): A(f"ds_write_addtid_b32 v240 offset:{256*k}")
    srd(12, 6, WS_SIZE)
    A(f"""
    v_and_b32 v2, 15, v1
    v_lshrrev_b32 v3, 4, v1
    v_add_u32 v4, 1, v2
    v_and_b32 v5, 1, v4
    v_mul_u32_u24 v5, {KC1}, v5
    v_and_b32 v4, 0xfffe, v4
    v_lshl_add_u32 v4, v4, 1, v5
    v_lshl_add_u32 v4, v3, 4, v4
    v_add_u32 v232, s55, v4
    v_add_u32 v233, 1024, v232
    v_add_u32 v239, 2048, v232
    v_lshlrev_b32 v4, 5, v2
    v_lshlrev_b32 v5, 4, v3
    v_sub_u32 v234, v5, v4
    v_add_u32 v234, {4064 - 3584}, v234
    v_add_u32 v234, s56, v234
    v_lshl_add_u32 v235, v2, 6, v5
    v_add_u32 v235, s55, v235
    v_sub_u32 v6, 15, v2
    v_lshl_add_u32 v6, v3, 2, v6
    v_and_b32 v7, 1, v6
    v_mul_u32_u24 v7, 320, v7
    v_and_b32 v6, 0xfffe, v6
    v_lshl_add_u32 v6, v6, 1, v7
    v_add3_u32 v236, v6, 4, s46
    v_lshrrev_b32 v5, 1, v3
    v_lshl_add_u32 v4, v5, 4, v4
    v_and_b32 v5, 1, v3
    v_lshl_add_u32 v237, v5, 9, v4
    v_cmp_eq_u32 s[36:37], 7, v1
    v_cmp_gt_u32 s[38:39], 2, v1
    v_cmp_eq_u32 s[48:49], 2, v1
    v_cmp_eq_u32 s[50:51], 0, v1
    v_lshl_add_u32 v4, v3, 3, v2
    s_mov_b32 s46, 0x10001
    """)
    for ty, (c, wdt) in enumerate([(-20, 7), (-19, 9)]):
        A(f"v_add_u32 v5, {c + 20}, v4\nv_min_u32 v5, 31, v5\nv_mov_b32 v6, {((1 << wdt) - 1) << 20:#x}\nv_lshrrev_b32 v6, v5, v6\nv_and_b32 v6, 0xff, v6\nv_lshl_or_b32 v6, v6, 15, v6")
        for j in range(4):
            A(f"v_lshrrev_b32 v7, {2*j}, v6\nv_and_b32 v7, s46, v7\nv_mul_u32_u24 v{244+4*ty+j}, 0x3f80, v7")
    A(f"""
    s_cmp_lt_u32 s59, 352
    s_cbranch_scc0 K1_CW
    s_lshl_b32 s59, s59, 4
    s_add_u32 s59, s59, {WS_ST:#x}
    s_waitcnt vmcnt(6) lgkmcnt(0)
    s_add_u32 s53, s54, {TAG_INC:#x}
    """)
    rowstats("s59")
    A("s_waitcnt vmcnt(1)\ns_branch K1_C0\nK1_CW:\ns_waitcnt vmcnt(0)")
    A("K1_C0:")
    ACC = 96; DT = 9
    Z1, Z8, Z16, Z256 = 48, 50, 52, 54
    BB, CC = 56, 58
    T0 = 60
    H = {e: 72 + 2 * e for e in range(9)}
    CV = [90, 91, 92, 93, 94, 95]; cvi = [0]
    def put(src, rows, hi):
        t = CV[cvi[0] % len(CV)]; cvi[0] += 1
        A(f"v_cvt_pk_bf16_f32 v{t}, v{src}, {'-' if hi else ''}v{src+1}")
        for r in rows: A(f"ds_write_addtid_b32 v{t} offset:{r*TAB_STRIDE + (TAB_HI if hi else 0)}")
    SPLIT = E("SPLIT", 0)
    A(f"""
    s_lshl_b32 s62, s4, 4
    s_mov_b32 s59, s61
    s_waitcnt lgkmcnt(0)
    s_add_u32 s54, s54, {TAG_INC:#x}
    """)
    stamp(1)
    A(f"""
    s_lshr_b64 s[42:43], s[42:43], s62
    s_lshl_b32 s42, s42, 16
    v_mov_b32 v{DT}, s42
    v_mul_f32 v{DT}, 0x3fb8aa3b, v{DT}
    v_exp_f32 v{DT}, v{DT}
    s_nop 0
    v_cvt_pk_bf16_f32 v{DT}, v{DT}, v{DT}
    v_lshlrev_b32 v{DT}, 16, v{DT}
    K1_PASS:
    s_mul_i32 s56, s59, {K1_TB}
    s_add_u32 s56, s56, s55
    s_mov_b32 m0, s56
    s_lshl_b32 s47, s59, 4
    v_lshrrev_b32 v{T0}, s47, v{P}
    v_lshrrev_b32 v{T0+1}, s47, v{P+1}
    v_lshlrev_b32 v{T0}, 16, v{T0}
    v_lshlrev_b32 v{T0+1}, 16, v{T0+1}
    v_mul_f32 v{T0}, v{T0}, v{DT}
    v_mul_f32 v{T0+1}, v{T0+1}, v{DT}
    v_mul_f32 v{T0+8}, 0x3fb8aa3b, v{T0}
    v_mul_f32 v{T0+9}, 0.15915494, v{T0+1}
    s_cmp_eq_u32 s61, 0
    """)
    if SPLIT: A("s_cbranch_scc0 K1_HI")
    A(f"""
    v_mul_f32 v{T0+2}, 0x41000000, v{T0+8}
    v_mul_f32 v{T0+3}, 0x41000000, v{T0+9}
    v_fract_f32 v{T0+3}, v{T0+3}
    v_exp_f32 v{T0+2}, v{T0+2}
    v_cos_f32 v{Z8}, v{T0+3}
    v_sin_f32 v{Z8+1}, v{T0+3}
    v_mov_b32 v95, 0x3f80
    .p2align 3
    ds_write_addtid_b32 v95 offset:0
    v_pk_mul_f32 {vr(Z8,2)}, {vr(Z8,2)}, {vr(T0+2,2)} op_sel_hi:[1,0]
    """)
    cmul(Z16, Z8, Z8)
    put(Z8, [1], False); put(Z16, [2], False)
    Lreg = {1: Z8, 2: Z16}
    gk = [NG0]
    def maybe_gather():
        if gk[0] < min(8, NG0 + E("NG1", 4)):
            A(f"s_cbranch_scc1 K1_NG{gk[0]}")
            gather(gk[0])
            A(f"K1_NG{gk[0]}:\ns_nop 0")
            gk[0] += 1
    for l in range(3, 32):
        d = T0 + 2 * (l % 4); Lreg[l] = d
        cmul(d, Lreg[l-2], Z16); put(d, [l], False)
        if l in (12, 26) and not SPLIT: maybe_gather()
    if SPLIT: A("s_cmp_eq_u32 s59, 0\ns_cbranch_scc0 K1_PEND\nK1_HI:")
    A(f"""
    v_lshrrev_b32 v{BB}, s47, v{P+2}
    v_lshrrev_b32 v{BB+1}, s47, v{P+3}
    v_lshrrev_b32 v{CC}, s47, v{P+4}
    v_lshrrev_b32 v{CC+1}, s47, v{P+5}
    v_lshlrev_b32 v{BB}, 16, v{BB}
    v_lshlrev_b32 v{BB+1}, 16, v{BB+1}
    v_lshlrev_b32 v{CC}, 16, v{CC}
    v_lshlrev_b32 v{CC+1}, 16, v{CC+1}
    v_mul_f32 v{T0+4}, 0x43800000, v{T0+8}
    v_mul_f32 v{T0+5}, 0x43800000, v{T0+9}
    v_fract_f32 v{T0+9}, v{T0+9}
    v_fract_f32 v{T0+5}, v{T0+5}
    v_exp_f32 v{T0+8}, v{T0+8}
    v_exp_f32 v{T0+4}, v{T0+4}
    v_cos_f32 v{Z1}, v{T0+9}
    v_sin_f32 v{Z1+1}, v{T0+9}
    v_cos_f32 v{Z256}, v{T0+5}
    v_sin_f32 v{Z256+1}, v{T0+5}
    v_mul_f32 v{BB}, v{BB}, v{DT}
    v_mul_f32 v{BB+1}, v{BB+1}, v{DT}
    .p2align 3
    """)
    cmul(H[0], CC, BB)
    A(f"v_pk_mul_f32 {vr(Z1,2)}, {vr(Z1,2)}, {vr(T0+8,2)} op_sel_hi:[1,0]")
    A(f"v_pk_mul_f32 {vr(Z256,2)}, {vr(Z256,2)}, {vr(T0+4,2)} op_sel_hi:[1,0]")
    put(H[0], hi_rows_of(0), True)
    for e in range(1, 9):
        cmul(H[e], H[e-1], Z1); put(H[e], hi_rows_of(e), True)
        if e == 3 or (SPLIT and e == 8): maybe_gather()
    cur = {e: H[e] for e in (0, 2, 4, 6, 8)}
    spare = [H[1], H[3], H[5], H[7], T0, T0 + 2]
    for blk, es in [(1, (0, 2, 4, 6, 8)), (2, (0, 4, 8)), (3, (0, 4, 8)), (4, (8,)), (5, (8,)), (6, (8,)), (7, (8,))]:
        for e in es:
            d = spare.pop(0); cmul(d, cur[e], Z256); put(d, hi_rows_of(256 * blk + e), True)
            spare.append(cur[e]); cur[e] = d
        if blk == 2 or (SPLIT and blk == 7): maybe_gather()
    if SPLIT: A("s_mov_b32 s59, 1\ns_cbranch_scc1 K1_PASS")
    else: A("s_cbranch_scc1 K1_PEND")
    stamp(12)
    A("s_mov_b32 s52, 0\ns_waitcnt lgkmcnt(0)\ns_barrier")
    for k in range(gk[0], 8): gather(k)
    for k in range(4): A(f"buffer_load_dwordx4 {vr(G+4*k,4)}, v5, s[12:15], s58 offen offset:{1024*k} sc1")
    A("s_branch K2_LSETUP\nK1_POLL:")
    for k in range(4): A(f"buffer_load_dwordx4 {vr(G+4*k,4)}, v5, s[12:15], s58 offen offset:{1024*k} sc1")
    A("K1_BACK:")
    A("s_add_u32 s52, s52, 1\ns_waitcnt vmcnt(0)")
    for k in range(8): A(f"v_xor_b32 v{48+k}, s54, v{G+2*k+1}")
    A("""
    v_or3_b32 v48, v48, v49, v50
    v_or3_b32 v51, v51, v52, v53
    v_or3_b32 v48, v48, v54, v55
    v_or_b32 v48, v48, v51
    v_cmp_ne_u32 vcc, 0, v48
    s_cmp_lt_u32 s52, 0x40000
    s_cbranch_vccz K1_GOT
    s_sleep 4
    s_cbranch_scc1 K1_POLL
    K1_GOT:
    """)
    stamp(10)
    if PROF: A("s_add_u32 s86, s64, s52")
    X = 48; RS, NB = 80, 88; U = 112; UP = 96
    for r in range(8):
        A(f"v_and_b32 v{RS+r}, 0xffff0000, v{G+2*r}\nv_rcp_f32 v{RS+r}, v{RS+r}\nv_lshlrev_b32 v{NB+r}, 16, v{G+2*r}")
    for r in range(0, 8, 2):
        A(f"v_pk_mul_f32 {vr(NB+r,2)}, {vr(NB+r,2)}, {vr(RS+r,2)} neg_lo:[1,0] neg_hi:[1,0]")
    for c in range(4):
        for r in range(8):
            src = XR + 2 * r + (c >> 1)
            A(f"v_and_b32 v{X+8*c+r}, 0xffff0000, v{src}" if c & 1 else f"v_lshlrev_b32 v{X+8*c+r}, 16, v{src}")
        for r in range(0, 8, 2): A(f"v_pk_fma_f32 {vr(U+8*c+r,2)}, {vr(X+8*c+r,2)}, {vr(RS+r,2)}, {vr(NB+r,2)}")
        for k in range(4): A(f"v_cvt_pk_bf16_f32 v{UP+4*c+k}, v{U+8*c+7-2*k}, v{U+8*c+6-2*k}")
        A(f"ds_write_b128 v235, {vr(UP+4*c,4)} offset:{c * 4608}")
    A("s_waitcnt lgkmcnt(0)\ns_barrier")
    stamp(2)
    A("buffer_load_dword v6, v10, s[12:15], 0 offen sc1")
    xw = []
    for c in range(4):
        ba = "v236" if c < 2 else "v237"; co = (c & 1) * K1_CH
        xw += [f"ds_write_b128 {ba}, {vr(X+8*c,4)} offset:{co}", f"ds_write_b128 {ba}, {vr(X+8*c+4,4)} offset:{co+16}"]
    NXW = E("NXW", 3)
    for o in xw[:NXW]: A(o)
    A(f"""
    s_lshl_b32 s52, s4, 8
    s_add_u32 s52, s52, s2
    s_sub_u32 s52, s52, 90
    s_cmp_ge_u32 s52, 6
    s_cbranch_scc1 K1_NOBUMP
    v_and_b32 v14, 31, v1
    v_lshlrev_b32 v14, 2, v14
    v_mov_b32 v15, s54
    s_lshl_b32 s52, s2, 7
    s_add_u32 s52, s52, {WS_HR1:#x}
    buffer_store_dword v15, v14, s[12:15], s52 offen sc1
    K1_NOBUMP:
    s_branch K2_LOADER
    """)
    A("K1_PEND:\ns_mov_b32 m0, s55\ns_waitcnt lgkmcnt(0)")
    FA, FB = 112, 144
    def kmf(tb, first):
        for ks in range(8):
            A(f"ds_read_b128 {vr(FA+4*ks,4)}, v228 offset:{tb + TAB_HI + ks*32}\nds_read_b128 {vr(FB+4*ks,4)}, v228 offset:{tb + ks*32}")
        for ks in range(8):
            A(f"s_waitcnt lgkmcnt({14-2*ks})")
            A(f"v_mfma_f32_32x32x16_bf16 {vr(ACC,16)}, {vr(FA+4*ks,4)}, {vr(FB+4*ks,4)}, {'0' if first and ks == 0 else vr(ACC,16)}")
    kmf(0, True)
    stamp(12)
    A("s_barrier")
    A(f"v_add_u32 v228, {K1_TB}, v228")
    kmf(0, False)
    a = lambda r: f"v{ACC+r}"
    O = 112
    def pk(d, x, y): A(f"v_cvt_pk_bf16_f32 v{d}, {x}, {y}")
    A(f"""
    s_mov_b64 exec, 0xff
    ds_write_addtid_b32 v240
    s_mov_b64 exec, -1
    s_lshr_b64 s[44:45], s[44:45], s62
    s_lshl_b32 s44, s44, 16
    v_mov_b32 v2, s44
    v_cndmask_b32 v2, 0, v2, s[50:51]
    s_nop 4
    v_add_f32 {a(0)}, {a(0)}, v2
    v_readlane_b32 s52, {a(10)}, 63
    v_readfirstlane_b32 s53, {a(0)}
    """)
    pk(O+0, a(0), a(1)); pk(O+1, a(2), a(3)); pk(O+2, a(1), a(2)); pk(O+3, a(3), a(4))
    A(f"ds_write_b64 v229, {vr(O,2)} offset:32\nds_write_b64 v229, {vr(O+2,2)} offset:{KC1+32}")
    p, q, r_ = a(5), a(6), a(7)
    pk(O+4, p, p); pk(O+5, q, r_); pk(O+6, p, q); pk(O+7, r_, r_)
    A(f"ds_write_b64 v229, {vr(O+4,2)} offset:{32+512}\nds_write_b64 v229, {vr(O+6,2)} offset:{KC1+32+512}")
    p, q, r_ = a(8), a(9), a(10)
    pk(O+8, p, p); pk(O+9, p, q); pk(O+10, q, q); pk(O+11, r_, r_)
    pk(O+12, p, p); pk(O+13, q, q); pk(O+14, q, r_); pk(O+15, r_, r_)
    A(f"ds_write_b128 v230, {vr(O+8,4)} offset:{32+1024}\nds_write_b128 v230, {vr(O+12,4)} offset:{KC1+32+1024}")
    A(f"""
    v_cvt_pk_bf16_f32 v2, 0, s53
    v_cvt_pk_bf16_f32 v3, s52, s52
    v_cvt_pk_bf16_f32 v4, s52, 0
    v_cndmask_b32 v2, 0, v2, s[36:37]
    v_cndmask_b32 v3, 0, v3, s[38:39]
    v_cndmask_b32 v4, v3, v4, s[48:49]
    s_mov_b64 exec, 0xff
    ds_write_addtid_b32 v2 offset:{KC1}
    s_mov_b64 exec, 0xffff
    ds_write_addtid_b32 v4 offset:{32+2048}
    ds_write_addtid_b32 v3 offset:{KC1+32+2048}
    s_mov_b64 exec, -1
    """)
    pk(5, a(11), a(12))
    D = 16; AR = 48; BUF = [176, 200]; A32 = 224
    mm = lambda d, a_, b_, c_=None: f"v_mfma_f32_16x16x32_bf16 {vr(d,4)}, {vr(a_,4)}, {vr(b_,4)}, {vr(d,4) if c_ is None else c_}"
    def aload(s0):
        ops = []
        for s1 in range(4):
            o = (s1 & 1) * 128 + 16 * s0; r = AR + 16 * s0 + 4 * s1
            ops += [f"ds_read2_b32 {vr(r,2)}, v{232 + s1//2} offset0:{o} offset1:{o+1}", f"ds_read2_b32 {vr(r+2,2)}, v{232 + s1//2} offset0:{o+2} offset1:{o+3}"]
        return ops
    bread = lambda r, e1, s0, x=0: f"ds_read_b128 {vr(r,4)}, v234 offset:{512*(7-e1) + 64*s0 + x}"
    def bload(it):
        es = range(0, 5) if it < 8 else range(2, 8)
        return [bread(BUF[it & 1] + 4 * k, e1, it & 7) for k, e1 in enumerate(es)]
    def rkread(r, ty, oi):
        o = ty * 160 + (48 - 16 * oi) // 2
        return [f"ds_read2_b32 {vr(r,2)}, v236 offset0:{o} offset1:{o+1}", f"ds_read2_b32 {vr(r+2,2)}, v236 offset0:{o+8} offset1:{o+9}"]
    def conv_m(it, tiles=None):
        s0 = it & 7; e0 = 0 if it < 8 else 2
        tl = tiles if tiles is not None else (range(0, 5) if it < 8 else range(5, 8))
        return [mm(D + 4 * i, AR + 16 * s0 + 4 * s1, BUF[it & 1] + 4 * (i - s1 - e0), "0" if (s0 == 0 and s1 == 0) else None) for s1 in range(4) for i in tl if i >= s1]
    A(f"""
    ds_write_b16 v231, v5 offset:{4 + 126}
    ds_write_b16 v231, v5 offset:{320 + 4 + 124}
    ds_write_b16_d16_hi v231, v5 offset:{4 + 126 - 64}
    ds_write_b16_d16_hi v231, v5 offset:{320 + 4 + 124 - 64}
    ds_read2_b32 {vr(A32,2)}, v239 offset0:0 offset1:1
    ds_read2_b32 {vr(A32+2,2)}, v239 offset0:2 offset1:3
    """)
    NAE = E("NAE", 4)
    for o in aload(0) + rkread(144, 0, 0) + rkread(148, 1, 0): A(o)
    for s0 in range(1, NAE):
        for o in aload(s0): A(o)
    A(f"""
    v_mov_b64 v[166:167], 0
    v_mov_b64 v[170:171], 0
    s_lshl_b32 s47, s5, 12
    s_add_u32 s47, s47, {WS_HT:#x}
    v_and_b32 v2, 15, v1
    v_lshrrev_b32 v3, 4, v1
    v_lshlrev_b32 v2, 5, v2
    v_lshl_add_u32 v238, v3, 3, v2
    v_mov_b32 v2, {K1_CNT}
    v_mov_b32 v3, 1
    s_barrier
    """)
    stamp(2)
    b0 = bload(0)
    A(b0[0]); A(bread(152, 0, 0, 16))
    for o in b0[1:]: A(o)
    A("s_waitcnt lgkmcnt(4)")
    A(mm(156, BUF[0], 244, "0")); A(mm(160, 152, 248, "0"))
    BS1 = [4, 8, 12, 228, 240]; BS2 = {5: 4, 6: 8, 7: 12}
    def fin(i, bs):
        d = D + 4 * i
        o = d if i in (0, 2, 4, 5, 6) else d - 2
        ops = [f"v_pk_add_f32 {vr(d,2)}, {vr(d,2)}, {vr(bs,2)}", f"v_pk_add_f32 {vr(d+2,2)}, {vr(d+2,2)}, {vr(bs+2,2)}",
               f"v_cvt_pk_bf16_f32 v{o}, v{d}, v{d+1}", f"v_cvt_pk_bf16_f32 v{o+1}, v{d+2}, v{d+3}"]
        if i in (1, 3, 7):
            p_ = d - 4
            ops += ["s_nop 1", f"v_permlane16_swap_b32 v{p_}, v{p_+2}", f"v_permlane16_swap_b32 v{p_+1}, v{p_+3}",
                    f"buffer_store_dwordx4 {vr(p_,4)}, v237, s[12:15], s47 offen offset:{512*(i-1)} sc1"]
        if i in (4, 5): ops += [f"buffer_store_dwordx2 {vr(d,2)}, v238, s[12:15], s47 offen offset:{512*i} sc1"]
        return ops
    BDI = E("BDI", 2); DRI = E("DRI", 13)
    pend_a = [o for s0 in range(NAE, 8) for o in aload(s0)]
    fin1 = [o for i in range(5) for o in fin(i, BS1[i])]
    FB_, FU, FRK, FWD, FWF = 48, 64, 80, 112, 16
    for it in range(16):
        A("s_waitcnt lgkmcnt(0)")
        if E("CST", 0) and it in (4, 7, 8, DRI, DRI + 1): stamp({4: 1, 7: 12, 8: 7, DRI: 9, DRI + 1: 8}[it])
        if it == 7:
            A("""
            s_mov_b32 s52, 0
            K1_XW:
            v_cmp_ne_u32 vcc, 4, v239
            s_add_u32 s52, s52, 1
            s_cbranch_vccz K1_XD
            ds_read_b32 v239, v2 offset:16
            s_cmp_lt_u32 s52, 0x100000
            s_waitcnt lgkmcnt(0)
            s_cbranch_scc1 K1_XW
            K1_XD:
            """)
        if it == DRI: A("s_waitcnt vmcnt(0)\ns_mov_b64 exec, 1\nds_add_u32 v2, v3 offset:12\ns_mov_b64 exec, -1\ns_nop 1")
        m = conv_m(it)
        ld = bload(it + 1) if it < 15 else []
        va = []
        if it == 0:
            m = m + [mm(D + 16, A32, BUF[0])]
            va = [None] * 8 + [f"v_cvt_pk_bf16_f32 v{164+4*ty+k}, v{156+4*ty+2*k}, v{157+4*ty+2*k}" for ty in range(2) for k in range(2)]
        if it == 1: m = [mm(D + 16, 164, 144), mm(D + 16, 168, 148)] + m
        if it < 7 and (it >= 2 or len(pend_a) > 16):
            ld = ld + pend_a[:8]; pend_a = pend_a[8:]
        if it == 6: ld = ld + [None] * 4 + ["ds_read_b32 v239, v2 offset:16"]
        if it == 7:
            assert not pend_a
            ld = ld + [f"ds_read_b128 {vr(BS1[i],4)}, v235 offset:{K1_BASE + 1024*i}" for i in range(5)]
        if it == 12: ld = ld + [bread(FB_ + 4 * k, k, 0) for k in range(4)]
        if it == 11: ld = ld + [bread(FU + 4 * k, k, 0, 16) for k in range(4)]
        if it in (13, 14):
            rk = [x for oi in range(4) for x in rkread(FRK + ((it - 13) * 4 + oi) * 4, it - 13, oi)]
            ld = ld + ["\n".join(rk[2*k: 2*k+2]) for k in range(4)]
        if it == 14:
            m = [mm(FWD + 4 * k, FB_ + 4 * k, 244, "0") for k in range(4)] + [mm(FWD + 16 + 4 * k, FU + 4 * k, 248, "0") for k in range(4)] + \
                [mm(D + 4 * i, A32, FB_ + 4 * (i - 4)) for i in (5, 6, 7)] + m
            ld = ld + [f"ds_read_b128 {vr(BS2[i],4)}, v235 offset:{K1_BASE + 1024*i}" for i in (5, 6, 7)]
            cv = [f"v_cvt_pk_bf16_f32 v{FWF+k}, v{FWD+2*k}, v{FWD+2*k+1}" for k in range(16)]
            va = [None] * 14 + ["\n".join(cv[2*k: 2*k+2]) for k in range(8)]
        if it == 15:
            far = lambda i: [mm(D + 4 * i, FWF + (ty * 2 + ks) * 4, FRK + (ty * 4 + i - 4 - 2 * ks) * 4) for ty in range(2) for ks in range(1 if i < 6 else 2)]
            m = conv_m(15, [5]) + far(5) + conv_m(15, [6]) + far(6) + conv_m(15, [7]) + far(7)
            va = [None] * 14 + fin(5, BS2[5])
        for k, x in enumerate(m):
            A(x)
            if k < len(ld) and ld[k]: A(ld[k])
            if k < len(va) and va[k]: A(va[k])
            if it >= 8 and (it > 8 or k >= 3):
                for _ in range(1 if k < len(ld) else 2):
                    if fin1: A(fin1.pop(0))
        assert len(ld) <= len(m) and len(va) <= len(m), (it, len(ld), len(va), len(m))
    for o in fin(6, BS2[6]): A(o)
    A("s_nop 3")
    for o in fin(7, BS2[7]): A(o)
    A("s_branch K2_COMP")

    A(f"""
    K1_PREP:
    s_sub_u32 s3, s2, 160
    s_lshl_b32 s46, s3, 3
    s_add_u32 s46, s46, s60
    s_sub_u32 s46, s46, {432 - 352}
    s_add_u32 s47, s46, 336
    """)
    rowaddr(46, "v4", "v5"); rowaddr(47, "v12", "v13")
    A(f"""
    s_waitcnt lgkmcnt(0)
    s_load_dword s54, s[6:7], 0
    s_mov_b32 s12, s6
    s_mov_b32 s13, s7
    s_mov_b32 s14, {WS_SIZE:#x}
    s_mov_b32 s15, 0x00020000
    s_cmp_lt_u32 s3, 54
    s_cbranch_scc0 K1_ST
    s_cmp_eq_u32 s61, 0
    s_cbranch_scc1 K1_PREPW
    s_waitcnt lgkmcnt(0)
    s_add_u32 s53, s54, {TAG_INC:#x}
    s_branch K1_PH
    K1_ST:
    """)
    rowload(48, "v4", "v5"); rowload(64, "v12", "v13")
    A(f"""
    s_mov_b32 s45, 2
    s_lshl_b32 s46, s46, 4
    s_add_u32 s46, s46, {WS_ST:#x}
    s_waitcnt vmcnt(3) lgkmcnt(0)
    s_add_u32 s53, s54, {TAG_INC:#x}
    K1_ST1:
    """)
    rowstats("s46")
    A("s_waitcnt vmcnt(1)")
    for r in range(0, 10, 2): A(f"v_mov_b64 {vr(48+r,2)}, {vr(64+r,2)}")
    A(f"s_add_u32 s46, s46, {336*16}\ns_sub_u32 s45, s45, 1\ns_cmp_lg_u32 s45, 0\ns_cbranch_scc1 K1_ST1")
    stamp(1)
    A(f"""
    s_barrier
    s_cmp_eq_u32 s61, 0
    s_cbranch_scc1 K1_PREPD
    K1_PH:
    s_barrier
    s_mov_b32 s54, s53
    v_mov_b32 v8, {K1_CNT}
    s_mov_b32 s52, 0
    K1_WD:
    ds_read_b32 v9, v8 offset:4
    s_add_u32 s52, s52, 1
    s_waitcnt lgkmcnt(0)
    v_cmp_ne_u32 vcc, 4, v9
    s_cmp_lt_u32 s52, 0x100000
    s_cbranch_vccz K1_WD2
    s_sleep 4
    s_cbranch_scc1 K1_WD
    K1_WD2:
    s_cmp_lt_u32 s2, 250
    s_cbranch_scc1 K2_LSETUP
    s_lshl_b32 s3, s2, 7
    s_add_u32 s3, s3, {WS_HR1 - 160*128:#x}
    v_mov_b32 v5, s3
    """)
    poll("K1_PHR1", "v5", "v6", slp=8)
    A(f"""
    s_branch K2_LSETUP
    K1_PREPW:
    s_cmp_ge_u32 s3, 27
    s_cselect_b32 s40, 1, 0
    s_cselect_b32 s8, s38, s36
    s_cselect_b32 s9, s39, s37
    s_mul_i32 s41, s40, 27
    s_sub_u32 s41, s3, s41
    s_mov_b32 s10, {640*1728*2}
    s_mov_b32 s11, 0x00020000
    v_lshrrev_b32 v2, 3, v1
    v_and_b32 v3, 7, v1
    v_and_b32 v4, 6, v2
    v_xor_b32 v3, v3, v4
    v_mul_u32_u24 v2, 3456, v2
    v_lshl_add_u32 v2, v3, 4, v2
    s_lshl_b32 s42, s41, 7
    s_mul_i32 s43, s4, 552960
    s_add_u32 s42, s42, s43
    s_mul_i32 s44, s4, 20480
    s_mov_b32 s45, 0
    K1_PW_LD:
    s_mov_b32 m0, s44
    s_add_u32 s44, s44, 1024
    s_add_u32 s45, s45, 1
    buffer_load_dwordx4 v2, s[8:11], s42 offen lds
    s_add_u32 s42, s42, 27648
    s_cmp_lt_u32 s45, 20
    s_cbranch_scc1 K1_PW_LD
    v_lshrrev_b32 v2, 2, v1
    v_and_b32 v3, 6, v2
    v_bfe_u32 v4, v1, 1, 1
    s_lshl_b32 s43, s4, 1
    v_add_u32 v4, s43, v4
    v_xor_b32 v3, v3, v4
    v_lshlrev_b32 v2, 7, v2
    v_lshl_add_u32 v2, v3, 4, v2
    v_and_b32 v3, 1, v1
    v_lshl_add_u32 v2, v3, 3, v2
    v_add_u32 v4, 40960, v2
    s_lshl_b32 s43, s41, 2
    s_add_u32 s43, s43, s4
    s_mul_i32 s44, s43, 9363
    s_lshr_b32 s44, s44, 16
    s_mul_i32 s45, s44, 7
    s_sub_u32 s45, s43, s45
    s_mul_i32 s46, s44, {20*14*1024}
    s_add_u32 s46, s46, {WS_W1P:#x}
    s_cmp_gt_u32 s45, 3
    s_cselect_b32 s47, 3, 0
    s_add_u32 s47, s47, s45
    s_mul_i32 s48, s40, 3
    s_add_u32 s47, s47, s48
    s_lshl_b32 s47, s47, 10
    v_bfe_u32 v6, v1, 2, 1
    v_bfe_u32 v7, v1, 3, 1
    v_xor_b32 v6, v6, v7
    v_mul_u32_u24 v6, 12, v6
    s_and_b32 s48, s45, 3
    s_cmp_eq_u32 s48, 2
    s_cselect_b32 s48, -1, 0
    v_and_b32 v6, s48, v6
    v_xor_b32 v5, v6, v1
    v_lshlrev_b32 v5, 4, v5
    v_add_u32 v5, s47, v5
    v_and_b32 v6, 7, v1
    v_and_b32 v7, 48, v1
    v_add_u32 v6, v6, v7
    s_lshl_b32 s48, s40, 3
    v_add_u32 v6, s48, v6
    v_lshlrev_b32 v6, 4, v6
    v_bfe_u32 v7, v1, 3, 1
    v_mul_u32_u24 v7, 7168, v7
    v_add3_u32 v6, v6, v7, 0
    v_add_u32 v6, 6144, v6
    s_cmp_eq_u32 s45, 3
    s_cselect_b64 vcc, -1, 0
    s_nop 1
    v_cndmask_b32 v5, v5, v6, vcc
    s_waitcnt vmcnt(0)
    s_barrier
    """)
    stamp(2)
    F = 16
    for ks in range(20):
        base = "v2" if ks < 10 else "v4"; o = (ks % 10) * 4096
        A(f"ds_read_b64_tr_b16 {vr(F+4*ks,2)}, {base} offset:{o}\nds_read_b64_tr_b16 {vr(F+4*ks+2,2)}, {base} offset:{o+2048}")
    A("v_mov_b32 v8, 0\nv_mov_b32 v9, 0\nv_mov_b32 v10, 0x3f803f80\ns_mov_b32 s47, 0xffff0000\ns_waitcnt lgkmcnt(0)")
    for i in range(0, 80, 2): A(f"v_dot2c_f32_bf16 v8, v10, v{F+i}\nv_dot2c_f32_bf16 v9, v10, v{F+i+1}")
    A("""
    s_nop 2
    v_add_f32 v8, v8, v9
    v_mov_b32 v9, v8
    s_nop 1
    v_permlane16_swap_b32 v8, v9
    s_nop 1
    v_add_f32 v8, v8, v9
    v_mov_b32 v9, v8
    s_nop 1
    v_permlane32_swap_b32 v8, v9
    s_nop 1
    v_add_f32 v8, v8, v9
    v_mul_f32 v8, 0xbacccccd, v8
    s_mov_b32 s47, 0x3f80
    s_mov_b32 s48, 0x3f800000
    .p2align 3
    """)
    for ks in range(20):
        for i in range(4):
            r = F + 4 * ks + i; t = 100 + 2 * i
            A(f"v_dot2_f32_bf16 v{t}, v{r}, s47, v8\nv_dot2_f32_bf16 v{t+1}, v{r}, s48, v8")
        for i in range(4):
            r = F + 4 * ks + i; t = 100 + 2 * i
            A(f"v_cvt_pk_bf16_f32 v{r}, v{t}, v{t+1}")
        A(f"buffer_store_dwordx4 {vr(F+4*ks,4)}, v5, s[12:15], s46 offen sc1\ns_add_u32 s46, s46, {14*1024}")
        if ks == NEK + ELAG - 1:
            A(f"""
            v_mov_b32 v11, {K1_CNT}
            v_mov_b32 v12, 1
            s_waitcnt vmcnt({ELAG})
            s_mov_b64 exec, 1
            ds_add_rtn_u32 v13, v11, v12 offset:8
            s_mov_b64 exec, -1
            s_add_u32 s44, s54, {TAG_INC:#x}
            v_and_b32 v14, 31, v1
            v_lshlrev_b32 v14, 2, v14
            v_mov_b32 v15, s44
            s_lshl_b32 s45, s2, 7
            s_add_u32 s45, s45, {WS_FE:#x}
            s_waitcnt lgkmcnt(0)
            v_readfirstlane_b32 s44, v13
            s_cmp_lg_u32 s44, 3
            s_cbranch_scc1 K1_NOFE
            buffer_store_dword v15, v14, s[12:15], s45 offen sc1
            K1_NOFE:
            """)
            stamp(1)
    A("s_branch K2_COMPP")
    tabv = [Q_TILES[r][hf] for r in range(7) for hf in range(2)]
    t64 = sum(v << (4 * i) for i, v in enumerate(tabv))
    A(f"""
    K1_PREPD:
    s_sub_u32 s3, s3, 54
    s_cmp_lt_u32 s3, 36
    s_cbranch_scc1 K1_PD0
    s_barrier
    s_branch K2_COMPP
    K1_PD0:
    """)
    srd(8, 92, 1728 * 640 * 2)
    for i in range(5):
        A(f"""
        v_add_u32 v2, {64*i}, v1
        v_mul_u32_u24 v3, 6554, v2
        v_lshrrev_b32 v3, 16, v3
        v_mul_u32_u24 v4, 1120, v3
        v_lshl_add_u32 v{40+i}, v2, 4, v4
        v_lshrrev_b32 v{45+i}, 4, v3
        """)
    A(f"""
    s_mul_i32 s40, s3, 12
    s_add_u32 s40, s40, s4
    s_mul_i32 s49, s4, 15360
    s_mov_b32 s45, 0
    K1_PD1:
    s_lshr_b32 s36, s40, 3
    s_mul_i32 s37, s36, 9363
    s_lshr_b32 s37, s37, 16
    s_mul_i32 s38, s37, 7
    s_sub_u32 s38, s36, s38
    s_lshl_b32 s39, s38, 3
    s_mov_b32 s50, {t64 & 0xffffffff:#x}
    s_mov_b32 s51, {t64 >> 32:#x}
    s_lshr_b64 s[50:51], s[50:51], s39
    s_mul_i32 s37, s37, 14
    s_and_b32 s48, s50, 15
    s_add_u32 s48, s48, s37
    s_lshr_b32 s50, s50, 4
    s_and_b32 s50, s50, 15
    s_add_u32 s50, s50, s37
    s_min_u32 s50, s50, 107
    s_sub_u32 s50, s50, s48
    s_sub_u32 s50, s50, 1
    s_mul_i32 s39, s50, 20480
    s_mul_i32 s48, s48, 20480
    s_and_b32 s37, s40, 7
    s_mul_i32 s37, s37, 160
    s_add_u32 s48, s48, s37
    """)
    for i in range(5):
        A(f"s_add_u32 m0, s49, {1024*i}\nv_mad_u32_u24 v2, v{45+i}, s39, v{40+i}\nbuffer_load_dwordx4 v2, s[8:11], s48 offen lds")
    A(f"""
    s_add_u32 s40, s40, 4
    s_add_u32 s49, s49, 5120
    s_add_u32 s45, s45, 1
    s_cmp_lt_u32 s45, 3
    s_cbranch_scc1 K1_PD1
    s_sub_u32 s40, s40, 12
    s_sub_u32 s49, s49, 15360
    v_lshrrev_b32 v6, 4, v1
    v_bfe_u32 v7, v1, 2, 2
    v_and_b32 v8, 3, v1
    v_lshlrev_b32 v5, 4, v1
    s_waitcnt vmcnt(0)
    s_barrier
    """)
    stamp(2)
    A(f"""
    K1_PD3:
    s_lshr_b32 s36, s40, 3
    s_mul_i32 s37, s36, 9363
    s_lshr_b32 s37, s37, 16
    s_mul_i32 s38, s37, 7
    s_sub_u32 s38, s36, s38
    s_lshr_b32 s39, s38, 1
    s_mul_i32 s36, s37, 3
    s_lshl_b32 s37, s37, 2
    s_add_u32 s37, s37, 23
    s_and_b32 s38, s38, 1
    s_cselect_b32 s36, s36, s37
    s_add_u32 s36, s36, s39
    v_lshlrev_b32 v2, s38, v6
    v_lshl_add_u32 v2, v2, 2, v7
    v_mul_u32_u24 v2, 160, v2
    v_lshl_add_u32 v2, v8, 3, v2
    v_add_u32 v2, s49, v2
    s_cmp_eq_u32 s38, 1
    s_movk_i32 s38, 2560
    s_cselect_b32 s38, 640, s38
    v_add_u32 v3, s38, v2
    s_and_b32 s37, s40, 7
    s_mul_i32 s37, s37, {54*5120}
    s_mul_i32 s36, s36, 5120
    s_add_u32 s50, s37, s36
    s_add_u32 s50, s50, {WS_WDP:#x}
    s_add_u32 s51, s50, 4096
    """)
    for t in range(5): A(f"ds_read_b64_tr_b16 {vr(16+4*t,2)}, v2 offset:{32*t}\nds_read_b64_tr_b16 {vr(16+4*t+2,2)}, v3 offset:{32*t}")
    A("s_waitcnt lgkmcnt(0)")
    for t in range(5): A(f"buffer_store_dwordx4 {vr(16+4*t,4)}, v5, s[12:15], {'s50' if t < 4 else 's51'} offen offset:{1024*(t&3)} sc1")
    A("""
    s_add_u32 s40, s40, 4
    s_add_u32 s49, s49, 5120
    s_sub_u32 s45, s45, 1
    s_cmp_lg_u32 s45, 0
    s_cbranch_scc1 K1_PD3
    s_branch K2_COMPP
    """)

    A("K2_LSETUP:")
    map2()
    RW = 16
    A(f"""
    s_mul_i32 s35, s37, {54*5120}
    s_add_u32 s35, s35, {WS_WDP:#x}
    s_mul_i32 s26, s4, 15360
    s_add_u32 s29, s35, s26
    s_add_u32 s29, s29, 153600
    v_min_u32 v13, 35, v1
    v_lshlrev_b32 v13, 7, v13
    v_add_u32 v13, {WS_FP + 214*128:#x}, v13
    """)
    def batch(b):
        for i in range(15):
            A(f"buffer_load_dwordx4 {vr(RW+(b*15+i)*4,4)}, v4, s[12:15], s29 offen offset:{1024*(i&3)} sc1")
            if (i & 3) == 3: A("s_add_u32 s29, s29, 4096")
        if b == 0: A(f"s_add_u32 s29, s29, {61440 - 12288}")
    A(f"""
    s_mul_i32 s20, s17, 7
    s_lshr_b32 s20, s20, 2
    v_and_b32 v7, 3, v1
    v_min_u32 v7, 2, v7
    v_add_u32 v7, s20, v7
    v_min_u32 v7, 26, v7
    v_bfe_u32 v6, v1, 2, 1
    v_mad_u32_u24 v7, v6, 27, v7
    v_add_u32 v12, 160, v7
    v_lshlrev_b32 v7, 7, v7
    v_add_u32 v10, {WS_FE + 160*128:#x}, v7
    v_lshrrev_b32 v8, 4, v1
    v_and_b32 v6, 15, v1
    v_lshlrev_b32 v7, 1, v8
    v_xor_b32 v2, v6, v7
    v_xor_b32 v3, 8, v2
    v_lshlrev_b32 v7, 12, v8
    v_lshl_add_u32 v2, v2, 4, v7
    v_lshl_add_u32 v3, v3, 4, v7
    s_lshl_b32 s20, s4, 16
    s_lshl_b32 s21, s16, 8
    s_add_u32 s20, s20, s21
    s_add_u32 s20, s20, {WS_HT:#x}
    s_mul_i32 s21, s17, {20*14*1024}
    s_mul_i32 s22, s4, 7168
    s_add_u32 s21, s21, s22
    s_add_u32 s21, s21, {WS_W1P:#x}
    s_lshl_b32 s23, s4, 12
    s_add_u32 s23, s23, {XS}
    s_add_u32 s24, s22, {WB + WSL}
    s_mov_b32 s33, {XS}
    s_mov_b32 s34, {WSL}
    v_min_u32 v7, 39, v1
    v_lshrrev_b32 v8, 2, v7
    v_and_b32 v7, 3, v7
    v_lshl_add_u32 v7, v8, 4, v7
    s_lshl_b32 s22, s4, 2
    v_add_u32 v7, s22, v7
    v_min_u32 v8, 48, v1
    s_mul_i32 s22, s4, 9
    s_add_u32 s22, s22, {214 - 40}
    v_add_u32 v8, s22, v8
    v_cmp_gt_u32 vcc, 40, v1
    s_nop 1
    v_cndmask_b32 v7, v8, v7, vcc
    v_cmp_gt_u32 vcc, 56, v1
    s_nop 1
    v_cndmask_b32 v7, v12, v7, vcc
    v_lshlrev_b32 v7, 7, v7
    v_add_u32 v7, {WS_FP:#x}, v7
    s_cmp_lt_u32 s2, 160
    s_cselect_b32 s22, {WS_FA - WS_FP:#x}, 0
    v_mov_b32 v8, s22
    v_cmp_gt_u32 vcc, 40, v1
    s_nop 1
    v_cndmask_b32 v8, 0, v8, vcc
    v_add_u32 v7, v7, v8
    v_mov_b32 v8, {K1_CNT}
    """)
    def dma_x():
        A("""
        s_mov_b32 m0, s23
        s_add_u32 s25, s20, 15360
        buffer_load_dwordx4 v2, s[12:15], s20 offen sc1 lds
        s_add_u32 s27, s20, 30720
        buffer_load_dwordx4 v3, s[12:15], s25 offen offset:1024 sc1 lds
        s_add_u32 s25, s20, 46080
        buffer_load_dwordx4 v2, s[12:15], s27 offen offset:2048 sc1 lds
        s_add_u32 s20, s20, 0x40000
        buffer_load_dwordx4 v3, s[12:15], s25 offen offset:3072 sc1 lds
        """)
    def dma_w():
        A("s_mov_b32 m0, s24\ns_add_u32 s25, s21, 4096")
        for i in range(4): A(f"buffer_load_dwordx4 v4, s[12:15], s21 offen offset:{1024*i} sc1 lds")
        A(f"s_add_u32 m0, s24, 4096\ns_add_u32 s21, s21, {WSL}")
        for i in range(3): A(f"buffer_load_dwordx4 v4, s[12:15], s25 offen offset:{1024*i} sc1 lds")
    A(f"""
    s_lshl_b32 s31, s4, 10
    s_add_u32 s30, s35, s31
    v_lshrrev_b32 v240, 3, v1
    v_and_b32 v241, 7, v1
    v_lshlrev_b32 v240, 12, v240
    v_lshl_add_u32 v242, v241, 4, v240
    s_mul_i32 s40, s37, {80*4096}
    s_lshl_b32 s41, s36, 7
    s_add_u32 s40, s40, s41
    s_add_u32 s40, s40, {WS_HT:#x}
    s_lshl_b32 s41, s4, 15
    s_add_u32 s40, s40, s41
    s_add_u32 s42, s31, {G1_END}
    s_add_u32 s41, s31, {RES_LDS}
    v_add_u32 v240, s26, v4
    v_add_u32 v243, 61440, v240
    v_add_u32 v244, s31, v4
    v_add_u32 v245, 0x10000, v244
    v_lshl_add_u32 v241, s4, 3, v241
    v_lshlrev_b32 v241, {FSH}, v241
    s_lshl_b32 s38, s36, {FSH + 5}
    s_add_u32 s39, s38, {WS_FH2:#x}
    s_add_u32 s38, s38, {WS_FH:#x}
    """)
    A("s_cmp_lt_u32 s2, 160\ns_cbranch_scc1 K1_BACK")
    def ldswait(lbl, off):
        A(f"""
        s_mov_b32 s52, 0
        {lbl}:
        ds_read_b32 v9, v8 offset:{off}
        s_add_u32 s52, s52, 1
        s_waitcnt lgkmcnt(0)
        v_cmp_ne_u32 vcc, 4, v9
        s_cmp_lt_u32 s52, 0x100000
        s_cbranch_vccz {lbl}_D
        s_sleep 1
        s_cbranch_scc1 {lbl}
        {lbl}_D:
        """)
    def loader(C):
        L = lambda x: f"{x}{C}"
        NF0 = 26
        vq = ["F0a", "F0b"]
        rl = [0]
        def wait_for(tag, extra=""):
            last = max(i for i, t in enumerate(vq) if t == tag)
            A(f"s_waitcnt vmcnt({min(63, len(vq) - 1 - last)}) {extra}")
        def regload(n):
            for _ in range(min(n, 56 - rl[0])):
                i = rl[0]; rl[0] += 1
                if i < NF0:
                    A(f"buffer_load_dwordx4 {vr(RW+i*4,4)}, v4, s[12:15], s30 offen sc1\ns_add_u32 s30, s30, 4096"); vq.append("F0a" if i < 13 else "F0b")
                else:
                    b, j = divmod(i - NF0, 15)
                    A(f"buffer_load_dwordx4 {vr(RW+i*4,4)}, v4, s[12:15], s29 offen offset:{1024*(j&3)} sc1"); vq.append(f"B{b}")
                    if (j & 3) == 3: A("s_add_u32 s29, s29, 4096")
                    if i - NF0 == 14: A(f"s_add_u32 s29, s29, {61440 - 12288}")
        stamp(3)
        xrest = lambda: [A(o) for o in xw[NXW:] + ["v_mov_b32 v9, 1\ns_mov_b64 exec, 1\nds_add_u32 v8, v9 offset:16\ns_mov_b64 exec, -1"]]
        if C == "P":
            A("s_mov_b32 s53, 0\ns_waitcnt vmcnt(0)\nv_cmp_ne_u32 vcc, s54, v6\ns_cbranch_vccz K2_FEOK")
            xrest()
            A("s_mov_b32 s53, 1")
        poll(L("K2_P1"), "v10", "v6", slp=8)
        if C == "P": A("K2_FEOK:")
        stamp(4)
        dma_w(); A(f"s_add_u32 s24, s24, {WSL}")
        dma_w(); A(f"s_sub_u32 s24, s24, {2*WSL}")
        if C == "P":
            A("s_cmp_eq_u32 s53, 1\ns_cbranch_scc1 K2_XDONE")
            xrest()
            A("K2_XDONE:")
            ldswait("K2_WE", 12)
            A(f"""
            s_cmp_lg_u32 s4, 0
            s_cbranch_scc1 K2_NOFA
            v_and_b32 v14, 31, v1
            v_lshlrev_b32 v14, 2, v14
            v_lshrrev_b32 v15, 5, v1
            v_mul_u32_u24 v15, {WS_HA - WS_FA:#x}, v15
            v_add_u32 v14, v14, v15
            v_mov_b32 v15, s54
            s_lshl_b32 s3, s57, 7
            s_add_u32 s3, s3, {WS_FA:#x}
            buffer_store_dword v15, v14, s[12:15], s3 offen sc1
            K2_NOFA:
            """)
            ldswait("K2_WL", 4 * E("GATEB", 1))
            stamp(5)
            poll(L("K2_PC"), "v7", "v6", slp=4)
            stamp(7)
            dma_x(); A(f"s_add_u32 s23, s23, {XS}")
            dma_x(); A(f"s_sub_u32 s23, s23, {2*XS}")
            vq += ["X0"] * 4 + ["X1"] * 4
            wait_for("X0"); A("s_barrier")
            dma_x(); dma_w(); vq += ["X2"] * 11
            A(f"s_add_u32 s23, s23, {XS}\ns_add_u32 s24, s24, {WSL}")
        else:
            dma_w(); A(f"s_add_u32 s24, s24, {WSL}")
            A(f"""
            s_lshl_b32 s3, s2, 7
            s_add_u32 s43, s3, {WS_HA - 160*128:#x}
            v_writelane_b32 v13, s43, 63
            s_add_u32 s3, s3, {WS_HR2 - 160*128:#x}
            v_mov_b32 v11, s3
            s_mov_b32 s52, 0
            s_mov_b32 s53, 0
            K2_QW:
            buffer_load_dword v6, v13, s[12:15], 0 offen sc1
            s_add_u32 s52, s52, 1
            s_waitcnt vmcnt(0)
            v_cmp_ne_u32 s[44:45], s54, v6
            s_lshl_b64 s[46:47], s[44:45], 1
            s_cbranch_scc0 K2_QOK
            s_cmp_ge_i32 s45, 0
            s_cbranch_scc1 K2_QLATE
            s_mov_b64 exec, s[44:45]
            s_sleep 8
            s_cmp_lt_u32 s52, 0x40000
            s_cbranch_scc1 K2_QW
            s_branch K2_QLATE
            K2_QOK:
            s_mov_b64 exec, -1
            s_mov_b32 s53, 1
            """)
            NQ = E("NQ", 16)
            n0 = len(A.l); regload(NQ); early = A.l[n0:]
            A("K2_QLATE:\ns_mov_b64 exec, -1")
            stamp(5)
            poll("K2_PH2", "v11", "v6", slp=8)
            stamp(6)
            poll(L("K2_PC"), "v7", "v6", slp=4)
            stamp(7)
            dma_x(); A(f"s_add_u32 s23, s23, {XS}")
            dma_x(); A(f"s_sub_u32 s23, s23, {2*XS}")
            dma_x(); A(f"s_add_u32 s23, s23, {XS}")
            vq += ["X0"] * 4 + ["X1"] * 4 + ["X2"] * 4
            wait_for("X0"); A("s_barrier")
            A("s_cmp_eq_u32 s53, 1\ns_cbranch_scc1 K2_QC")
            A.l.extend(early)
            A("K2_QC:")
        EX = [int(x) for x in os.environ.get("EX" + C, {"P": "2,2,2,2,2,2,0,0,0,14,12", "Q": "8,2,2,1,0,0,0,0,0,12,12"}[C]).split(",")]
        regload(EX[0])
        for st in range(3, 10):
            k = st - 2
            wait_for(f"X{k}"); A("s_barrier")
            dma_x()
            if st == 9:
                ld = lambda base, i: A(f"buffer_load_dwordx4 v4, s[12:15], {base} offen offset:{1024*i} sc1 lds")
                A("s_add_u32 m0, s24, 4096\ns_add_u32 s25, s21, 4096"); ld("s25", 1); ld("s25", 2)
                A("s_mov_b32 m0, s24\ns_nop 0"); ld("s21", 2)
                vq += ["X9"] * 7
                wait_for("X8"); A("s_barrier")
                ld("s21", 0); ld("s21", 1); ld("s21", 3)
                A("s_add_u32 m0, s24, 4096\ns_nop 0"); ld("s25", 0)
                vq += ["X9b"] * 4
            else: dma_w(); vq += [f"X{st}"] * 11
            regload(EX[k])
            if st < 9:
                if (st + 1) % 3 == 2: A(f"s_sub_u32 s23, s23, {2*XS}\ns_sub_u32 s24, s24, {2*WSL}")
                else: A(f"s_add_u32 s23, s23, {XS}\ns_add_u32 s24, s24, {WSL}")
        A(f"s_add_u32 s24, s24, {WSL}")
        regload(EX[8])
        wait_for("X9"); A("s_barrier")
        stamp(8)
        regload(EX[9])
        wait_for("X9b"); A("s_barrier")
        regload(EX[10])
        assert rl[0] >= NF0
        def tailres():
            for i in range(4): A(f"s_add_u32 m0, s42, {4096*i}\ns_add_u32 s25, s35, m0\nbuffer_load_dwordx4 v4, s[12:15], s25 offen sc1 lds")
            for i in range(2): A(f"s_add_u32 m0, s41, {4096*i}\ns_add_u32 s25, s40, {0x20000*i}\nbuffer_load_dwordx4 v242, s[12:15], s25 offen sc1 lds")
            A(f"""
            s_cmp_lt_u32 s4, 2
            s_cbranch_scc0 {L('K2_LR')}
            s_add_u32 m0, s42, {4096*4}
            s_add_u32 s25, s35, m0
            buffer_load_dwordx4 v4, s[12:15], s25 offen sc1 lds
            s_branch {L('K2_LS')}
            {L('K2_LR')}:
            s_add_u32 m0, s41, {8192 - 2048}
            s_add_u32 s25, s40, {0x40000 - 0x10000}
            buffer_load_dwordx4 v242, s[12:15], s25 offen sc1 lds
            {L('K2_LS')}:
            """)
            vq.extend(["D"] * 7)
        def fw(i): A(f"ds_write_b128 {'v244' if i < 16 else 'v245'}, {vr(RW+i*4,4)} offset:{4096*(i & 15)}")
        def check(lbl, soff):
            A(f"v_cmp_ne_u32 vcc, s54, v11\ns_cbranch_vccz {lbl}_OK")
            poll(lbl, "v241", "v11", soff=soff, slp=4)
            A(f"{lbl}_OK:")
        TRE = E("TRE" + C, 1)
        if TRE: tailres()
        wait_for("F0a"); A("s_barrier")
        dl = ["s_mov_b32 m0, s24\ns_add_u32 s25, s35, s24\nbuffer_load_dwordx4 v4, s[12:15], s25 offen sc1 lds"] + \
             [f"buffer_load_dwordx4 v4, s[12:15], s25 offen offset:{1024*i} sc1 lds" for i in (1, 2, 3)] + \
             ["s_add_u32 m0, s24, 4096\ns_add_u32 s25, s25, 4096\nbuffer_load_dwordx4 v4, s[12:15], s25 offen sc1 lds"] + \
             [f"buffer_load_dwordx4 v4, s[12:15], s25 offen offset:{1024*i} sc1 lds" for i in (1, 2)]
        PA = E("PA" + C, 20); NS0 = E("NS0" + C, 26)
        for i in range(NS0):
            if i == 13: wait_for("F0b")
            if i == PA:
                A("buffer_load_dword v11, v241, s[12:15], s38 offen sc1"); vq.append("PA")
            fw(i)
            if dl: A(dl.pop(0)); vq.append("D")
            elif i < PA: regload(1)
        if PA >= NS0:
            A("buffer_load_dword v11, v241, s[12:15], s38 offen sc1"); vq.append("PA")
        stamp(9)
        wait_for("PA", "lgkmcnt(0)")
        check(L("K2_PA"), "s38")
        A("s_barrier")
        stamp(10)
        if not TRE: tailres()
        regload(max(0, NF0 + 15 - rl[0]))
        for i in range(NS0, NF0): fw(i)
        wait_for(vq[-1], "lgkmcnt(0)"); A("s_barrier")
        A("buffer_load_dword v11, v241, s[12:15], s39 offen sc1"); vq.append("PB")
        NWB = E("NWB", 4)
        for i in range(NWB): A(f"ds_write_b128 v240, {vr(RW+(NF0+i)*4,4)} offset:{1024*i}")
        wait_for("PB")
        check(L("K2_PB"), "s39")
        A("s_barrier")
        regload(56 - rl[0])
        for i in range(NWB, 15): A(f"ds_write_b128 v240, {vr(RW+(NF0+i)*4,4)} offset:{1024*i}")
        A("s_waitcnt lgkmcnt(0)\ns_barrier")
        A("s_waitcnt vmcnt(0)")
        for i in range(15): A(f"ds_write_b128 v243, {vr(RW+(NF0+15+i)*4,4)} offset:{1024*i}")
        A("s_waitcnt lgkmcnt(0)\ns_barrier")
        if C == "P":
            A(f"s_or_b32 s3, s2, s4\ns_cmp_lg_u32 s3, 0\ns_cbranch_scc1 K2_LEND\nv_lshlrev_b32 v5, 7, v1\nv_add_u32 v5, {WS_FP + 160*128:#x}, v5")
            poll("K2_PE0", "v5", "v6")
            A("v_add_u32 v5, 4096, v5")
            poll("K2_PE1", "v5", "v6")
            A("v_mov_b32 v6, 0\nv_mov_b32 v7, s54\nglobal_store_dword v6, v7, s[6:7] sc1\nK2_LEND:")
        finish()
    loader("Q")
    A("K2_LOADER:")
    loader("P")

    A(f"K2_COMPP:\ns_waitcnt lgkmcnt(0)\ns_add_u32 s54, s54, {TAG_INC:#x}")
    A("K2_COMP:")
    A(f"""
    v_mov_b32 v2, {K1_CNT}
    v_mov_b32 v3, 1
    v_mov_b32 v13, s54
    s_mov_b64 exec, 1
    ds_add_u32 v2, v3
    s_mov_b64 exec, -1
    """)
    stamp(3)
    map2()
    A(f"""
    v_lshrrev_b32 v5, 2, v1
    v_and_b32 v6, 7, v5
    v_and_b32 v7, 3, v1
    v_lshlrev_b32 v5, 8, v5
    v_lshl_add_u32 v5, v7, 3, v5
    v_add_u32 v5, {XS}, v5
    s_lshl_b32 s25, s18, 2
    """)
    for a_ in range(4): A(f"s_add_u32 s26, s25, {a_}\nv_xor_b32 v7, s26, v6\nv_lshl_add_u32 v{8+a_}, v7, 5, v5")
    A(f"s_mul_i32 s25, s19, 7168\ns_add_u32 s25, s25, {WB + WSL}\nv_add_u32 v12, s25, v4")
    ACC = 16; SETS = [128, 172]
    srd(8, 94, 2048 * 640 * 2)
    A(f"""
    v_mov_b32 v216, 0x3f803f80
    v_mov_b32 v217, 0x3f803f80
    v_mov_b32 v218, 0x3f803f80
    v_mov_b32 v219, 0x3f803f80
    s_mov_b32 s33, {XS}
    s_mov_b32 s34, {WSL}
    s_mov_b32 s27, 0
    s_mov_b32 s28, 1
    s_cmp_lt_u32 s2, 160
    s_cselect_b32 s20, s57, s2
    s_lshl_b32 s20, s20, 7
    s_add_u32 s20, s20, {WS_FP:#x}
    v_and_b32 v14, 31, v1
    v_lshlrev_b32 v14, 2, v14
    v_lshrrev_b32 v5, 5, v1
    v_mul_u32_u24 v5, {WS_HR2 - WS_FP:#x}, v5
    v_add_u32 v14, v14, v5
    s_waitcnt vmcnt(0)
    s_mov_b64 exec, 1
    ds_add_rtn_u32 v5, v2, v3 offset:4
    s_mov_b64 exec, -1
    s_waitcnt lgkmcnt(0)
    v_readfirstlane_b32 s21, v5
    s_cmp_lg_u32 s21, 3
    s_cbranch_scc1 K2_NOFLAG
    buffer_store_dword v13, v14, s[12:15], s20 offen sc1
    K2_NOFLAG:
    """)
    stamp(4)
    for i in range(0, 112, 2): A(f"v_mov_b64 {vr(ACC+i,2)}, 0")
    def reads(st, ks, stats):
        b = SETS[st]
        xo = [f"ds_read_b64_tr_b16 {vr(b+4*a_+2*hh,2)}, v{8+a_} offset:{ks*8192 + hh*4096}" for a_ in range(4) for hh in range(2)]
        wo = [] if stats else [f"ds_read_b128 {vr(b+16+4*w,4)}, v12 offset:{ks*14336 + w*1024}" for w in range(7)]
        return wo[:1] + xo + wo[1:]
    def mf(st, stats):
        b = SETS[st]
        if stats:
            return [f"v_mfma_f32_16x16x32_bf16 {vr(ACC+4*a_,4)}, {vr(b+4*a_,4)}, {vr(b+4*a_,4)}, {vr(ACC+4*a_,4)}" for a_ in range(4)] + \
                   [f"v_mfma_f32_16x16x32_bf16 {vr(ACC+16+4*a_,4)}, v[216:219], {vr(b+4*a_,4)}, {vr(ACC+16+4*a_,4)}" for a_ in range(4)]
        return [f"v_mfma_f32_16x16x32_bf16 {vr(ACC+(w*4+a_)*4,4)}, {vr(b+16+4*w,4)}, {vr(b+4*a_,4)}, {vr(ACC+(w*4+a_)*4,4)}" for w in range(7) for a_ in range(4)]
    A(f"""
    s_lshr_b32 s20, s17, 1
    s_mul_i32 s20, s20, 3
    s_and_b32 s21, s17, 1
    s_lshl_b32 s23, s16, 3
    s_lshl_b32 s24, s18, 2
    s_add_u32 s23, s23, s24
    s_mul_i32 s23, s23, 55296
    s_add_u32 s23, s23, {WS_HF:#x}
    s_lshl_b32 s24, s17, 1
    s_add_u32 s24, s24, s19
    s_add_u32 s24, s24, 23
    s_lshl_b32 s24, s24, 10
    s_add_u32 s40, s24, s23
    s_lshl_b32 s25, s21, 1
    s_add_u32 s25, s25, s20
    s_lshl_b32 s25, s25, 10
    s_lshl_b32 s26, s19, 9
    s_add_u32 s25, s25, s26
    s_add_u32 s26, s20, 1
    s_lshl_b32 s26, s26, 10
    s_lshl_b32 s29, s21, 9
    s_add_u32 s26, s26, s29
    s_cmp_eq_u32 s17, 15
    s_cselect_b32 s25, s26, s25
    s_add_u32 s41, s25, s23
    s_add_u32 s26, s26, s23
    s_lshl_b32 s29, s19, 8
    s_add_u32 s42, s26, s29
    s_cmp_eq_u32 s17, 15
    s_cselect_b32 s42, 0x40000000, s42
    v_and_b32 v5, 31, v1
    v_lshlrev_b32 v5, 4, v5
    v_lshrrev_b32 v6, 5, v1
    v_mul_u32_u24 v6, 55296, v6
    v_add_u32 v220, v5, v6
    v_and_b32 v7, 15, v1
    v_lshl_add_u32 v7, v7, 4, v6
    v_bfe_u32 v5, v1, 4, 1
    v_mul_u32_u24 v5, 110592, v5
    v_add_u32 v221, v7, v5
    v_and_b32 v2, {(1 << (FSH - 2)) - 1}, v1
    v_lshlrev_b32 v14, 2, v2
    s_lshl_b32 s20, s16, 1
    s_add_u32 s20, s20, s18
    s_lshl_b32 s20, s20, 5
    s_lshl_b32 s21, s17, 1
    s_add_u32 s20, s20, s21
    s_add_u32 s20, s20, s19
    s_lshl_b32 s20, s20, {FSH}
    s_add_u32 s43, s20, {WS_FH:#x}
    s_add_u32 s44, s20, {WS_FH2:#x}
    s_lshl_b32 s22, s36, 2
    s_add_u32 s22, s22, s4
    s_mul_i32 s23, s22, 55296
    s_xor_b32 s24, s22, 1
    s_mul_i32 s24, s24, 55296
    v_add_u32 v222, s23, v4
    v_add_u32 v223, s24, v4
    s_lshl_b32 s45, s19, 10
    s_add_u32 s45, s45, {WS_HF:#x}
    s_mul_i32 s24, s19, 5120
    v_add_u32 v224, s24, v4
    v_add_u32 v225, 61440, v224
    v_add_u32 v226, 122880, v224
    v_and_b32 v2, 15, v1
    v_lshrrev_b32 v3, 4, v1
    v_lshrrev_b32 v5, 2, v1
    v_lshlrev_b32 v5, 7, v5
    v_and_b32 v6, 3, v1
    v_lshl_add_u32 v5, v6, 3, v5
    s_lshl_b32 s24, s4, 5
    s_add_u32 s24, s24, {RES_LDS}
    v_add_u32 v227, s24, v5
    v_lshlrev_b32 v228, 2, v2
    s_lshl_b32 s22, s22, 4
    s_lshl_b32 s46, s22, 2
    s_add_u32 s46, s46, {WS_R2:#x}
    s_mul_i32 s47, s22, 1280
    s_mul_i32 s24, s37, 160
    s_add_u32 s47, s47, s24
    v_mul_u32_u24 v5, 1280, v2
    v_lshl_add_u32 v229, v3, 3, v5
    v_lshrrev_b32 v2, 1, v3
    v_lshl_add_u32 v5, v2, 4, v5
    v_and_b32 v2, 1, v3
    v_lshl_add_u32 v230, v2, 5, v5
    s_mul_i32 s24, s4, 5120
    s_add_u32 s24, s24, {24*5120}
    v_add_u32 v231, s24, v4
    s_xor_b32 s24, s4, 1
    s_mul_i32 s24, s24, 5120
    s_add_u32 s24, s24, {24*5120}
    v_add_u32 v232, s24, v4
    """)
    A("s_barrier")
    stamp(5)
    for o in reads(0, 0, False): A(o)
    A("s_cmp_eq_u32 s17, 15\ns_cselect_b32 s29, s19, 0\ns_cmp_eq_u32 s29, 1\ns_cbranch_scc1 K2_STAT")
    def weave(m, others):
        n = len(m); k = len(others); idx = 0
        for t, x in enumerate(m):
            A(x)
            want = (k * (t + 1) + n - 1) // n if k > n else min(k, t + 1)
            while idx < want: A(others[idx]); idx += 1
        while idx < k: A(others[idx]); idx += 1
    def loop(label, stats):
        nit = 10 if stats else 7
        A(f".p2align 3\n{label}:\ns_waitcnt lgkmcnt(0)\ns_add_u32 s27, s27, 1")
        adv = ["s_add_u32 s28, s28, 1\ns_cmp_eq_u32 s28, 3",
               f"s_cselect_b32 s30, {(-2*XS) & 0xffffffff:#x}, s33", f"s_cselect_b32 s31, {(-2*WSL) & 0xffffffff:#x}, s34",
               "s_cselect_b32 s28, 0, s28\nv_add_u32 v8, s30, v8", "v_add_u32 v9, s30, v9\nv_add_u32 v10, s30, v10",
               "v_add_u32 v11, s30, v11\nv_add_u32 v12, s31, v12"]
        weave(mf(0, stats), reads(1, 1, stats) + adv)
        if stats:
            A(f"s_waitcnt lgkmcnt(0)\ns_cmp_lt_u32 s27, 10\ns_cbranch_scc0 {label}_T\ns_barrier")
            weave(mf(1, stats), reads(0, 0, stats))
            A(f"s_branch {label}\n{label}_T:\ns_barrier\ns_barrier")
            for x in mf(1, stats): A(x)
        else:
            A("s_waitcnt lgkmcnt(0)\ns_barrier")
            weave(mf(1, stats), reads(0, 0, stats))
            A(f"s_cmp_lt_u32 s27, 7\ns_cbranch_scc1 {label}")
    acc = lambda w, a_: ACC + (w * 4 + a_) * 4
    T = 234
    def prod(w, a_, o):
        g, u = acc(w, a_), acc(w + 3, a_)
        return [f"v_pk_mul_f32 {vr(g,2)}, {vr(g,2)}, {vr(u,2)}", f"v_pk_mul_f32 {vr(g+2,2)}, {vr(g+2,2)}, {vr(u+2,2)}",
                f"v_cvt_pk_bf16_f32 v{o}, v{g}, v{g+1}", f"v_cvt_pk_bf16_f32 v{o+1}, v{g+2}, v{g+3}"]
    loop("K2_LOOP", False)
    A(f"v_subrev_u32 v8, {2*XS}, v8\nv_subrev_u32 v9, {2*XS}, v9\nv_subrev_u32 v10, {2*XS}, v10\nv_subrev_u32 v11, {2*XS}, v11\nv_subrev_u32 v15, {2*WSL}, v12")
    WA, WBs = [2, 5, 6], [0, 3, 1, 4]
    seq = [(0, kk) for kk in range(6)] + [(1, kk) for kk in range(6)]
    G0 = [128, 132, 136, 140, 152, 164, 168, 144]
    G1 = [172, 176, 180, 184, 188, 192, 196, 200]
    G2_ = [204, 208, 212, 216, 248, 148, 156, 160]
    GR = [G0, G1, G2_]
    def xreg(idx, a_): return GR[idx % 3][a_]
    def wreg_(idx, w): return GR[idx % 3][4 + (WBs if seq[idx][0] else WA).index(w)]
    def treads(idx):
        part, kk = seq[idx]; slot = (2, 0, 1)[kk >> 1]; ks = kk & 1
        xo = [f"ds_read_b64_tr_b16 {vr(xreg(idx,a_)+2*hh,2)}, v{8+a_} offset:{slot*XS + ks*8192 + hh*4096}" for a_ in range(4) for hh in range(2)]
        wreg, wo_ = ("v12", 0) if slot == 2 else ("v15", slot * WSL)
        wo = [f"ds_read_b128 {vr(wreg_(idx,w),4)}, {wreg} offset:{wo_ + ks*14336 + w*1024}" for w in (WBs if part else WA)]
        return wo[:1] + xo + wo[1:]
    epiA = []
    for a0 in (0, 2):
        o = T + 2 * a0
        epiA += prod(2, a0, o) + prod(2, a0 + 1, o + 2) + ["s_nop 1", f"v_permlane32_swap_b32 v{o}, v{o+2}", f"v_permlane32_swap_b32 v{o+1}, v{o+3}",
                 f"buffer_store_dwordx4 {vr(o,4)}, v220, s[12:15], s41 offen sc1\ns_add_u32 s41, s41, 110592"]
    for a_ in (0, 2):
        x, y = acc(6, a_), acc(6, a_ + 1)
        epiA += [f"v_permlane32_swap_b32 v{x+e}, v{y+e}" for e in range(4)]
    for a_ in (0, 2):
        x, y = acc(6, a_), acc(6, a_ + 1)
        epiA += [f"v_pk_mul_f32 {vr(x,2)}, {vr(x,2)}, {vr(y,2)}", f"v_pk_mul_f32 {vr(x+2,2)}, {vr(x+2,2)}, {vr(y+2,2)}",
                 f"v_cvt_pk_bf16_f32 v{T+8+a_}, v{x}, v{x+1}", f"v_cvt_pk_bf16_f32 v{T+9+a_}, v{x+2}, v{x+3}"]
    epiA += ["s_nop 1", f"v_permlane16_swap_b32 v{T+8}, v{T+10}", f"v_permlane16_swap_b32 v{T+9}, v{T+11}",
             f"buffer_store_dwordx4 {vr(T+8,4)}, v221, s[12:15], s42 offen sc1"]
    FLA = E("FLA", 11)
    for idx, (part, kk) in enumerate(seq):
        one = lambda w, a_: f"v_mfma_f32_16x16x32_bf16 {vr(acc(w,a_),4)}, {vr(wreg_(idx,w),4)}, {vr(xreg(idx,a_),4)}, {vr(acc(w,a_),4)}"
        A(f"s_waitcnt lgkmcnt({len(treads(idx + 1)) if 0 < idx < 11 else 0})")
        if idx in (2, E('B9B', 7)): A("s_barrier")
        if E("G2ST", 0) and idx in (0, 6, 11): stamp({0: 1, 6: 2, 11: 3}[idx])
        if idx == FLA: A("s_waitcnt vmcnt(0)\nbuffer_store_dword v13, v14, s[12:15], s43 offen sc1")
        if E("G2ST", 0) and idx == 11: stamp(4)
        if idx < 11:
            m = [one(w, a_) for w in (WBs if part else WA) for a_ in range(4)]
            rd = treads(idx + 2) if idx < 10 else [None] * 5 + ["s_waitcnt lgkmcnt(0)\ns_barrier"]
            if idx == 0:
                r1 = treads(1)
                rd = ["\n".join(r1[2*k: 2*k+2]) for k in range(6)] + ["s_barrier\n" + "\n".join(rd[0:2])] + ["\n".join(rd[2*k: 2*k+2]) for k in range(1, 6)]
            for k, x in enumerate(m):
                A(x)
                if k < len(rd) and rd[k]: A(rd[k])
                if idx >= 6 and not (idx == 6 and k < 3):
                    for _ in range(E('EPR', 2)):
                        if epiA: A(epiA.pop(0))
        else:
            assert not epiA
            TB = 172
            pend = []
            for gi in range(4):
                if gi >= 3: pend += prod(0, 0, TB) + prod(1, 0, TB + 2)
                for w in WBs:
                    A(one(w, gi))
                    for _ in range(2):
                        if pend: A(pend.pop(0))
            for gi in range(4):
                if gi: pend += prod(0, gi, TB + 4 * gi) + prod(1, gi, TB + 4 * gi + 2)
                pend += [f"buffer_store_dwordx4 {vr(TB+4*gi,4)}, v4, s[12:15], s40 offen sc1\ns_add_u32 s40, s40, 55296"]
            for o in pend: A(o)
    A("K2_FIN:")
    stamp(6)
    AC2 = 16; WS2 = [56, 76, 168]; HB = 96; DH = E("DH", 6); HR = 144; SBS = E("SBS", 7)
    for i in range(0, 40, 2): A(f"v_mov_b64 {vr(AC2+i,2)}, 0")
    A("s_waitcnt vmcnt(0)\nbuffer_store_dword v13, v14, s[12:15], s44 offen sc1")
    if not E("CST", 0): stamp(8)
    def wread(n):
        off = (2 * n if n < 15 else 2 * (n - 15)) * 5120
        return [f"ds_read_b128 {vr(WS2[n%3]+4*t,4)}, v{224 + off // 61440} offset:{off % 61440 + 1024*t}" for t in range(5)]
    A("s_barrier")
    stamp(10)
    hq = []
    def hload(n):
        b = HB + (n % DH) * 8
        A(f"buffer_load_dwordx4 {vr(b,4)}, v222, s[12:15], s45 offen sc1\nbuffer_load_dwordx4 {vr(b+4,4)}, v223, s[12:15], s45 offen sc1\ns_add_u32 s45, s45, 2048")
        hq.extend([n, n])
    issue = {}
    for n in range(DH, 27): issue.setdefault(max(n - DH, SBS if n >= 11 else 0), []).append(n)
    for n in range(DH): hload(n)
    for o in wread(0) + wread(1): A(o)
    for n in range(27):
        last = max(i for i, t in enumerate(hq) if t == n)
        A(f"s_waitcnt vmcnt({len(hq) - 1 - last}) lgkmcnt({5 if n < 26 else 0})")
        if n == SBS:
            A("s_barrier")
            for x in [y for y in issue[n] if y - DH < n]: hload(x)
            issue[n] = [y for y in issue[n] if y - DH >= n]
            A("buffer_load_dword v164, v228, s[12:15], s46 offen sc1"); hq.append(-1)
        if E("G2ST", 0) and n in (5, 9, 12): stamp({5: 7, 9: 9, 12: 12}[n])
        b = HB + (n % DH) * 8
        m = [f"v_mfma_f32_16x16x32_bf16 {vr(AC2+(a_*5+t)*4,4)}, {vr(WS2[n%3]+4*t,4)}, {vr(b+4*a_,4)}, {vr(AC2+(a_*5+t)*4,4)}" for a_ in (1, 0) for t in range(5)]
        oth = wread(n + 2) if n < 25 else []
        if n == 25: oth = [f"ds_read_b64_tr_b16 {vr(188+2*t,2)}, v227 offset:{2048*t}" for t in range(5)]
        if n == 26:
            for t in range(5):
                oth += [f"v_lshlrev_b32 v{HR+4*t}, 16, v{188+2*t}\nv_and_b32 v{HR+4*t+1}, 0xffff0000, v{188+2*t}",
                        f"v_lshlrev_b32 v{HR+4*t+2}, 16, v{189+2*t}\nv_and_b32 v{HR+4*t+3}, 0xffff0000, v{189+2*t}"]
        if n in (4, E('S2AT', 13), 19): oth = [None] * 3 + ["s_waitcnt lgkmcnt(0)\ns_barrier"] + oth
        for k, x in enumerate(m):
            A(x)
            if k < len(oth) and oth[k]: A(oth[k])
        for x in issue.get(n, []): hload(x)
    stamp(11)
    A("s_nop 2")
    for t in range(5): A(f"ds_write_b128 v232, {vr(AC2+(5+t)*4,4)} offset:{1024*t}")
    A("s_waitcnt lgkmcnt(0)\ns_barrier")
    R = 56
    OF = os.environ.get("OUTF", "")
    for t in range(5): A(f"ds_read_b128 {vr(R+4*t,4)}, v231 offset:{1024*t}")
    for t in range(5):
        A(f"s_waitcnt lgkmcnt({4-t})")
        for e in (0, 2): A(f"v_pk_add_f32 {vr(AC2+4*t+e,2)}, {vr(AC2+4*t+e,2)}, {vr(R+4*t+e,2)}")
        for e in (0, 2): A(f"v_pk_fma_f32 {vr(AC2+4*t+e,2)}, {vr(AC2+4*t+e,2)}, v[164:165], {vr(HR+4*t+e,2)} op_sel_hi:[1,0,1]")
        A(f"v_cvt_pk_bf16_f32 v{80+2*t}, v{AC2+4*t}, v{AC2+4*t+1}\nv_cvt_pk_bf16_f32 v{80+2*t+1}, v{AC2+4*t+2}, v{AC2+4*t+3}")
        if t in (1, 3):
            o = 80 + 2 * (t - 1)
            A(f"s_nop 1\nv_permlane16_swap_b32 v{o}, v{o+2}\nv_permlane16_swap_b32 v{o+1}, v{o+3}\nbuffer_store_dwordx4 {vr(o,4)}, v230, s[8:11], s47 offen offset:{32*(t-1)} {OF}")
    A(f"buffer_store_dwordx2 v[88:89], v229, s[8:11], s47 offen offset:128 {OF}")
    finish()
    A("K2_STAT:\nbuffer_store_dword v13, v14, s[12:15], s43 offen sc1")
    loop("K2_SLOOP", True)
    A(f"""
    v_and_b32 v5, 3, v1
    v_bfe_u32 v6, v1, 2, 2
    v_lshrrev_b32 v7, 4, v1
    v_cmp_eq_u32 s[20:21], 1, v5
    v_cmp_eq_u32 s[22:23], 2, v5
    v_cmp_eq_u32 s[24:25], 3, v5
    v_cmp_eq_u32 s[26:27], v6, v7
    v_and_b32 v5, 15, v1
    v_lshlrev_b32 v5, 2, v5
    s_lshl_b32 s28, s16, 9
    s_lshl_b32 s29, s18, 8
    s_add_u32 s28, s28, s29
    s_add_u32 s28, s28, {WS_R2:#x}
    """)
    for a_ in range(4):
        g = ACC + 4 * a_; s_ = ACC + 16 + 4 * a_
        A(f"""
        v_cndmask_b32 v{g}, v{g}, v{g+1}, s[20:21]
        v_cndmask_b32 v{g}, v{g}, v{g+2}, s[22:23]
        v_cndmask_b32 v{g}, v{g}, v{g+3}, s[24:25]
        v_mul_f32 v{s_}, 0x3acccccd, v{s_}
        v_mul_f32 v{g}, 0x3acccccd, v{g}
        v_fma_f32 v{g}, -v{s_}, v{s_}, v{g}
        v_max_f32 v{g}, 0, v{g}
        v_cvt_pk_bf16_f32 v{g}, v{g}, v{g}
        v_lshlrev_b32 v{g}, 16, v{g}
        v_add_f32 v{g}, 0x3727c5ac, v{g}
        v_cvt_pk_bf16_f32 v{g}, v{g}, v{g}
        v_lshlrev_b32 v{g}, 16, v{g}
        v_sqrt_f32 v{g}, v{g}
        s_nop 0
        v_cvt_pk_bf16_f32 v{g}, v{g}, v{g}
        v_lshlrev_b32 v{g}, 16, v{g}
        v_mul_f32 v{g}, v{g}, v{g}
        v_rcp_f32 v{g}, v{g}
        """)
    A("s_mov_b64 exec, s[26:27]")
    for a_ in range(4): A(f"buffer_store_dword v{ACC+4*a_}, v5, s[12:15], s28 offen offset:{64*a_} sc1")
    A("s_mov_b64 exec, -1\ns_branch K2_FIN\nK_END:\ns_endpgm")

def main(out):
    gen()
    hdr = open("sequential_preLN__ssm_conv_s4__glu_gated_bilinear__prompt.s.ref").read().split("; Override launch")[0]
    s = hdr + f"; @launch grid=(256,1,1) block=(512,1,1) lds={LDS_SIZE}\n"
    s += f'.amdgcn_target "amdgcn-amd-amdhsa--gfx950"\n.text\n.globl {KNAME}\n.p2align 8\n.type {KNAME},@function\n{KNAME}:\n'
    s += A.text().replace("CNTADDR", str(K1_CNT)).replace("XGN", "0" if E("NOXG", 0) else "5").replace("XGLIM", "0" if E("NOXG", 0) else "0x40000") + "CODE_END:\n"
    s += f""".section .rodata,"a"
.p2align 6
.amdhsa_kernel {KNAME}
  .amdhsa_next_free_vgpr 252
  .amdhsa_next_free_sgpr 96
  .amdhsa_accum_offset 252
  .amdhsa_group_segment_fixed_size 0
  .amdhsa_kernarg_size 128
  .amdhsa_user_sgpr_count 2
  .amdhsa_user_sgpr_kernarg_segment_ptr 1
  .amdhsa_system_sgpr_workgroup_id_x 1
.end_amdhsa_kernel
"""
    open(out, "w").write(s)
if __name__ == "__main__":
    main(sys.argv[1] if len(sys.argv) > 1 else "f.s")
```

```python
import sys, os
E = lambda k, d: int(os.environ.get(k, d))
KNAME = "sequential_preLN__ssm_conv_s4__glu_gated_bilinear__prompt_kernel"
WS_ST    = 0x1000
WS_R2    = 0x8000
WS_HT    = 0x10000
WS_W1P   = 0x290000
WS_WDP   = 0x6F0000
WS_HF    = int(os.environ.get('HFOFF', '0x910000'), 0)
WS_PROF  = 0xFE0000
WS_XG    = 0x1100000
WS_FH    = 0x1840000
WS_FH2   = 0x1850000
WS_FP    = 0x1860000
WS_HR1   = 0x1870000
WS_HR2   = 0x1878000
WS_FE    = 0x1880000
WS_SIZE  = 0x1900000
PROF = E("PROF", 0)
NST = 14
PROF_WAVES = 8
PROF_RANGES = [(0, [(0, 160, 0, 4, NST), (0, 160, 4, 8, NST), (160, 214, 0, 4, NST), (160, 214, 4, 8, NST), (214, 250, 0, 4, NST), (214, 250, 4, 8, NST)])]

class Asm:
    def __init__(self): self.l = []
    def __call__(self, s):
        for x in s.split("\n"):
            x = x.strip()
            if x: self.l.append(("" if x.endswith(":") else "    ") + x)
    def text(self): return "\n".join(self.l) + "\n"
def vr(a, n=1): return f"v{a}" if n == 1 else f"v[{a}:{a+n-1}]"
def sr(a, n=1): return f"s{a}" if n == 1 else f"s[{a}:{a+n-1}]"
A = Asm()
DIAG = os.environ.get("DIAG")
_fin = [0]
def stamp(i, wait=True):
    if PROF or (DIAG and str(i) in DIAG.split(",")[:2]):
        A(f"{'s_memrealtime' if (DIAG or E('RT', 0)) else 's_memtime'} s[{64+2*i}:{65+2*i}]")
        if wait: A("s_waitcnt lgkmcnt(0)")
def finish():
    if DIAG:
        a, b, mult, wg, wv = map(int, DIAG.split(","))
        _fin[0] += 1; n = _fin[0]
        A(f"""
        s_waitcnt vmcnt(0)
        s_memrealtime s[{64+2*(NST-1)}:{65+2*(NST-1)}]
        s_cmp_lg_u32 s2, {wg}
        s_cbranch_scc1 DG_E{n}
        s_cmp_lg_u32 s60, {wv}
        s_cbranch_scc1 DG_E{n}
        s_waitcnt lgkmcnt(0)
        s_sub_u32 s20, s{64+2*b}, s{64+2*a}
        s_min_u32 s20, s20, 5000
        s_mul_i32 s20, s20, {mult}
        s_add_u32 s20, s20, s{64+2*(NST-1)}
        DG_L{n}:
        s_memrealtime s[22:23]
        s_waitcnt lgkmcnt(0)
        s_sub_u32 s21, s20, s22
        s_cmp_gt_i32 s21, 0
        s_cbranch_scc1 DG_L{n}
        DG_E{n}:
        """)
    if PROF:
        A("s_waitcnt vmcnt(0)")
        stamp(NST - 1)
        A(f"s_lshl_b32 s62, s2, 3\ns_add_u32 s62, s62, s60\ns_lshl_b32 s62, s62, 6\ns_add_u32 s62, s62, {WS_PROF:#x}\nv_mov_b32 v1, 0")
        for i in range(NST):
            A(f"v_mov_b32 v0, s{64+2*i}\nbuffer_store_dword v0, v1, s[12:15], s62 offen offset:{4*i}")
    A("s_endpgm")
def srd(d, base, size):
    A(f"s_mov_b32 s{d}, s{base}\ns_mov_b32 s{d+1}, s{base+1}\ns_mov_b32 s{d+2}, {size:#x}\ns_mov_b32 s{d+3}, 0x00020000")
def cmul(d, a, b):
    A(f"v_pk_mul_f32 {vr(d,2)}, {vr(a,2)}, {vr(b,2)} op_sel_hi:[1,0]")
    A(f"v_pk_fma_f32 {vr(d,2)}, {vr(a,2)}, {vr(b,2)}, {vr(d,2)} op_sel:[1,1,0] op_sel_hi:[0,1,1] neg_lo:[1,0,0]")
def poll(lbl, va, vt, soff="0", slp=2):
    A(f"""
    s_mov_b32 s52, 0
    {lbl}:
    buffer_load_dword {vt}, {va}, s[12:15], {soff} offen sc1
    s_add_u32 s52, s52, 1
    s_waitcnt vmcnt(0)
    v_cmp_ne_u32 vcc, s54, {vt}
    s_cmp_lt_u32 s52, 0x40000
    s_cbranch_vccz {lbl}_D
    s_mov_b64 exec, vcc
    s_sleep {slp}
    s_cbranch_scc1 {lbl}
    {lbl}_D:
    s_mov_b64 exec, -1
    """)

def q_of(c, tau):
    base = (c >> 1) * 7
    if c == 15: return {0: (base + 4, 0), 1: (base + 4, 1), 2: (base + 3, 1)}[tau]
    o = base + (4 if (c & 1) else 0)
    if tau == 3: return (base + 3, c & 1)
    return {0: (o, 0), 1: (o, 1), 2: (o + 1, 0), 6: (o + 1, 1), 4: (o + 2, 0), 5: (o + 2, 1)}[tau]
Q_TILES = {}
for phi in range(108):
    q, hf = q_of(phi // 7, phi % 7)
    Q_TILES.setdefault(q, [None, None])[hf] = phi

def newq(q):
    cp, r = divmod(q, 7)
    return 3 * cp + (r >> 1) if r & 1 else 23 + 4 * cp + (r >> 1)
assert sorted(newq(q) for q in range(54)) == list(range(54))
TAB_STRIDE = 272
TAB_HI = 32 * TAB_STRIDE
K1_TAB = 2 * TAB_HI
K1_CH = K1_TAB
K1_TB = 4 * K1_TAB
KC1 = 2240
K1_BASE = 4608
K1_UREV = 8 * K1_TAB
K1_SCR = K1_UREV + 4 * 4608
K1_R = K1_SCR + 512
K1_CNT = K1_R + 4 * 1280
K1_SCR2 = TAB_HI + 29 * TAB_STRIDE + 48
LDS_SIZE = 163840
assert K1_CNT + 512 == LDS_SIZE
TAG_INC = 0x9E3779B9
HI_ROWS = [(0, 4), (1, 5), (2, 6), (3, 7), (4, 8), (256, 260), (258, 262), (260, 264),
           (512, 768), (516, 772), (520, 776), (1032, 1288), (1544, 1800)]
def hi_rows_of(e):
    return [(r & 3) + 8 * (r >> 2) + 4 * h for r, p in enumerate(HI_ROWS) for h, ee in enumerate(p) if ee == e]
XS = 16384; WSL = 28672; WB = 3 * XS; G1_END = WB + 3 * WSL; RES_LDS = 153600
FSH = 6

def map2():
    A("""
    s_and_b32 s3, s2, 7
    s_lshr_b32 s5, s2, 3
    s_lshr_b32 s36, s3, 1
    s_lshl_b32 s36, s36, 3
    s_and_b32 s37, s5, 7
    s_add_u32 s36, s36, s37
    s_and_b32 s16, s3, 1
    s_lshl_b32 s38, s16, 2
    s_lshl_b32 s16, s16, 3
    s_add_u32 s16, s16, s37
    s_lshr_b32 s18, s5, 3
    s_add_u32 s37, s38, s18
    s_lshr_b32 s17, s3, 1
    s_lshl_b32 s17, s17, 2
    s_add_u32 s17, s17, s18
    s_lshr_b32 s18, s4, 1
    s_and_b32 s19, s4, 1
    v_lshlrev_b32 v4, 4, v1
    """)


def rowaddr(t, va, vb):
    A(f"""
    s_lshr_b32 s42, s{t}, 8
    s_lshl_b32 s42, s42, 9
    s_bfe_u32 s43, s{t}, 0x40002
    s_lshl_b32 s43, s43, 5
    s_add_u32 s42, s42, s43
    s_bfe_u32 s43, s{t}, 0x20006
    s_lshl_b32 s43, s43, 1
    s_add_u32 s42, s42, s43
    s_and_b32 s43, s{t}, 3
    s_lshl_b32 s43, s43, 3
    s_add_u32 s42, s42, s43
    v_lshrrev_b32 v7, 5, v1
    v_add_u32 v7, s42, v7
    v_mul_u32_u24 v7, 1280, v7
    v_and_b32 {vb}, 31, v1
    v_lshl_add_u32 {va}, {vb}, 4, v7
    v_lshl_add_u32 {vb}, {vb}, 3, v7
    """)
def rowload(b, va, vb):
    A(f"global_load_dwordx4 {vr(b,4)}, {va}, s[16:17]\nglobal_load_dwordx4 {vr(b+4,4)}, {va}, s[16:17] offset:512\nglobal_load_dwordx2 {vr(b+8,2)}, {vb}, s[16:17] offset:1024")
def rowstats(soff):
    A("v_mov_b32 v60, 0\nv_mov_b32 v61, 0\nv_mov_b32 v62, 0x3f803f80\nv_lshrrev_b32 v63, 5, v1\nv_lshlrev_b32 v63, 3, v63")
    for r in range(48, 58): A(f"v_dot2c_f32_bf16 v60, v62, v{r}\nv_dot2c_f32_bf16 v61, v{r}, v{r}")
    A("s_nop 2")
    for rot in (8, 4, 2, 1):
        A(f"v_add_f32_dpp v60, v60, v60 row_ror:{rot} row_mask:0xf bank_mask:0xf\nv_add_f32_dpp v61, v61, v61 row_ror:{rot} row_mask:0xf bank_mask:0xf\ns_nop 0")
    A(f"""
    v_mov_b32 v58, v60
    v_mov_b32 v59, v61
    s_nop 1
    v_permlane16_swap_b32 v60, v58
    v_permlane16_swap_b32 v61, v59
    s_nop 0
    v_pk_add_f32 v[60:61], v[60:61], v[58:59]
    v_mul_f32 v60, 0x3acccccd, v60
    v_mul_f32 v61, 0x3acccccd, v61
    v_fma_f32 v61, -v60, v60, v61
    v_max_f32 v61, 0, v61
    v_cvt_pk_bf16_f32 v61, v61, v61
    v_lshlrev_b32 v61, 16, v61
    v_add_f32 v61, 0x3727c5ac, v61
    v_cvt_pk_bf16_f32 v61, v61, v61
    v_lshlrev_b32 v61, 16, v61
    v_sqrt_f32 v61, v61
    s_nop 0
    v_cvt_pk_bf16_f32 v60, v60, v61
    v_mov_b32 v61, s53
    s_mov_b32 exec_lo, 1
    s_mov_b32 exec_hi, 1
    buffer_store_dwordx2 v[60:61], v63, s[12:15], {soff} offen sc1
    s_mov_b64 exec, -1
    """)
NWR = E("NWR", 1)
NEK = 2 * (2 + NWR)
ELAG = E("ELAG", 5)
NCW = E("NCW", 2)
NT0 = 160 * NCW
NT1 = NT0 + 216
WSOFF = int(os.environ.get("WSOFF", "0"), 0)
WSOFF_CODE = f"s_add_u32 s6, s6, {WSOFF:#x}\ns_addc_u32 s7, s7, 0\ns_cmp_eq_u32 s61, 0" if WSOFF else ""
def gen():
    G = 16; P = 10
    A("s_cmp_ge_u32 s2, 256\ns_cbranch_scc1 K_END")
    stamp(0, False)
    A(f"""
    s_load_dwordx16 s[16:31], s[0:1], 0
    s_load_dwordx2 s[32:33], s[0:1], 64
    s_load_dwordx4 s[36:39], s[0:1], 80
    s_load_dwordx4 s[92:95], s[0:1], 96
    s_load_dwordx2 s[6:7], s[0:1], 120
    v_lshrrev_b32 v2, 6, v0
    v_and_b32 v1, 63, v0
    v_readfirstlane_b32 s60, v2
    v_and_b32 v0, 255, v0
    s_getpc_b64 s[62:63]
    K1_PC:
    s_lshr_b32 s40, s2, 3
    s_and_b32 s40, s40, 3
    s_lshl_b32 s40, s40, 13
    v_lshl_add_u32 v8, v1, 7, s40
    v_min_u32 v8, CODE_END - K1_PC - 4, v8
    s_cmp_lg_u32 s60, 3
    s_cbranch_scc1 K1_NOPF
    s_cmp_lt_u32 s2, {E('PFMIN', 160)}
    s_cbranch_scc1 K1_NOPF2
    global_load_dword v9, v8, s[62:63]
    K1_NOPF2:
    v_mov_b32 v8, {K1_CNT}
    v_mov_b64 v[10:11], 0
    ds_write_b64 v8, v[10:11]
    ds_write_b64 v8, v[10:11] offset:8
    K1_NOPF:
    s_and_b32 s4, s60, 3
    s_lshr_b32 s61, s60, 2
    s_and_b32 s40, s2, 7
    s_lshr_b32 s41, s2, 3
    s_mul_i32 s57, s40, 20
    s_add_u32 s57, s57, s41
    s_lshl_b32 s5, s57, 2
    s_add_u32 s5, s5, s4
    s_lshl_b32 s43, s5, 8
    v_lshl_add_u32 v6, v1, 2, s43
    s_lshl_b32 s3, s57, 3
    s_mul_i32 s55, s4, {K1_CH}
    v_mul_u32_u24 v238, 10240, v0
    v_add_u32 v238, s3, v238
    s_mul_i32 s46, s41, 103
    v_lshrrev_b32 v2, 1, v0
    v_min_u32 v2, 102, v2
    v_add_u32 v2, s46, v2
    v_min_u32 v2, 2047, v2
    v_mul_u32_u24 v2, 1280, v2
    v_and_b32 v3, 1, v0
    v_mul_u32_u24 v3, 156, v3
    s_mul_i32 s46, s40, 160
    v_add3_u32 v2, v2, v3, s46
    s_cmp_ge_u32 s2, 160
    s_cbranch_scc1 K1_PREP
    s_mul_i32 s59, s60, 160
    s_add_u32 s59, s59, s2
    """)
    rowaddr(59, "v4", "v5")
    A(f"""
    s_cmp_lt_u32 s60, {NCW}
    s_waitcnt lgkmcnt(0)
    s_cbranch_scc0 K1_NOS
    """)
    rowload(48, "v4", "v5")
    A("""
    K1_NOS:
    s_cmp_eq_u32 s61, 0
    s_cbranch_scc1 K1_NOT
    global_load_dword v242, v2, s[16:17]
    K1_NOT:
    """)
    for i in range(6): A(f"global_load_dword v{P+i}, v6, {sr(18+2*i,2)}")
    A("""
    s_load_dword s54, s[6:7], 0
    s_load_dwordx2 s[42:43], s[30:31], s3
    s_load_dwordx2 s[44:45], s[32:33], s3
    s_cbranch_scc1 K1_C
    """)
    XR = 32
    srd(12, 6, WS_SIZE)
    A(f"""
    v_lshlrev_b32 v235, 4, v0
    v_sub_u32 v235, {K1_UREV + 4080}, v235
    v_lshlrev_b32 v236, 5, v0
    v_add_u32 v236, {K1_BASE}, v236
    v_add_u32 v237, {2*K1_CH}, v236
    s_lshl_b32 s58, s4, 12
    s_add_u32 s58, s58, {WS_ST:#x}
    v_lshlrev_b32 v5, 4, v1
    v_add_u32 v239, 5120, v238
    s_waitcnt vmcnt(0)
    """)
    def gather(k): A(f"global_load_dwordx2 {vr(XR+2*k,2)}, v{238 + k//4}, s[16:17] offset:{(k%4)*1280}")
    NG0 = E("NG0", 2)
    for k in range(NG0): gather(k)
    A("s_branch K1_C0")
    A("K1_C:")
    A(f"""
    s_mul_i32 s56, s4, 4608
    s_add_u32 s56, s56, {K1_UREV}
    s_mul_i32 s46, s4, 1280
    s_add_u32 s46, s46, {K1_R}
    s_mov_b32 m0, s46
    v_mov_b64 v[240:241], 0
    v_and_b32 v46, 31, v1
    v_lshrrev_b32 v47, 5, v1
    v_mul_u32_u24 v228, {TAB_STRIDE}, v46
    v_lshl_add_u32 v228, v47, 4, v228
    v_add_u32 v228, s55, v228
    v_lshlrev_b32 v2, 4, v46
    v_add_u32 v2, s55, v2
    v_lshl_add_u32 v229, v47, 3, v2
    v_lshl_add_u32 v230, v47, 9, v2
    v_and_b32 v2, 1, v46
    v_mul_u32_u24 v2, 640, v2
    v_and_b32 v3, 30, v46
    v_lshl_add_u32 v3, v47, 5, v3
    v_sub_u32 v2, v2, v3
    v_add_u32 v231, s46, v2
    v_lshl_add_u32 v2, v1, 3, s56
    ds_write_b64 v2, v[240:241] offset:4096
    """)
    for k in range(5): A(f"ds_write_addtid_b32 v240 offset:{256*k}")
    srd(12, 6, WS_SIZE)
    A(f"""
    v_and_b32 v2, 15, v1
    v_lshrrev_b32 v3, 4, v1
    v_add_u32 v4, 1, v2
    v_and_b32 v5, 1, v4
    v_mul_u32_u24 v5, {KC1}, v5
    v_and_b32 v4, 0xfffe, v4
    v_lshl_add_u32 v4, v4, 1, v5
    v_lshl_add_u32 v4, v3, 4, v4
    v_add_u32 v232, s55, v4
    v_add_u32 v233, 1024, v232
    v_add_u32 v239, 2048, v232
    v_lshlrev_b32 v4, 5, v2
    v_lshlrev_b32 v5, 4, v3
    v_sub_u32 v234, v5, v4
    v_add_u32 v234, {4064 - 3584}, v234
    v_add_u32 v234, s56, v234
    v_lshl_add_u32 v235, v2, 6, v5
    v_add_u32 v235, s55, v235
    v_sub_u32 v6, 15, v2
    v_lshl_add_u32 v6, v3, 2, v6
    v_and_b32 v7, 1, v6
    v_mul_u32_u24 v7, 320, v7
    v_and_b32 v6, 0xfffe, v6
    v_lshl_add_u32 v6, v6, 1, v7
    v_add3_u32 v236, v6, 4, s46
    v_lshrrev_b32 v5, 1, v3
    v_lshl_add_u32 v4, v5, 4, v4
    v_and_b32 v5, 1, v3
    v_lshl_add_u32 v237, v5, 9, v4
    v_cmp_eq_u32 s[36:37], 7, v1
    v_cmp_gt_u32 s[38:39], 2, v1
    v_cmp_eq_u32 s[48:49], 2, v1
    v_cmp_eq_u32 s[50:51], 0, v1
    v_lshl_add_u32 v4, v3, 3, v2
    s_mov_b32 s46, 0x10001
    """)
    for ty, (c, wdt) in enumerate([(-20, 7), (-19, 9)]):
        A(f"v_add_u32 v5, {c + 20}, v4\nv_min_u32 v5, 31, v5\nv_mov_b32 v6, {((1 << wdt) - 1) << 20:#x}\nv_lshrrev_b32 v6, v5, v6\nv_and_b32 v6, 0xff, v6\nv_lshl_or_b32 v6, v6, 15, v6")
        for j in range(4):
            A(f"v_lshrrev_b32 v7, {2*j}, v6\nv_and_b32 v7, s46, v7\nv_mul_u32_u24 v{244+4*ty+j}, 0x3f80, v7")
    A(f"""
    s_cmp_lt_u32 s60, {NCW}
    s_cbranch_scc0 K1_CW
    s_lshl_b32 s59, s59, 4
    s_add_u32 s59, s59, {WS_ST:#x}
    s_waitcnt vmcnt(6) lgkmcnt(0)
    s_add_u32 s53, s54, {TAG_INC:#x}
    """)
    rowstats("s59")
    A("s_waitcnt vmcnt(1)\ns_branch K1_C0\nK1_CW:\ns_waitcnt vmcnt(0)")
    A("K1_C0:")
    ACC = 96; DT = 9
    Z1, Z8, Z16, Z256 = 48, 50, 52, 54
    BB, CC = 56, 58
    T0 = 60
    H = {e: 72 + 2 * e for e in range(9)}
    CV = [90, 91, 92, 93, 94, 95]; cvi = [0]
    def put(src, rows, hi):
        t = CV[cvi[0] % len(CV)]; cvi[0] += 1
        A(f"v_cvt_pk_bf16_f32 v{t}, v{src}, {'-' if hi else ''}v{src+1}")
        for r in rows: A(f"ds_write_addtid_b32 v{t} offset:{r*TAB_STRIDE + (TAB_HI if hi else 0)}")
    SPLIT = E("SPLIT", 0)
    A(f"""
    s_lshl_b32 s62, s4, 4
    s_mov_b32 s59, s61
    s_waitcnt lgkmcnt(0)
    s_add_u32 s54, s54, {TAG_INC:#x}
    """)
    stamp(1)
    A(f"""
    s_lshr_b64 s[42:43], s[42:43], s62
    s_lshl_b32 s42, s42, 16
    v_mov_b32 v{DT}, s42
    v_mul_f32 v{DT}, 0x3fb8aa3b, v{DT}
    v_exp_f32 v{DT}, v{DT}
    s_nop 0
    v_cvt_pk_bf16_f32 v{DT}, v{DT}, v{DT}
    v_lshlrev_b32 v{DT}, 16, v{DT}
    K1_PASS:
    s_mul_i32 s56, s59, {K1_TB}
    s_add_u32 s56, s56, s55
    s_mov_b32 m0, s56
    s_lshl_b32 s47, s59, 4
    v_lshrrev_b32 v{T0}, s47, v{P}
    v_lshrrev_b32 v{T0+1}, s47, v{P+1}
    v_lshlrev_b32 v{T0}, 16, v{T0}
    v_lshlrev_b32 v{T0+1}, 16, v{T0+1}
    v_mul_f32 v{T0}, v{T0}, v{DT}
    v_mul_f32 v{T0+1}, v{T0+1}, v{DT}
    v_mul_f32 v{T0+8}, 0x3fb8aa3b, v{T0}
    v_mul_f32 v{T0+9}, 0.15915494, v{T0+1}
    s_cmp_eq_u32 s61, 0
    """)
    if SPLIT: A("s_cbranch_scc0 K1_HI")
    A(f"""
    v_mul_f32 v{T0+2}, 0x41000000, v{T0+8}
    v_mul_f32 v{T0+3}, 0x41000000, v{T0+9}
    v_fract_f32 v{T0+3}, v{T0+3}
    v_exp_f32 v{T0+2}, v{T0+2}
    v_cos_f32 v{Z8}, v{T0+3}
    v_sin_f32 v{Z8+1}, v{T0+3}
    v_mov_b32 v95, 0x3f80
    .p2align 3
    ds_write_addtid_b32 v95 offset:0
    v_pk_mul_f32 {vr(Z8,2)}, {vr(Z8,2)}, {vr(T0+2,2)} op_sel_hi:[1,0]
    """)
    cmul(Z16, Z8, Z8)
    put(Z8, [1], False); put(Z16, [2], False)
    Lreg = {1: Z8, 2: Z16}
    gk = [NG0]
    def maybe_gather():
        if gk[0] < min(8, NG0 + E("NG1", 4)):
            A(f"s_cbranch_scc1 K1_NG{gk[0]}")
            gather(gk[0])
            A(f"K1_NG{gk[0]}:\ns_nop 0")
            gk[0] += 1
    for l in range(3, 32):
        d = T0 + 2 * (l % 4); Lreg[l] = d
        cmul(d, Lreg[l-2], Z16); put(d, [l], False)
        if l in (12, 26) and not SPLIT: maybe_gather()
    if SPLIT: A("s_cmp_eq_u32 s59, 0\ns_cbranch_scc0 K1_PEND\nK1_HI:")
    A(f"""
    v_lshrrev_b32 v{BB}, s47, v{P+2}
    v_lshrrev_b32 v{BB+1}, s47, v{P+3}
    v_lshrrev_b32 v{CC}, s47, v{P+4}
    v_lshrrev_b32 v{CC+1}, s47, v{P+5}
    v_lshlrev_b32 v{BB}, 16, v{BB}
    v_lshlrev_b32 v{BB+1}, 16, v{BB+1}
    v_lshlrev_b32 v{CC}, 16, v{CC}
    v_lshlrev_b32 v{CC+1}, 16, v{CC+1}
    v_mul_f32 v{T0+4}, 0x43800000, v{T0+8}
    v_mul_f32 v{T0+5}, 0x43800000, v{T0+9}
    v_fract_f32 v{T0+9}, v{T0+9}
    v_fract_f32 v{T0+5}, v{T0+5}
    v_exp_f32 v{T0+8}, v{T0+8}
    v_exp_f32 v{T0+4}, v{T0+4}
    v_cos_f32 v{Z1}, v{T0+9}
    v_sin_f32 v{Z1+1}, v{T0+9}
    v_cos_f32 v{Z256}, v{T0+5}
    v_sin_f32 v{Z256+1}, v{T0+5}
    v_mul_f32 v{BB}, v{BB}, v{DT}
    v_mul_f32 v{BB+1}, v{BB+1}, v{DT}
    .p2align 3
    """)
    cmul(H[0], CC, BB)
    A(f"v_pk_mul_f32 {vr(Z1,2)}, {vr(Z1,2)}, {vr(T0+8,2)} op_sel_hi:[1,0]")
    A(f"v_pk_mul_f32 {vr(Z256,2)}, {vr(Z256,2)}, {vr(T0+4,2)} op_sel_hi:[1,0]")
    put(H[0], hi_rows_of(0), True)
    for e in range(1, 9):
        cmul(H[e], H[e-1], Z1); put(H[e], hi_rows_of(e), True)
        if e == 3 or (SPLIT and e == 8): maybe_gather()
    cur = {e: H[e] for e in (0, 2, 4, 6, 8)}
    spare = [H[1], H[3], H[5], H[7], T0, T0 + 2]
    for blk, es in [(1, (0, 2, 4, 6, 8)), (2, (0, 4, 8)), (3, (0, 4, 8)), (4, (8,)), (5, (8,)), (6, (8,)), (7, (8,))]:
        for e in es:
            d = spare.pop(0); cmul(d, cur[e], Z256); put(d, hi_rows_of(256 * blk + e), True)
            spare.append(cur[e]); cur[e] = d
        if blk == 2 or (SPLIT and blk == 7): maybe_gather()
    if SPLIT: A("s_mov_b32 s59, 1\ns_cbranch_scc1 K1_PASS")
    else: A("s_cbranch_scc1 K1_PEND")
    stamp(12)
    A("s_mov_b32 s52, 0\ns_waitcnt lgkmcnt(0)\ns_barrier")
    for k in range(gk[0], 8): gather(k)
    A("K1_POLL:")
    for k in range(4): A(f"buffer_load_dwordx4 {vr(G+4*k,4)}, v5, s[12:15], s58 offen offset:{1024*k} sc1")
    A("s_add_u32 s52, s52, 1\ns_waitcnt vmcnt(0)")
    for k in range(8): A(f"v_xor_b32 v{48+k}, s54, v{G+2*k+1}")
    A("""
    v_or3_b32 v48, v48, v49, v50
    v_or3_b32 v51, v51, v52, v53
    v_or3_b32 v48, v48, v54, v55
    v_or_b32 v48, v48, v51
    v_cmp_ne_u32 vcc, 0, v48
    s_cmp_lt_u32 s52, 0x40000
    s_cbranch_vccz K1_GOT
    s_sleep 4
    s_cbranch_scc1 K1_POLL
    K1_GOT:
    """)
    stamp(10)
    if PROF: A("s_add_u32 s86, s64, s52")
    X = 48; RS, NB = 80, 88; U = 112; UP = 96
    for r in range(8):
        A(f"v_and_b32 v{RS+r}, 0xffff0000, v{G+2*r}\nv_rcp_f32 v{RS+r}, v{RS+r}\nv_lshlrev_b32 v{NB+r}, 16, v{G+2*r}")
    for r in range(0, 8, 2):
        A(f"v_pk_mul_f32 {vr(NB+r,2)}, {vr(NB+r,2)}, {vr(RS+r,2)} neg_lo:[1,0] neg_hi:[1,0]")
    for c in range(4):
        for r in range(8):
            src = XR + 2 * r + (c >> 1)
            A(f"v_and_b32 v{X+8*c+r}, 0xffff0000, v{src}" if c & 1 else f"v_lshlrev_b32 v{X+8*c+r}, 16, v{src}")
        for r in range(0, 8, 2): A(f"v_pk_fma_f32 {vr(U+8*c+r,2)}, {vr(X+8*c+r,2)}, {vr(RS+r,2)}, {vr(NB+r,2)}")
        for k in range(4): A(f"v_cvt_pk_bf16_f32 v{UP+4*c+k}, v{U+8*c+7-2*k}, v{U+8*c+6-2*k}")
        A(f"ds_write_b128 v235, {vr(UP+4*c,4)} offset:{c * 4608}")
    A("s_waitcnt lgkmcnt(0)\ns_barrier")
    stamp(2)
    for c in range(4):
        ba = "v236" if c < 2 else "v237"; co = (c & 1) * K1_CH
        A(f"ds_write_b128 {ba}, {vr(X+8*c,4)} offset:{co}\nds_write_b128 {ba}, {vr(X+8*c+4,4)} offset:{co+16}")
    A(f"""
    s_cmp_lg_u32 s4, 0
    s_cbranch_scc1 K1_NOBUMP
    v_and_b32 v6, 31, v1
    v_lshlrev_b32 v6, 2, v6
    v_mov_b32 v7, s54
    s_lshl_b32 s52, s2, 7
    s_add_u32 s52, s52, {WS_HR1:#x}
    buffer_store_dword v7, v6, s[12:15], s52 offen sc1
    K1_NOBUMP:
    s_waitcnt lgkmcnt(0)
    s_barrier
    s_branch K2_LOADER
    """)
    A("K1_PEND:\ns_mov_b32 m0, s55\ns_waitcnt lgkmcnt(0)")
    FA, FB = 112, 144
    def kmf(tb, first):
        for ks in range(8):
            A(f"ds_read_b128 {vr(FA+4*ks,4)}, v228 offset:{tb + TAB_HI + ks*32}\nds_read_b128 {vr(FB+4*ks,4)}, v228 offset:{tb + ks*32}")
        for ks in range(8):
            A(f"s_waitcnt lgkmcnt({14-2*ks})")
            A(f"v_mfma_f32_32x32x16_bf16 {vr(ACC,16)}, {vr(FA+4*ks,4)}, {vr(FB+4*ks,4)}, {'0' if first and ks == 0 else vr(ACC,16)}")
    kmf(0, True)
    for i in range(0, 32, 2): A(f"v_mov_b64 {vr(16+i,2)}, 0")
    stamp(12)
    A("s_barrier")
    A(f"v_add_u32 v228, {K1_TB}, v228")
    kmf(0, False)
    a = lambda r: f"v{ACC+r}"
    O = 112
    def pk(d, x, y): A(f"v_cvt_pk_bf16_f32 v{d}, {x}, {y}")
    A(f"""
    s_mov_b64 exec, 0xff
    ds_write_addtid_b32 v240
    s_mov_b64 exec, -1
    s_lshr_b64 s[44:45], s[44:45], s62
    s_lshl_b32 s44, s44, 16
    v_mov_b32 v2, s44
    v_cndmask_b32 v2, 0, v2, s[50:51]
    s_nop 4
    v_add_f32 {a(0)}, {a(0)}, v2
    v_readlane_b32 s52, {a(10)}, 63
    v_readfirstlane_b32 s53, {a(0)}
    """)
    pk(O+0, a(0), a(1)); pk(O+1, a(2), a(3)); pk(O+2, a(1), a(2)); pk(O+3, a(3), a(4))
    A(f"ds_write_b64 v229, {vr(O,2)} offset:32\nds_write_b64 v229, {vr(O+2,2)} offset:{KC1+32}")
    p, q, r_ = a(5), a(6), a(7)
    pk(O+4, p, p); pk(O+5, q, r_); pk(O+6, p, q); pk(O+7, r_, r_)
    A(f"ds_write_b64 v229, {vr(O+4,2)} offset:{32+512}\nds_write_b64 v229, {vr(O+6,2)} offset:{KC1+32+512}")
    p, q, r_ = a(8), a(9), a(10)
    pk(O+8, p, p); pk(O+9, p, q); pk(O+10, q, q); pk(O+11, r_, r_)
    pk(O+12, p, p); pk(O+13, q, q); pk(O+14, q, r_); pk(O+15, r_, r_)
    A(f"ds_write_b128 v230, {vr(O+8,4)} offset:{32+1024}\nds_write_b128 v230, {vr(O+12,4)} offset:{KC1+32+1024}")
    A(f"""
    v_cvt_pk_bf16_f32 v2, 0, s53
    v_cvt_pk_bf16_f32 v3, s52, s52
    v_cvt_pk_bf16_f32 v4, s52, 0
    v_cndmask_b32 v2, 0, v2, s[36:37]
    v_cndmask_b32 v3, 0, v3, s[38:39]
    v_cndmask_b32 v4, v3, v4, s[48:49]
    s_mov_b64 exec, 0xff
    ds_write_addtid_b32 v2 offset:{KC1}
    s_mov_b64 exec, 0xffff
    ds_write_addtid_b32 v4 offset:{32+2048}
    ds_write_addtid_b32 v3 offset:{KC1+32+2048}
    s_mov_b64 exec, -1
    """)
    pk(5, a(11), a(12))
    D = 16; SET = [48, 96]
    def loads(st, extra, which="AB"):
        ops = []; Ab, Bb = SET[st], SET[st] + 16
        for k in range(8):
            o = (k & 1) * 128 + extra // 4
            if "B" in which: ops.append(f"ds_read_b128 {vr(Bb+4*k,4)}, v234 offset:{512*(7-k) + extra}")
            if "A" in which and k < 4:
                ops.append(f"ds_read2_b32 {vr(Ab+4*k,2)}, v{232 + k//2} offset0:{o} offset1:{o+1}")
                ops.append(f"ds_read2_b32 {vr(Ab+4*k+2,2)}, v{232 + k//2} offset0:{o+2} offset1:{o+3}")
        return ops
    def mfmas(st):
        Ab, Bb = SET[st], SET[st] + 16
        return [f"v_mfma_f32_16x16x32_bf16 {vr(D+4*i,4)}, {vr(Ab+4*s1,4)}, {vr(Bb+4*(i-s1),4)}, {vr(D+4*i,4)}" for s1 in range(4) for i in range(s1, 8)]
    RK = 144; A32 = 176; WF = 180; U9 = 180; WD_ = 196; BS = 196
    A(f"""
    ds_write_b16 v231, v5 offset:{4 + 126}
    ds_write_b16 v231, v5 offset:{320 + 4 + 124}
    ds_write_b16_d16_hi v231, v5 offset:{4 + 126 - 64}
    ds_write_b16_d16_hi v231, v5 offset:{320 + 4 + 124 - 64}
    ds_read2_b32 {vr(A32,2)}, v239 offset0:0 offset1:1
    ds_read2_b32 {vr(A32+2,2)}, v239 offset0:2 offset1:3
    """)
    for o in loads(0, 0, "A"): A(o)
    for ty in range(2):
        for oi in range(4):
            o = ty * 160 + (48 - 16 * oi) // 2
            A(f"ds_read2_b32 {vr(RK+(ty*4+oi)*4,2)}, v236 offset0:{o} offset1:{o+1}\nds_read2_b32 {vr(RK+(ty*4+oi)*4+2,2)}, v236 offset0:{o+8} offset1:{o+9}")
    A("s_barrier")
    stamp(2)
    bl = loads(0, 0, "B")
    for o in bl[:4]: A(o)
    for k in range(4): A(f"ds_read_b128 {vr(U9+4*k,4)}, v234 offset:{512*(7-k) + 16}")
    for o in bl[4:]: A(o)
    B0 = SET[0] + 16
    A("s_mov_b32 s52, 0\ns_waitcnt lgkmcnt(8)")
    for k in range(4): A(f"v_mfma_f32_16x16x32_bf16 {vr(WD_+4*k,4)}, {vr(B0+4*k,4)}, v[244:247], 0")
    A("s_waitcnt lgkmcnt(4)")
    for k in range(4): A(f"v_mfma_f32_16x16x32_bf16 {vr(WD_+16+4*k,4)}, {vr(U9+4*k,4)}, v[248:251], 0")
    for i in range(4, 8): A(f"v_mfma_f32_16x16x32_bf16 {vr(D+4*i,4)}, {vr(A32,4)}, {vr(B0+4*(i-4),4)}, {vr(D+4*i,4)}")
    far = [f"v_mfma_f32_16x16x32_bf16 {vr(D+4*i,4)}, {vr(WF+(ty*2+ks)*4,4)}, {vr(RK+(ty*4+i-4-2*ks)*4,4)}, {vr(D+4*i,4)}"
           for ty in range(2) for i, ks in [(4, 0), (5, 0), (6, 0), (7, 0), (6, 1), (7, 1)]]
    def fin(i):
        ops = [f"v_pk_add_f32 {vr(D+4*i,2)}, {vr(D+4*i,2)}, {vr(BS+4*i,2)}", f"v_pk_add_f32 {vr(D+4*i+2,2)}, {vr(D+4*i+2,2)}, {vr(BS+4*i+2,2)}",
               f"v_cvt_pk_bf16_f32 v{48+2*i}, v{D+4*i}, v{D+4*i+1}", f"v_cvt_pk_bf16_f32 v{48+2*i+1}, v{D+4*i+2}, v{D+4*i+3}"]
        if i & 1:
            o = 48 + 2 * (i - 1)
            ops += ["s_nop 1", f"v_permlane16_swap_b32 v{o}, v{o+2}", f"v_permlane16_swap_b32 v{o+1}, v{o+3}",
                    f"buffer_store_dwordx4 {vr(o,4)}, v237, s[12:15], s47 offen offset:{512*(i-1)} sc1"]
        return ops
    def body(last):
        for st in range(2):
            A("s_waitcnt lgkmcnt(0)")
            m = mfmas(st)
            if last and st == 1:
                Ab, Bb = SET[st], SET[st] + 16
                pend = []
                for i in range(8):
                    for s1 in range(min(i, 3) + 1):
                        A(f"v_mfma_f32_16x16x32_bf16 {vr(D+4*i,4)}, {vr(Ab+4*s1,4)}, {vr(Bb+4*(i-s1),4)}, {vr(D+4*i,4)}")
                        for _ in range(2):
                            if pend: A(pend.pop(0))
                    if i >= 3: pend += fin(i - 3)
                for o in pend: A(o)
                for i in range(5, 8):
                    for o in fin(i): A(o)
                continue
            A("s_add_u32 s52, s52, 1")
            ld = loads(1 - st, 64 * (st + 1))
            if last:
                cv = [f"v_cvt_pk_bf16_f32 v{WF+k}, v{WD_+2*k}, v{WD_+2*k+1}" for k in range(16)]
                ld = [x + "\n" + y for x, y in zip(ld, cv)]
                ld += ["s_lshl_b32 s47, s5, 12", f"s_add_u32 s47, s47, {WS_HT:#x}"]
                ld += [f"ds_read_b128 {vr(BS+4*i,4)}, v235 offset:{K1_BASE + 1024*i}" for i in range(8)]
                m = m + far
            for k, x in enumerate(m):
                A(x)
                if k < len(ld): A(ld[k])
                if not last and st == 1 and 20 <= k < 23:
                    rr = (232, 233, 234)[k - 20]; A(f"v_add_u32 v{rr}, 128, v{rr}")
    A(".p2align 3\nK1_CONV:")
    body(False)
    A(f"s_cmp_lg_u32 s52, {E('BDAT', 2)}\ns_cbranch_scc1 K1_CONV2\ns_barrier\nK1_CONV2:\ns_cmp_lt_u32 s52, 6\ns_cbranch_scc1 K1_CONV")
    body(True)
    A("s_branch K2_COMP")

    A(f"""
    K1_PREP:
    s_sub_u32 s3, s2, 160
    s_lshl_b32 s46, s3, 3
    s_add_u32 s46, s46, s60
    s_add_u32 s46, s46, {NT1 - 432}
    s_lshl_b32 s47, s3, 2
    s_add_u32 s47, s47, s4
    s_add_u32 s47, s47, {NT0}
    s_cmp_lt_u32 s3, 54
    s_cselect_b32 s46, s47, s46
    s_cselect_b32 s44, s61, 1
    s_cselect_b32 s47, 1024, 0
    s_mul_i32 s45, s60, 42
    s_add_u32 s45, s45, s3
    s_add_u32 s45, s45, {NT1 + 336 - 54}
    s_add_u32 s47, s47, s45
    """)
    rowaddr(46, "v4", "v5"); rowaddr(47, "v12", "v13")
    A(f"""
    s_waitcnt lgkmcnt(0)
    s_load_dword s54, s[6:7], 0
    s_mov_b32 s12, s6
    s_mov_b32 s13, s7
    s_mov_b32 s14, {WS_SIZE:#x}
    s_mov_b32 s15, 0x00020000
    s_cmp_eq_u32 s44, 0
    s_cbranch_scc1 K1_PREPW
    """)
    rowload(48, "v4", "v5")
    A("s_cmp_lt_u32 s47, 1024\ns_cselect_b32 s45, 2, 1\ns_cbranch_scc0 K1_ST0")
    rowload(64, "v12", "v13")
    A(f"""
    K1_ST0:
    s_lshl_b32 s46, s46, 4
    s_add_u32 s46, s46, {WS_ST:#x}
    s_lshl_b32 s47, s47, 4
    s_add_u32 s47, s47, {WS_ST:#x}
    s_waitcnt vmcnt(0) lgkmcnt(0)
    s_add_u32 s53, s54, {TAG_INC:#x}
    K1_ST1:
    """)
    rowstats("s46")
    for r in range(0, 10, 2): A(f"v_mov_b64 {vr(48+r,2)}, {vr(64+r,2)}")
    A("s_mov_b32 s46, s47\ns_sub_u32 s45, s45, 1\ns_cmp_lg_u32 s45, 0\ns_cbranch_scc1 K1_ST1")
    stamp(1)
    A(f"""
    s_barrier
    s_cmp_eq_u32 s61, 0
    s_cbranch_scc1 K1_PREPD
    s_barrier
    s_mov_b32 s54, s53
    v_mov_b32 v8, {K1_CNT}
    s_mov_b32 s52, 0
    K1_WD:
    ds_read_b32 v9, v8 offset:4
    s_add_u32 s52, s52, 1
    s_waitcnt lgkmcnt(0)
    v_cmp_ne_u32 vcc, 4, v9
    s_cmp_lt_u32 s52, 0x100000
    s_cbranch_vccz K1_WD2
    s_sleep 4
    s_cbranch_scc1 K1_WD
    K1_WD2:
    s_cmp_lt_u32 s2, {E('HR1MIN', 250)}
    s_cbranch_scc1 K2_LOADER
    s_lshl_b32 s3, s2, 7
    s_add_u32 s3, s3, {WS_HR1 - 160*128:#x}
    v_mov_b32 v5, s3
    """)
    poll("K1_PHR1", "v5", "v6", slp=8)
    A(f"""
    s_branch K2_LOADER
    K1_PREPW:
    s_cmp_ge_u32 s3, 27
    s_cselect_b32 s40, 1, 0
    s_cselect_b32 s8, s38, s36
    s_cselect_b32 s9, s39, s37
    s_mul_i32 s41, s40, 27
    s_sub_u32 s41, s3, s41
    s_mov_b32 s10, {640*1728*2}
    s_mov_b32 s11, 0x00020000
    v_lshrrev_b32 v2, 3, v1
    v_and_b32 v3, 7, v1
    v_and_b32 v4, 6, v2
    v_xor_b32 v3, v3, v4
    v_mul_u32_u24 v2, 3456, v2
    v_lshl_add_u32 v2, v3, 4, v2
    s_lshl_b32 s42, s41, 7
    s_mul_i32 s43, s4, 552960
    s_add_u32 s42, s42, s43
    s_mul_i32 s44, s4, 20480
    s_mov_b32 s45, 0
    K1_PW_LD:
    s_mov_b32 m0, s44
    s_add_u32 s44, s44, 1024
    s_add_u32 s45, s45, 1
    buffer_load_dwordx4 v2, s[8:11], s42 offen lds
    s_add_u32 s42, s42, 27648
    s_cmp_lg_u32 s45, {E('PACE', 5)}
    s_cbranch_scc1 K1_PW_L2
    s_barrier
    K1_PW_L2:
    s_cmp_lt_u32 s45, 20
    s_cbranch_scc1 K1_PW_LD
    v_lshrrev_b32 v2, 2, v1
    v_and_b32 v3, 6, v2
    v_bfe_u32 v4, v1, 1, 1
    s_lshl_b32 s43, s4, 1
    v_add_u32 v4, s43, v4
    v_xor_b32 v3, v3, v4
    v_lshlrev_b32 v2, 7, v2
    v_lshl_add_u32 v2, v3, 4, v2
    v_and_b32 v3, 1, v1
    v_lshl_add_u32 v2, v3, 3, v2
    v_add_u32 v4, 40960, v2
    s_lshl_b32 s43, s41, 2
    s_add_u32 s43, s43, s4
    s_mul_i32 s44, s43, 9363
    s_lshr_b32 s44, s44, 16
    s_mul_i32 s45, s44, 7
    s_sub_u32 s45, s43, s45
    s_mul_i32 s46, s44, {20*14*1024}
    s_add_u32 s46, s46, {WS_W1P:#x}
    s_cmp_gt_u32 s45, 3
    s_cselect_b32 s47, 3, 0
    s_add_u32 s47, s47, s45
    s_mul_i32 s48, s40, 3
    s_add_u32 s47, s47, s48
    s_lshl_b32 s47, s47, 10
    v_bfe_u32 v6, v1, 2, 1
    v_bfe_u32 v7, v1, 3, 1
    v_xor_b32 v6, v6, v7
    v_mul_u32_u24 v6, 12, v6
    s_and_b32 s48, s45, 3
    s_cmp_eq_u32 s48, 2
    s_cselect_b32 s48, -1, 0
    v_and_b32 v6, s48, v6
    v_xor_b32 v5, v6, v1
    v_lshlrev_b32 v5, 4, v5
    v_add_u32 v5, s47, v5
    v_and_b32 v6, 7, v1
    v_and_b32 v7, 48, v1
    v_add_u32 v6, v6, v7
    s_lshl_b32 s48, s40, 3
    v_add_u32 v6, s48, v6
    v_lshlrev_b32 v6, 4, v6
    v_bfe_u32 v7, v1, 3, 1
    v_mul_u32_u24 v7, 7168, v7
    v_add3_u32 v6, v6, v7, 0
    v_add_u32 v6, 6144, v6
    s_cmp_eq_u32 s45, 3
    s_cselect_b64 vcc, -1, 0
    s_nop 1
    v_cndmask_b32 v5, v5, v6, vcc
    s_waitcnt vmcnt(0)
    s_barrier
    """)
    stamp(2)
    F = 16
    for ks in range(20):
        base = "v2" if ks < 10 else "v4"; o = (ks % 10) * 4096
        A(f"ds_read_b64_tr_b16 {vr(F+4*ks,2)}, {base} offset:{o}\nds_read_b64_tr_b16 {vr(F+4*ks+2,2)}, {base} offset:{o+2048}")
    A("v_mov_b32 v8, 0\nv_mov_b32 v9, 0\nv_mov_b32 v10, 0x3f803f80\ns_mov_b32 s47, 0xffff0000\ns_waitcnt lgkmcnt(0)")
    for i in range(0, 80, 2): A(f"v_dot2c_f32_bf16 v8, v10, v{F+i}\nv_dot2c_f32_bf16 v9, v10, v{F+i+1}")
    A("""
    s_nop 2
    v_add_f32 v8, v8, v9
    v_mov_b32 v9, v8
    s_nop 1
    v_permlane16_swap_b32 v8, v9
    s_nop 1
    v_add_f32 v8, v8, v9
    v_mov_b32 v9, v8
    s_nop 1
    v_permlane32_swap_b32 v8, v9
    s_nop 1
    v_add_f32 v8, v8, v9
    v_mul_f32 v8, 0xbacccccd, v8
    s_mov_b32 s47, 0x3f80
    s_mov_b32 s48, 0x3f800000
    .p2align 3
    """)
    for ks in range(20):
        for i in range(4):
            r = F + 4 * ks + i; t = 100 + 2 * i
            A(f"v_dot2_f32_bf16 v{t}, v{r}, s47, v8\nv_dot2_f32_bf16 v{t+1}, v{r}, s48, v8")
        for i in range(4):
            r = F + 4 * ks + i; t = 100 + 2 * i
            A(f"v_cvt_pk_bf16_f32 v{r}, v{t}, v{t+1}")
        A(f"buffer_store_dwordx4 {vr(F+4*ks,4)}, v5, s[12:15], s46 offen sc1\ns_add_u32 s46, s46, {14*1024}")
        if ks == NEK + ELAG - 1:
            A(f"""
            v_mov_b32 v11, {K1_CNT}
            v_mov_b32 v12, 1
            s_waitcnt vmcnt({ELAG})
            s_mov_b64 exec, 1
            ds_add_rtn_u32 v13, v11, v12 offset:8
            s_mov_b64 exec, -1
            s_add_u32 s44, s54, {TAG_INC:#x}
            v_and_b32 v14, 31, v1
            v_lshlrev_b32 v14, 2, v14
            v_mov_b32 v15, s44
            s_lshl_b32 s45, s2, 7
            s_add_u32 s45, s45, {WS_FE:#x}
            s_waitcnt lgkmcnt(0)
            v_readfirstlane_b32 s44, v13
            s_cmp_lg_u32 s44, 3
            s_cbranch_scc1 K1_NOFE
            s_mov_b32 exec_hi, 0
            buffer_store_dword v15, v14, s[12:15], s45 offen sc1
            s_mov_b32 exec_hi, -1
            K1_NOFE:
            """)
            stamp(1)
    A("s_branch K2_COMPP")
    tabv = [Q_TILES[r][hf] for r in range(7) for hf in range(2)]
    t64 = sum(v << (4 * i) for i, v in enumerate(tabv))
    A(f"""
    K1_PREPD:
    s_sub_u32 s3, s3, 54
    s_cmp_lt_u32 s3, 36
    s_cbranch_scc1 K1_PD0
    s_barrier
    s_branch K2_COMPP
    K1_PD0:
    """)
    srd(8, 92, 1728 * 640 * 2)
    for i in range(5):
        A(f"""
        v_add_u32 v2, {64*i}, v1
        v_mul_u32_u24 v3, 6554, v2
        v_lshrrev_b32 v3, 16, v3
        v_mul_u32_u24 v4, 1120, v3
        v_lshl_add_u32 v{40+i}, v2, 4, v4
        v_lshrrev_b32 v{45+i}, 4, v3
        """)
    A(f"""
    s_mul_i32 s40, s3, 12
    s_add_u32 s40, s40, s4
    s_mul_i32 s49, s4, 15360
    s_mov_b32 s45, 0
    K1_PD1:
    s_lshr_b32 s36, s40, 3
    s_mul_i32 s37, s36, 9363
    s_lshr_b32 s37, s37, 16
    s_mul_i32 s38, s37, 7
    s_sub_u32 s38, s36, s38
    s_lshl_b32 s39, s38, 3
    s_mov_b32 s50, {t64 & 0xffffffff:#x}
    s_mov_b32 s51, {t64 >> 32:#x}
    s_lshr_b64 s[50:51], s[50:51], s39
    s_mul_i32 s37, s37, 14
    s_and_b32 s48, s50, 15
    s_add_u32 s48, s48, s37
    s_lshr_b32 s50, s50, 4
    s_and_b32 s50, s50, 15
    s_add_u32 s50, s50, s37
    s_min_u32 s50, s50, 107
    s_sub_u32 s50, s50, s48
    s_sub_u32 s50, s50, 1
    s_mul_i32 s39, s50, 20480
    s_mul_i32 s48, s48, 20480
    s_and_b32 s37, s40, 7
    s_mul_i32 s37, s37, 160
    s_add_u32 s48, s48, s37
    """)
    for i in range(5):
        A(f"s_add_u32 m0, s49, {1024*i}\nv_mad_u32_u24 v2, v{45+i}, s39, v{40+i}\nbuffer_load_dwordx4 v2, s[8:11], s48 offen lds")
    A(f"""
    s_add_u32 s40, s40, 4
    s_add_u32 s49, s49, 5120
    s_add_u32 s45, s45, 1
    s_cmp_lt_u32 s45, 3
    s_cbranch_scc1 K1_PD1
    s_sub_u32 s40, s40, 12
    s_sub_u32 s49, s49, 15360
    v_lshrrev_b32 v6, 4, v1
    v_bfe_u32 v7, v1, 2, 2
    v_and_b32 v8, 3, v1
    v_lshlrev_b32 v5, 4, v1
    s_waitcnt vmcnt(0)
    s_barrier
    """)
    stamp(2)
    A(f"""
    K1_PD3:
    s_lshr_b32 s36, s40, 3
    s_mul_i32 s37, s36, 9363
    s_lshr_b32 s37, s37, 16
    s_mul_i32 s38, s37, 7
    s_sub_u32 s38, s36, s38
    s_lshr_b32 s39, s38, 1
    s_mul_i32 s36, s37, 3
    s_lshl_b32 s37, s37, 2
    s_add_u32 s37, s37, 23
    s_and_b32 s38, s38, 1
    s_cselect_b32 s36, s36, s37
    s_add_u32 s36, s36, s39
    v_lshlrev_b32 v2, s38, v6
    v_lshl_add_u32 v2, v2, 2, v7
    v_mul_u32_u24 v2, 160, v2
    v_lshl_add_u32 v2, v8, 3, v2
    v_add_u32 v2, s49, v2
    s_cmp_eq_u32 s38, 1
    s_movk_i32 s38, 2560
    s_cselect_b32 s38, 640, s38
    v_add_u32 v3, s38, v2
    s_and_b32 s37, s40, 7
    s_mul_i32 s37, s37, {54*5120}
    s_mul_i32 s36, s36, 5120
    s_add_u32 s50, s37, s36
    s_add_u32 s50, s50, {WS_WDP:#x}
    s_add_u32 s51, s50, 4096
    """)
    for t in range(5): A(f"ds_read_b64_tr_b16 {vr(16+4*t,2)}, v2 offset:{32*t}\nds_read_b64_tr_b16 {vr(16+4*t+2,2)}, v3 offset:{32*t}")
    A("s_waitcnt lgkmcnt(0)")
    for t in range(5): A(f"buffer_store_dwordx4 {vr(16+4*t,4)}, v5, s[12:15], {'s50' if t < 4 else 's51'} offen offset:{1024*(t&3)} sc1")
    A("""
    s_add_u32 s40, s40, 4
    s_add_u32 s49, s49, 5120
    s_sub_u32 s45, s45, 1
    s_cmp_lg_u32 s45, 0
    s_cbranch_scc1 K1_PD3
    s_branch K2_COMPP
    """)

    A("K2_LOADER:")
    map2()
    RW = 16
    A(f"""
    s_mul_i32 s35, s37, {54*5120}
    s_add_u32 s35, s35, {WS_WDP:#x}
    s_mul_i32 s26, s4, 15360
    s_add_u32 s29, s35, s26
    s_add_u32 s29, s29, 153600
    v_min_u32 v5, 35, v1
    v_lshlrev_b32 v5, 7, v5
    v_add_u32 v5, {WS_FP + 214*128:#x}, v5
    """)
    def batch(b):
        for i in range(15):
            A(f"buffer_load_dwordx4 {vr(RW+(b*15+i)*4,4)}, v4, s[12:15], s29 offen offset:{1024*(i&3)} sc1")
            if (i & 3) == 3: A("s_add_u32 s29, s29, 4096")
        if b == 0: A(f"s_add_u32 s29, s29, {61440 - 12288}")
    A(f"""
    s_mul_i32 s20, s17, 7
    s_lshr_b32 s20, s20, 2
    v_and_b32 v7, 3, v1
    v_min_u32 v7, 2, v7
    v_add_u32 v7, s20, v7
    v_min_u32 v7, 26, v7
    v_bfe_u32 v6, v1, 2, 1
    v_mad_u32_u24 v7, v6, 27, v7
    v_add_u32 v12, 160, v7
    v_lshlrev_b32 v7, 7, v7
    v_add_u32 v10, {WS_FE + 160*128:#x}, v7
    v_lshrrev_b32 v8, 4, v1
    v_and_b32 v6, 15, v1
    v_lshlrev_b32 v7, 1, v8
    v_xor_b32 v2, v6, v7
    v_xor_b32 v3, 8, v2
    v_lshlrev_b32 v7, 12, v8
    v_lshl_add_u32 v2, v2, 4, v7
    v_lshl_add_u32 v3, v3, 4, v7
    s_lshl_b32 s20, s4, 16
    s_lshl_b32 s21, s16, 8
    s_add_u32 s20, s20, s21
    s_add_u32 s20, s20, {WS_HT:#x}
    s_mul_i32 s21, s17, {20*14*1024}
    s_mul_i32 s22, s4, 7168
    s_add_u32 s21, s21, s22
    s_add_u32 s21, s21, {WS_W1P:#x}
    s_lshl_b32 s23, s4, 12
    s_add_u32 s23, s23, {XS}
    s_add_u32 s24, s22, {WB + WSL}
    s_mov_b32 s33, {XS}
    s_mov_b32 s34, {WSL}
    v_min_u32 v7, 39, v1
    v_lshrrev_b32 v8, 2, v7
    v_and_b32 v7, 3, v7
    v_lshl_add_u32 v7, v8, 4, v7
    s_lshl_b32 s22, s4, 2
    v_add_u32 v7, s22, v7
    v_min_u32 v8, 48, v1
    s_mul_i32 s22, s4, 9
    s_add_u32 s22, s22, {214 - 40}
    v_add_u32 v8, s22, v8
    v_cmp_gt_u32 vcc, 40, v1
    s_nop 1
    v_cndmask_b32 v7, v8, v7, vcc
    v_cmp_gt_u32 vcc, 56, v1
    s_nop 1
    v_cndmask_b32 v7, v12, v7, vcc
    v_lshlrev_b32 v7, 7, v7
    v_add_u32 v7, {WS_FP:#x}, v7
    v_mov_b32 v8, {K1_CNT}
    """)
    def dma_x():
        A("""
        s_mov_b32 m0, s23
        s_add_u32 s25, s20, 15360
        buffer_load_dwordx4 v2, s[12:15], s20 offen sc1 lds
        s_add_u32 s27, s20, 30720
        buffer_load_dwordx4 v3, s[12:15], s25 offen offset:1024 sc1 lds
        s_add_u32 s25, s20, 46080
        buffer_load_dwordx4 v2, s[12:15], s27 offen offset:2048 sc1 lds
        s_add_u32 s20, s20, 0x40000
        buffer_load_dwordx4 v3, s[12:15], s25 offen offset:3072 sc1 lds
        """)
    def dma_w():
        A("s_mov_b32 m0, s24\ns_add_u32 s25, s21, 4096")
        for i in range(4): A(f"buffer_load_dwordx4 v4, s[12:15], s21 offen offset:{1024*i} sc1 lds")
        A(f"s_add_u32 m0, s24, 4096\ns_add_u32 s21, s21, {WSL}")
        for i in range(3): A(f"buffer_load_dwordx4 v4, s[12:15], s25 offen offset:{1024*i} sc1 lds")
    stamp(3)
    poll("K2_P1", "v10", "v6", slp=8)
    stamp(4)
    dma_w(); A(f"s_add_u32 s24, s24, {WSL}")
    dma_w(); A(f"s_sub_u32 s24, s24, {2*WSL}")
    WR = RW + (56 - 7 * NWR) * 4
    for st in range(NWR):
        A("s_add_u32 s25, s21, 4096")
        for i in range(7): A(f"buffer_load_dwordx4 {vr(WR+(st*7+i)*4,4)}, v4, s[12:15], {'s21' if i < 4 else 's25'} offen offset:{1024*(i&3)} sc1")
        A(f"s_add_u32 s21, s21, {WSL}")
    def put_w(st):
        A("v_add_u32 v12, s24, v4")
        for i in range(7): A(f"ds_write_b128 v12, {vr(WR+((st-2)*7+i)*4,4)} offset:{1024*i}")
    A(f"""
    s_mov_b32 s52, 0
    K2_WL:
    ds_read_b32 v9, v8 offset:4
    s_add_u32 s52, s52, 1
    s_waitcnt lgkmcnt(0)
    v_cmp_ne_u32 vcc, 4, v9
    s_cmp_lt_u32 s52, 0x100000
    s_cbranch_vccz K2_WL_D
    s_sleep 2
    s_cbranch_scc1 K2_WL
    K2_WL_D:
    s_cmp_lt_u32 s2, 160
    s_cbranch_scc1 K2_NOH2
    s_lshl_b32 s3, s2, 7
    s_add_u32 s3, s3, {WS_HR2 - 160*128:#x}
    v_mov_b32 v11, s3
    """)
    poll("K2_PH2", "v11", "v6", slp=8)
    A("K2_NOH2:")
    stamp(5)
    A(f"""
    s_lshl_b32 s31, s4, 10
    s_add_u32 s30, s35, s31
    v_lshrrev_b32 v240, 3, v1
    v_and_b32 v241, 7, v1
    v_lshlrev_b32 v240, 12, v240
    v_lshl_add_u32 v242, v241, 4, v240
    s_mul_i32 s40, s37, {80*4096}
    s_lshl_b32 s41, s36, 7
    s_add_u32 s40, s40, s41
    s_add_u32 s40, s40, {WS_HT:#x}
    s_lshl_b32 s41, s4, 15
    s_add_u32 s40, s40, s41
    s_add_u32 s42, s31, {G1_END}
    s_add_u32 s41, s31, {RES_LDS}
    v_add_u32 v240, s26, v4
    v_add_u32 v243, 61440, v240
    v_add_u32 v244, s31, v4
    v_add_u32 v245, 0x10000, v244
    v_lshl_add_u32 v241, s4, 3, v241
    v_lshlrev_b32 v241, {FSH}, v241
    s_lshl_b32 s38, s36, {FSH + 5}
    s_add_u32 s39, s38, {WS_FH2:#x}
    s_add_u32 s38, s38, {WS_FH:#x}
    """)
    NE0 = E("NE0", 14)
    if NE0: A("buffer_load_dword v6, v5, s[12:15], 0 offen sc1")
    if NWR: A(f"s_waitcnt vmcnt({1 if NE0 else 0})"); put_w(2)
    else: dma_w()
    A(f"s_add_u32 s24, s24, {WSL}")
    if NE0:
        A("s_waitcnt vmcnt(0)\nv_cmp_ne_u32 vcc, s54, v6\ns_cbranch_vccz K2_WOK")
        poll("K2_PW", "v5", "v6", slp=4)
        A("K2_WOK:")
        for i in range(NE0): A(f"buffer_load_dwordx4 {vr(RW+i*4,4)}, v4, s[12:15], s30 offen sc1\ns_add_u32 s30, s30, 4096")
    if E("WAITB", 0): A("s_waitcnt vmcnt(0)")
    stamp(6)
    poll("K2_PC", "v7", "v6", slp=4)
    A(f"s_setprio {E('LPRIO', 0)}")
    stamp(7)
    dma_x(); A(f"s_add_u32 s23, s23, {XS}")
    dma_x(); A(f"s_sub_u32 s23, s23, {2*XS}")
    dma_x(); A(f"s_add_u32 s23, s23, {XS}")
    vq = ["X0"] * 4 + ["X1"] * 4 + ["X2"] * 4
    def wait_for(tag, extra=""):
        last = max(i for i, t in enumerate(vq) if t == tag)
        A(f"s_waitcnt vmcnt({min(63, len(vq) - 1 - last)}) {extra}")
    NF0 = 26
    rl = [NE0]
    vq = ["F0a"] + vq
    def regload(n):
        for _ in range(min(n, 56 - rl[0])):
            i = rl[0]; rl[0] += 1
            if i < NF0:
                A(f"buffer_load_dwordx4 {vr(RW+i*4,4)}, v4, s[12:15], s30 offen sc1\ns_add_u32 s30, s30, 4096"); vq.append("F0a" if i < 13 else "F0b")
            else:
                b, j = divmod(i - NF0, 15)
                A(f"buffer_load_dwordx4 {vr(RW+i*4,4)}, v4, s[12:15], s29 offen offset:{1024*(j&3)} sc1"); vq.append(f"B{b}")
                if (j & 3) == 3: A("s_add_u32 s29, s29, 4096")
                if i - NF0 == 14: A(f"s_add_u32 s29, s29, {61440 - 12288}")
    wait_for("X0", "lgkmcnt(0)"); A("s_barrier")
    EX = [int(x) for x in os.environ.get("EX", "8,2,2,1,0,0,0,0,0,12,12").split(",")]
    regload(EX[0])
    for st in range(3, 10):
        k = st - 2
        wait_for(f"X{k}", "lgkmcnt(0)"); A("s_barrier")
        dma_x()
        if st < 2 + NWR: put_w(st); vq += [f"X{st}"] * 4
        elif st == 9:
            ld = lambda base, i: A(f"buffer_load_dwordx4 v4, s[12:15], {base} offen offset:{1024*i} sc1 lds")
            A("s_add_u32 m0, s24, 4096\ns_add_u32 s25, s21, 4096"); ld("s25", 1); ld("s25", 2)
            A("s_mov_b32 m0, s24\ns_nop 0"); ld("s21", 2)
            vq += ["X9"] * 7
            wait_for("X8"); A("s_barrier")
            ld("s21", 0); ld("s21", 1); ld("s21", 3)
            A("s_add_u32 m0, s24, 4096\ns_nop 0"); ld("s25", 0)
            vq += ["X9b"] * 4
        else: dma_w(); vq += [f"X{st}"] * 11
        regload(EX[k])
        if st < 9:
            if (st + 1) % 3 == 2: A(f"s_sub_u32 s23, s23, {2*XS}\ns_sub_u32 s24, s24, {2*WSL}")
            else: A(f"s_add_u32 s23, s23, {XS}\ns_add_u32 s24, s24, {WSL}")
    A(f"s_add_u32 s24, s24, {WSL}")
    regload(EX[8])
    wait_for("X9"); A("s_barrier")
    stamp(8)
    regload(EX[9])
    wait_for("X9b"); A("s_barrier")
    regload(EX[10])
    assert rl[0] >= NF0
    def tailres():
        for i in range(4): A(f"s_add_u32 m0, s42, {4096*i}\ns_add_u32 s25, s35, m0\nbuffer_load_dwordx4 v4, s[12:15], s25 offen sc1 lds")
        for i in range(2): A(f"s_add_u32 m0, s41, {4096*i}\ns_add_u32 s25, s40, {0x20000*i}\nbuffer_load_dwordx4 v242, s[12:15], s25 offen sc1 lds")
        A(f"""
        s_cmp_lt_u32 s4, 2
        s_cbranch_scc0 K2_LR
        s_add_u32 m0, s42, {4096*4}
        s_add_u32 s25, s35, m0
        buffer_load_dwordx4 v4, s[12:15], s25 offen sc1 lds
        s_branch K2_LR2
        K2_LR:
        s_add_u32 m0, s41, {8192 - 2048}
        s_add_u32 s25, s40, {0x40000 - 0x10000}
        buffer_load_dwordx4 v242, s[12:15], s25 offen sc1 lds
        K2_LR2:
        """)
        vq.extend(["D"] * 7)
    def fw(i): A(f"ds_write_b128 {'v244' if i < 16 else 'v245'}, {vr(RW+i*4,4)} offset:{4096*(i & 15)}")
    def check(lbl, soff):
        A(f"v_cmp_ne_u32 vcc, s54, v11\ns_cbranch_vccz {lbl}_OK")
        poll(lbl, "v241", "v11", soff=soff, slp=4)
        A(f"{lbl}_OK:")
    TRE = E("TRE", 1)
    if TRE: tailres()
    wait_for("F0a"); A("s_barrier")
    dl = ["s_mov_b32 m0, s24\ns_add_u32 s25, s35, s24\nbuffer_load_dwordx4 v4, s[12:15], s25 offen sc1 lds"] + \
         [f"buffer_load_dwordx4 v4, s[12:15], s25 offen offset:{1024*i} sc1 lds" for i in (1, 2, 3)] + \
         ["s_add_u32 m0, s24, 4096\ns_add_u32 s25, s25, 4096\nbuffer_load_dwordx4 v4, s[12:15], s25 offen sc1 lds"] + \
         [f"buffer_load_dwordx4 v4, s[12:15], s25 offen offset:{1024*i} sc1 lds" for i in (1, 2)]
    PA = E("PA", 20)
    LIM = E("LIM", 56)
    for i in range(NF0):
        if i == 13: wait_for("F0b")
        if i == PA:
            A("buffer_load_dword v11, v241, s[12:15], s38 offen sc1"); vq.append("PA")
        fw(i)
        if dl: A(dl.pop(0)); vq.append("D")
        elif rl[0] < LIM and i < PA: regload(1)
    if PA >= NF0:
        A("buffer_load_dword v11, v241, s[12:15], s38 offen sc1"); vq.append("PA")
    stamp(9)
    wait_for("PA", "lgkmcnt(0)")
    check("K2_PA", "s38")
    A("s_barrier")
    stamp(10)
    if not TRE: tailres()
    regload(max(0, NF0 + 15 - rl[0]))
    wait_for(vq[-1]); A("s_barrier")
    A("buffer_load_dword v11, v241, s[12:15], s39 offen sc1"); vq.append("PB")
    NWB = E("NWB", 4)
    for i in range(NWB): A(f"ds_write_b128 v240, {vr(RW+(NF0+i)*4,4)} offset:{1024*i}")
    wait_for("PB")
    check("K2_PB", "s39")
    A("s_barrier")
    regload(56 - rl[0])
    for i in range(NWB, 15): A(f"ds_write_b128 v240, {vr(RW+(NF0+i)*4,4)} offset:{1024*i}")
    A("s_waitcnt lgkmcnt(0)\ns_barrier")
    A("s_waitcnt vmcnt(0)")
    for i in range(15): A(f"ds_write_b128 v243, {vr(RW+(NF0+15+i)*4,4)} offset:{1024*i}")
    A("s_waitcnt lgkmcnt(0)\ns_barrier")
    A(f"s_or_b32 s3, s2, s4\ns_cmp_lg_u32 s3, 0\ns_cbranch_scc1 K2_LEND\nv_lshlrev_b32 v5, 7, v1\nv_add_u32 v5, {WS_FP + 160*128:#x}, v5")
    poll("K2_PE0", "v5", "v6")
    A("v_add_u32 v5, 4096, v5")
    poll("K2_PE1", "v5", "v6")
    A("v_mov_b32 v6, 0\nv_mov_b32 v7, s54\ns_mov_b64 exec, 1\nglobal_store_dword v6, v7, s[6:7] sc1\ns_mov_b64 exec, -1\nK2_LEND:")
    finish()

    A(f"K2_COMPP:\ns_waitcnt lgkmcnt(0)\ns_add_u32 s54, s54, {TAG_INC:#x}")
    A("K2_COMP:")
    A(f"""
    v_mov_b32 v2, {K1_CNT}
    v_mov_b32 v3, 1
    v_mov_b32 v13, s54
    s_mov_b64 exec, 1
    ds_add_u32 v2, v3
    s_mov_b64 exec, -1
    """)
    stamp(3)
    map2()
    A(f"""
    v_lshrrev_b32 v5, 2, v1
    v_and_b32 v6, 7, v5
    v_and_b32 v7, 3, v1
    v_lshlrev_b32 v5, 8, v5
    v_lshl_add_u32 v5, v7, 3, v5
    v_add_u32 v5, {XS}, v5
    s_lshl_b32 s25, s18, 2
    """)
    for a_ in range(4): A(f"s_add_u32 s26, s25, {a_}\nv_xor_b32 v7, s26, v6\nv_lshl_add_u32 v{8+a_}, v7, 5, v5")
    A(f"s_mul_i32 s25, s19, 7168\ns_add_u32 s25, s25, {WB + WSL}\nv_add_u32 v12, s25, v4")
    ACC = 16; SETS = [128, 172]
    srd(8, 94, 2048 * 640 * 2)
    A(f"""
    v_mov_b32 v216, 0x3f803f80
    v_mov_b32 v217, 0x3f803f80
    v_mov_b32 v218, 0x3f803f80
    v_mov_b32 v219, 0x3f803f80
    s_mov_b32 s33, {XS}
    s_mov_b32 s34, {WSL}
    s_mov_b32 s27, 0
    s_mov_b32 s28, 1
    s_cmp_lt_u32 s2, 160
    s_cselect_b32 s20, s57, s2
    s_lshl_b32 s20, s20, 7
    s_add_u32 s20, s20, {WS_FP:#x}
    v_and_b32 v14, 31, v1
    v_lshlrev_b32 v14, 2, v14
    v_lshrrev_b32 v5, 5, v1
    v_mul_u32_u24 v5, {WS_HR2 - WS_FP:#x}, v5
    v_add_u32 v14, v14, v5
    s_waitcnt vmcnt(0)
    s_mov_b64 exec, 1
    ds_add_rtn_u32 v5, v2, v3 offset:4
    s_mov_b64 exec, -1
    s_waitcnt lgkmcnt(0)
    v_readfirstlane_b32 s21, v5
    s_cmp_lg_u32 s21, 3
    s_cbranch_scc1 K2_NOFLAG
    buffer_store_dword v13, v14, s[12:15], s20 offen sc1
    K2_NOFLAG:
    """)
    stamp(4)
    for i in range(0, 112, 2): A(f"v_mov_b64 {vr(ACC+i,2)}, 0")
    def reads(st, ks, stats):
        b = SETS[st]
        xo = [f"ds_read_b64_tr_b16 {vr(b+4*a_+2*hh,2)}, v{8+a_} offset:{ks*8192 + hh*4096}" for a_ in range(4) for hh in range(2)]
        wo = [] if stats else [f"ds_read_b128 {vr(b+16+4*w,4)}, v12 offset:{ks*14336 + w*1024}" for w in range(7)]
        return wo[:1] + xo + wo[1:]
    def mf(st, stats):
        b = SETS[st]
        if stats:
            return [f"v_mfma_f32_16x16x32_bf16 {vr(ACC+4*a_,4)}, {vr(b+4*a_,4)}, {vr(b+4*a_,4)}, {vr(ACC+4*a_,4)}" for a_ in range(4)] + \
                   [f"v_mfma_f32_16x16x32_bf16 {vr(ACC+16+4*a_,4)}, v[216:219], {vr(b+4*a_,4)}, {vr(ACC+16+4*a_,4)}" for a_ in range(4)]
        return [f"v_mfma_f32_16x16x32_bf16 {vr(ACC+(w*4+a_)*4,4)}, {vr(b+16+4*w,4)}, {vr(b+4*a_,4)}, {vr(ACC+(w*4+a_)*4,4)}" for w in range(7) for a_ in range(4)]
    A(f"""
    s_lshr_b32 s20, s17, 1
    s_mul_i32 s20, s20, 3
    s_and_b32 s21, s17, 1
    s_lshl_b32 s23, s16, 3
    s_lshl_b32 s24, s18, 2
    s_add_u32 s23, s23, s24
    s_mul_i32 s23, s23, 55296
    s_add_u32 s23, s23, {WS_HF:#x}
    s_lshl_b32 s24, s17, 1
    s_add_u32 s24, s24, s19
    s_add_u32 s24, s24, 23
    s_lshl_b32 s24, s24, 10
    s_add_u32 s40, s24, s23
    s_lshl_b32 s25, s21, 1
    s_add_u32 s25, s25, s20
    s_lshl_b32 s25, s25, 10
    s_lshl_b32 s26, s19, 9
    s_add_u32 s25, s25, s26
    s_add_u32 s26, s20, 1
    s_lshl_b32 s26, s26, 10
    s_lshl_b32 s29, s21, 9
    s_add_u32 s26, s26, s29
    s_cmp_eq_u32 s17, 15
    s_cselect_b32 s25, s26, s25
    s_add_u32 s41, s25, s23
    s_add_u32 s26, s26, s23
    s_lshl_b32 s29, s19, 8
    s_add_u32 s42, s26, s29
    s_cmp_eq_u32 s17, 15
    s_cselect_b32 s42, 0x40000000, s42
    v_and_b32 v5, 31, v1
    v_lshlrev_b32 v5, 4, v5
    v_lshrrev_b32 v6, 5, v1
    v_mul_u32_u24 v6, 55296, v6
    v_add_u32 v220, v5, v6
    v_and_b32 v7, 15, v1
    v_lshl_add_u32 v7, v7, 4, v6
    v_bfe_u32 v5, v1, 4, 1
    v_mul_u32_u24 v5, 110592, v5
    v_add_u32 v221, v7, v5
    v_and_b32 v2, {(1 << (FSH - 2)) - 1}, v1
    v_lshlrev_b32 v14, 2, v2
    s_lshl_b32 s20, s16, 1
    s_add_u32 s20, s20, s18
    s_lshl_b32 s20, s20, 5
    s_lshl_b32 s21, s17, 1
    s_add_u32 s20, s20, s21
    s_add_u32 s20, s20, s19
    s_lshl_b32 s20, s20, {FSH}
    s_add_u32 s43, s20, {WS_FH:#x}
    s_add_u32 s44, s20, {WS_FH2:#x}
    s_lshl_b32 s22, s36, 2
    s_add_u32 s22, s22, s4
    s_mul_i32 s23, s22, 55296
    s_xor_b32 s24, s22, 1
    s_mul_i32 s24, s24, 55296
    v_add_u32 v222, s23, v4
    v_add_u32 v223, s24, v4
    s_lshl_b32 s45, s19, 10
    s_add_u32 s45, s45, {WS_HF:#x}
    s_mul_i32 s24, s19, 5120
    v_add_u32 v224, s24, v4
    v_add_u32 v225, 61440, v224
    v_add_u32 v226, 122880, v224
    v_and_b32 v2, 15, v1
    v_lshrrev_b32 v3, 4, v1
    v_lshrrev_b32 v5, 2, v1
    v_lshlrev_b32 v5, 7, v5
    v_and_b32 v6, 3, v1
    v_lshl_add_u32 v5, v6, 3, v5
    s_lshl_b32 s24, s4, 5
    s_add_u32 s24, s24, {RES_LDS}
    v_add_u32 v227, s24, v5
    v_lshlrev_b32 v228, 2, v2
    s_lshl_b32 s22, s22, 4
    s_lshl_b32 s46, s22, 2
    s_add_u32 s46, s46, {WS_R2:#x}
    s_mul_i32 s47, s22, 1280
    s_mul_i32 s24, s37, 160
    s_add_u32 s47, s47, s24
    v_mul_u32_u24 v5, 1280, v2
    v_lshl_add_u32 v229, v3, 3, v5
    v_lshrrev_b32 v2, 1, v3
    v_lshl_add_u32 v5, v2, 4, v5
    v_and_b32 v2, 1, v3
    v_lshl_add_u32 v230, v2, 5, v5
    s_mul_i32 s24, s4, 5120
    s_add_u32 s24, s24, {24*5120}
    v_add_u32 v231, s24, v4
    s_xor_b32 s24, s4, 1
    s_mul_i32 s24, s24, 5120
    s_add_u32 s24, s24, {24*5120}
    v_add_u32 v232, s24, v4
    """)
    A("s_barrier")
    stamp(5)
    for o in reads(0, 0, False): A(o)
    A("s_cmp_eq_u32 s17, 15\ns_cselect_b32 s29, s19, 0\ns_cmp_eq_u32 s29, 1\ns_cbranch_scc1 K2_STAT")
    def weave(m, others):
        n = len(m); k = len(others); idx = 0
        for t, x in enumerate(m):
            A(x)
            want = (k * (t + 1) + n - 1) // n if k > n else min(k, t + 1)
            while idx < want: A(others[idx]); idx += 1
        while idx < k: A(others[idx]); idx += 1
    def loop(label, stats):
        nit = 10 if stats else 7
        A(f".p2align 3\n{label}:\ns_waitcnt lgkmcnt(0)\ns_add_u32 s27, s27, 1")
        adv = ["s_add_u32 s28, s28, 1\ns_cmp_eq_u32 s28, 3",
               f"s_cselect_b32 s30, {(-2*XS) & 0xffffffff:#x}, s33", f"s_cselect_b32 s31, {(-2*WSL) & 0xffffffff:#x}, s34",
               "s_cselect_b32 s28, 0, s28\nv_add_u32 v8, s30, v8", "v_add_u32 v9, s30, v9\nv_add_u32 v10, s30, v10",
               "v_add_u32 v11, s30, v11\nv_add_u32 v12, s31, v12"]
        weave(mf(0, stats), reads(1, 1, stats) + adv)
        if stats:
            A(f"s_waitcnt lgkmcnt(0)\ns_cmp_lt_u32 s27, 10\ns_cbranch_scc0 {label}_T\ns_barrier")
            weave(mf(1, stats), reads(0, 0, stats))
            A(f"s_branch {label}\n{label}_T:\ns_barrier\ns_barrier")
            for x in mf(1, stats): A(x)
        else:
            A("s_waitcnt lgkmcnt(0)\ns_barrier")
            weave(mf(1, stats), reads(0, 0, stats))
            A(f"s_cmp_lt_u32 s27, 7\ns_cbranch_scc1 {label}")
    acc = lambda w, a_: ACC + (w * 4 + a_) * 4
    T = 234
    def prod(w, a_, o):
        g, u = acc(w, a_), acc(w + 3, a_)
        return [f"v_pk_mul_f32 {vr(g,2)}, {vr(g,2)}, {vr(u,2)}", f"v_pk_mul_f32 {vr(g+2,2)}, {vr(g+2,2)}, {vr(u+2,2)}",
                f"v_cvt_pk_bf16_f32 v{o}, v{g}, v{g+1}", f"v_cvt_pk_bf16_f32 v{o+1}, v{g+2}, v{g+3}"]
    loop("K2_LOOP", False)
    A(f"v_subrev_u32 v8, {2*XS}, v8\nv_subrev_u32 v9, {2*XS}, v9\nv_subrev_u32 v10, {2*XS}, v10\nv_subrev_u32 v11, {2*XS}, v11\nv_subrev_u32 v15, {2*WSL}, v12")
    WA, WBs = [2, 5, 6], [0, 3, 1, 4]
    seq = [(0, kk) for kk in range(6)] + [(1, kk) for kk in range(6)]
    G0 = [128, 132, 136, 140, 152, 164, 168, 144]
    G1 = [172, 176, 180, 184, 188, 192, 196, 200]
    G2_ = [204, 208, 212, 216, 248, 148, 156, 160]
    GR = [G0, G1, G2_]
    def xreg(idx, a_): return GR[idx % 3][a_]
    def wreg_(idx, w): return GR[idx % 3][4 + (WBs if seq[idx][0] else WA).index(w)]
    def treads(idx):
        part, kk = seq[idx]; slot = (2, 0, 1)[kk >> 1]; ks = kk & 1
        xo = [f"ds_read_b64_tr_b16 {vr(xreg(idx,a_)+2*hh,2)}, v{8+a_} offset:{slot*XS + ks*8192 + hh*4096}" for a_ in range(4) for hh in range(2)]
        wreg, wo_ = ("v12", 0) if slot == 2 else ("v15", slot * WSL)
        wo = [f"ds_read_b128 {vr(wreg_(idx,w),4)}, {wreg} offset:{wo_ + ks*14336 + w*1024}" for w in (WBs if part else WA)]
        return wo[:1] + xo + wo[1:]
    epiA = []
    for a0 in (0, 2):
        o = T + 2 * a0
        epiA += prod(2, a0, o) + prod(2, a0 + 1, o + 2) + ["s_nop 1", f"v_permlane32_swap_b32 v{o}, v{o+2}", f"v_permlane32_swap_b32 v{o+1}, v{o+3}",
                 f"buffer_store_dwordx4 {vr(o,4)}, v220, s[12:15], s41 offen sc1\ns_add_u32 s41, s41, 110592"]
    for a_ in (0, 2):
        x, y = acc(6, a_), acc(6, a_ + 1)
        epiA += [f"v_permlane32_swap_b32 v{x+e}, v{y+e}" for e in range(4)]
    for a_ in (0, 2):
        x, y = acc(6, a_), acc(6, a_ + 1)
        epiA += [f"v_pk_mul_f32 {vr(x,2)}, {vr(x,2)}, {vr(y,2)}", f"v_pk_mul_f32 {vr(x+2,2)}, {vr(x+2,2)}, {vr(y+2,2)}",
                 f"v_cvt_pk_bf16_f32 v{T+8+a_}, v{x}, v{x+1}", f"v_cvt_pk_bf16_f32 v{T+9+a_}, v{x+2}, v{x+3}"]
    epiA += ["s_nop 1", f"v_permlane16_swap_b32 v{T+8}, v{T+10}", f"v_permlane16_swap_b32 v{T+9}, v{T+11}",
             f"buffer_store_dwordx4 {vr(T+8,4)}, v221, s[12:15], s42 offen sc1"]
    FLA = E("FLA", 11)
    for idx, (part, kk) in enumerate(seq):
        one = lambda w, a_: f"v_mfma_f32_16x16x32_bf16 {vr(acc(w,a_),4)}, {vr(wreg_(idx,w),4)}, {vr(xreg(idx,a_),4)}, {vr(acc(w,a_),4)}"
        A(f"s_waitcnt lgkmcnt({len(treads(idx + 1)) if 0 < idx < 11 else 0})")
        if idx in (2, E('B9B', 7), 11): A("s_barrier")
        if E("G2ST", 0) and idx in (0, 6, 11): stamp({0: 1, 6: 2, 11: 3}[idx])
        if idx == FLA: A("s_waitcnt vmcnt(0)\ns_mov_b64 exec, 0xffff\nbuffer_store_dword v13, v14, s[12:15], s43 offen sc1\ns_mov_b64 exec, -1\ns_nop 1")
        if E("G2ST", 0) and idx == 11: stamp(4)
        if idx < 11:
            m = [one(w, a_) for w in (WBs if part else WA) for a_ in range(4)]
            rd = treads(idx + 2) if idx < 10 else []
            if idx == 0:
                r1 = treads(1)
                rd = ["\n".join(r1[2*k: 2*k+2]) for k in range(6)] + ["s_barrier\n" + "\n".join(rd[0:2])] + ["\n".join(rd[2*k: 2*k+2]) for k in range(1, 6)]
            for k, x in enumerate(m):
                A(x)
                if k < len(rd): A(rd[k])
                if idx >= 6 and not (idx == 6 and k < 3):
                    for _ in range(E('EPR', 2)):
                        if epiA: A(epiA.pop(0))
        else:
            assert not epiA
            TB = 172
            pend = []
            for gi in range(4):
                if gi >= 3: pend += prod(0, 0, TB) + prod(1, 0, TB + 2)
                for w in WBs:
                    A(one(w, gi))
                    for _ in range(2):
                        if pend: A(pend.pop(0))
            for gi in range(4):
                if gi: pend += prod(0, gi, TB + 4 * gi) + prod(1, gi, TB + 4 * gi + 2)
                pend += [f"buffer_store_dwordx4 {vr(TB+4*gi,4)}, v4, s[12:15], s40 offen sc1\ns_add_u32 s40, s40, 55296"]
            for o in pend: A(o)
    A("K2_FIN:")
    stamp(6)
    AC2 = 16; WS2 = [56, 76, 168]; HB = 96; DH = E("DH", 6); HR = 144; SBS = E("SBS", 7)
    for i in range(0, 40, 2): A(f"v_mov_b64 {vr(AC2+i,2)}, 0")
    A("s_waitcnt vmcnt(0)\ns_mov_b64 exec, 0xffff\nbuffer_store_dword v13, v14, s[12:15], s44 offen sc1\ns_mov_b64 exec, -1")
    stamp(8)
    def wread(n):
        off = (2 * n if n < 15 else 2 * (n - 15)) * 5120
        return [f"ds_read_b128 {vr(WS2[n%3]+4*t,4)}, v{224 + off // 61440} offset:{off % 61440 + 1024*t}" for t in range(5)]
    A("s_barrier")
    stamp(10)
    hq = []
    def hload(n):
        b = HB + (n % DH) * 8
        A(f"buffer_load_dwordx4 {vr(b,4)}, v222, s[12:15], s45 offen sc1\nbuffer_load_dwordx4 {vr(b+4,4)}, v223, s[12:15], s45 offen sc1\ns_add_u32 s45, s45, 2048")
        hq.extend([n, n])
    issue = {}
    for n in range(DH, 27): issue.setdefault(max(n - DH, SBS if n >= 11 else 0), []).append(n)
    for n in range(DH): hload(n)
    for o in wread(0) + wread(1): A(o)
    for n in range(27):
        last = max(i for i, t in enumerate(hq) if t == n)
        A(f"s_waitcnt vmcnt({len(hq) - 1 - last}) lgkmcnt({5 if n < 26 else 0})")
        if n == SBS:
            A("s_barrier")
            for x in [y for y in issue[n] if y - DH < n]: hload(x)
            issue[n] = [y for y in issue[n] if y - DH >= n]
            A("buffer_load_dword v164, v228, s[12:15], s46 offen sc1"); hq.append(-1)
        if E("G2ST", 0) and n in (5, 9, 12): stamp({5: 7, 9: 9, 12: 12}[n])
        b = HB + (n % DH) * 8
        m = [f"v_mfma_f32_16x16x32_bf16 {vr(AC2+(a_*5+t)*4,4)}, {vr(WS2[n%3]+4*t,4)}, {vr(b+4*a_,4)}, {vr(AC2+(a_*5+t)*4,4)}" for a_ in (1, 0) for t in range(5)]
        oth = wread(n + 2) if n < 25 else []
        if n == 25: oth = [f"ds_read_b64_tr_b16 {vr(188+2*t,2)}, v227 offset:{2048*t}" for t in range(5)]
        if n == 26:
            for t in range(5):
                oth += [f"v_lshlrev_b32 v{HR+4*t}, 16, v{188+2*t}\nv_and_b32 v{HR+4*t+1}, 0xffff0000, v{188+2*t}",
                        f"v_lshlrev_b32 v{HR+4*t+2}, 16, v{189+2*t}\nv_and_b32 v{HR+4*t+3}, 0xffff0000, v{189+2*t}"]
        if n in (4, E('S2AT', 13), 19): oth = [None] * 3 + ["s_waitcnt lgkmcnt(0)\ns_barrier"] + oth
        for k, x in enumerate(m):
            A(x)
            if k < len(oth) and oth[k]: A(oth[k])
        for x in issue.get(n, []): hload(x)
    stamp(11)
    A("s_nop 2")
    for t in range(5): A(f"ds_write_b128 v232, {vr(AC2+(5+t)*4,4)} offset:{1024*t}")
    A("s_waitcnt lgkmcnt(0)\ns_barrier")
    R = 56
    OF = os.environ.get("OUTF", "")
    for t in range(5): A(f"ds_read_b128 {vr(R+4*t,4)}, v231 offset:{1024*t}")
    for t in range(5):
        A(f"s_waitcnt lgkmcnt({4-t})")
        for e in (0, 2): A(f"v_pk_add_f32 {vr(AC2+4*t+e,2)}, {vr(AC2+4*t+e,2)}, {vr(R+4*t+e,2)}")
        for e in (0, 2): A(f"v_pk_fma_f32 {vr(AC2+4*t+e,2)}, {vr(AC2+4*t+e,2)}, v[164:165], {vr(HR+4*t+e,2)} op_sel_hi:[1,0,1]")
        A(f"v_cvt_pk_bf16_f32 v{80+2*t}, v{AC2+4*t}, v{AC2+4*t+1}\nv_cvt_pk_bf16_f32 v{80+2*t+1}, v{AC2+4*t+2}, v{AC2+4*t+3}")
        if t in (1, 3):
            o = 80 + 2 * (t - 1)
            A(f"s_nop 1\nv_permlane16_swap_b32 v{o}, v{o+2}\nv_permlane16_swap_b32 v{o+1}, v{o+3}\nbuffer_store_dwordx4 {vr(o,4)}, v230, s[8:11], s47 offen offset:{32*(t-1)} {OF}")
    A(f"buffer_store_dwordx2 v[88:89], v229, s[8:11], s47 offen offset:128 {OF}")
    finish()
    A("K2_STAT:\ns_mov_b64 exec, 0xffff\nbuffer_store_dword v13, v14, s[12:15], s43 offen sc1\ns_mov_b64 exec, -1\ns_nop 1")
    loop("K2_SLOOP", True)
    A(f"""
    v_and_b32 v5, 3, v1
    v_bfe_u32 v6, v1, 2, 2
    v_lshrrev_b32 v7, 4, v1
    v_cmp_eq_u32 s[20:21], 1, v5
    v_cmp_eq_u32 s[22:23], 2, v5
    v_cmp_eq_u32 s[24:25], 3, v5
    v_cmp_eq_u32 s[26:27], v6, v7
    v_and_b32 v5, 15, v1
    v_lshlrev_b32 v5, 2, v5
    s_lshl_b32 s28, s16, 9
    s_lshl_b32 s29, s18, 8
    s_add_u32 s28, s28, s29
    s_add_u32 s28, s28, {WS_R2:#x}
    """)
    for a_ in range(4):
        g = ACC + 4 * a_; s_ = ACC + 16 + 4 * a_
        A(f"""
        v_cndmask_b32 v{g}, v{g}, v{g+1}, s[20:21]
        v_cndmask_b32 v{g}, v{g}, v{g+2}, s[22:23]
        v_cndmask_b32 v{g}, v{g}, v{g+3}, s[24:25]
        v_mul_f32 v{s_}, 0x3acccccd, v{s_}
        v_mul_f32 v{g}, 0x3acccccd, v{g}
        v_fma_f32 v{g}, -v{s_}, v{s_}, v{g}
        v_max_f32 v{g}, 0, v{g}
        v_cvt_pk_bf16_f32 v{g}, v{g}, v{g}
        v_lshlrev_b32 v{g}, 16, v{g}
        v_add_f32 v{g}, 0x3727c5ac, v{g}
        v_cvt_pk_bf16_f32 v{g}, v{g}, v{g}
        v_lshlrev_b32 v{g}, 16, v{g}
        v_sqrt_f32 v{g}, v{g}
        s_nop 0
        v_cvt_pk_bf16_f32 v{g}, v{g}, v{g}
        v_lshlrev_b32 v{g}, 16, v{g}
        v_mul_f32 v{g}, v{g}, v{g}
        v_rcp_f32 v{g}, v{g}
        """)
    A("s_mov_b64 exec, s[26:27]")
    for a_ in range(4): A(f"buffer_store_dword v{ACC+4*a_}, v5, s[12:15], s28 offen offset:{64*a_} sc1")
    A("s_mov_b64 exec, -1\ns_branch K2_FIN\nK_END:\ns_endpgm")

def main(out):
    gen()
    hdr = open("sequential_preLN__ssm_conv_s4__glu_gated_bilinear__prompt.s.ref").read().split("; Override launch")[0]
    s = hdr + f"; @launch grid=(256,1,1) block=(512,1,1) lds={LDS_SIZE}\n"
    s += f'.amdgcn_target "amdgcn-amd-amdhsa--gfx950"\n.text\n.globl {KNAME}\n.p2align 8\n.type {KNAME},@function\n{KNAME}:\n'
    s += A.text().replace("CNTADDR", str(K1_CNT)).replace("XGN", "0" if E("NOXG", 0) else "5").replace("XGLIM", "0" if E("NOXG", 0) else "0x40000") + "CODE_END:\n"
    s += f""".section .rodata,"a"
.p2align 6
.amdhsa_kernel {KNAME}
  .amdhsa_next_free_vgpr 252
  .amdhsa_next_free_sgpr 96
  .amdhsa_accum_offset 252
  .amdhsa_group_segment_fixed_size 0
  .amdhsa_kernarg_size 128
  .amdhsa_user_sgpr_count 2
  .amdhsa_user_sgpr_kernarg_segment_ptr 1
  .amdhsa_system_sgpr_workgroup_id_x 1
.end_amdhsa_kernel
"""
    open(out, "w").write(s)
if __name__ == "__main__":
    main(sys.argv[1] if len(sys.argv) > 1 else "f.s")
```

```python
import sys, os
E = lambda k, d: int(os.environ.get(k, d))
KNAME = "sequential_preLN__ssm_conv_s4__glu_gated_bilinear__prompt_kernel"
WS_ST    = 0x1000
WS_R2    = 0x8000
WS_HT    = 0x10000
WS_W1P   = 0x290000
WS_WDP   = 0x6F0000
WS_HF    = int(os.environ.get('HFOFF', '0x910000'), 0)
WS_PROF  = 0xFE0000
WS_XG    = 0x1100000
WS_FH    = 0x1840000
WS_FH2   = 0x1850000
WS_FP    = 0x1860000
WS_HR1   = 0x1870000
WS_HR2   = 0x1878000
WS_FE    = 0x1880000
WS_SIZE  = 0x1900000
PROF = E("PROF", 0)
NST = 14
PROF_WAVES = 8
PROF_RANGES = [(0, [(0, 160, 0, 4, NST), (0, 160, 4, 8, NST), (160, 214, 0, 4, NST), (160, 214, 4, 8, NST), (214, 250, 0, 4, NST), (214, 250, 4, 8, NST)])]

class Asm:
    def __init__(self): self.l = []
    def __call__(self, s):
        for x in s.split("\n"):
            x = x.strip()
            if x: self.l.append(("" if x.endswith(":") else "    ") + x)
    def text(self): return "\n".join(self.l) + "\n"
def vr(a, n=1): return f"v{a}" if n == 1 else f"v[{a}:{a+n-1}]"
def sr(a, n=1): return f"s{a}" if n == 1 else f"s[{a}:{a+n-1}]"
A = Asm()
DIAG = os.environ.get("DIAG")
_fin = [0]
def stamp(i, wait=True):
    if PROF or (DIAG and str(i) in DIAG.split(",")[:2]):
        A(f"{'s_memrealtime' if (DIAG or E('RT', 0)) else 's_memtime'} s[{64+2*i}:{65+2*i}]")
        if wait: A("s_waitcnt lgkmcnt(0)")
def finish():
    if DIAG:
        a, b, mult, wg, wv = map(int, DIAG.split(","))
        _fin[0] += 1; n = _fin[0]
        A(f"""
        s_waitcnt vmcnt(0)
        s_memrealtime s[{64+2*(NST-1)}:{65+2*(NST-1)}]
        s_cmp_lg_u32 s2, {wg}
        s_cbranch_scc1 DG_E{n}
        s_cmp_lg_u32 s60, {wv}
        s_cbranch_scc1 DG_E{n}
        s_waitcnt lgkmcnt(0)
        s_sub_u32 s20, s{64+2*b}, s{64+2*a}
        s_min_u32 s20, s20, 5000
        s_mul_i32 s20, s20, {mult}
        s_add_u32 s20, s20, s{64+2*(NST-1)}
        DG_L{n}:
        s_memrealtime s[22:23]
        s_waitcnt lgkmcnt(0)
        s_sub_u32 s21, s20, s22
        s_cmp_gt_i32 s21, 0
        s_cbranch_scc1 DG_L{n}
        DG_E{n}:
        """)
    if PROF:
        A("s_waitcnt vmcnt(0)")
        stamp(NST - 1)
        A(f"s_lshl_b32 s62, s2, 3\ns_add_u32 s62, s62, s60\ns_lshl_b32 s62, s62, 6\ns_add_u32 s62, s62, {WS_PROF:#x}\nv_mov_b32 v1, 0")
        for i in range(NST):
            A(f"v_mov_b32 v0, s{64+2*i}\nbuffer_store_dword v0, v1, s[12:15], s62 offen offset:{4*i}")
    A("s_endpgm")
def srd(d, base, size):
    A(f"s_mov_b32 s{d}, s{base}\ns_mov_b32 s{d+1}, s{base+1}\ns_mov_b32 s{d+2}, {size:#x}\ns_mov_b32 s{d+3}, 0x00020000")
def cmul(d, a, b):
    A(f"v_pk_mul_f32 {vr(d,2)}, {vr(a,2)}, {vr(b,2)} op_sel_hi:[1,0]")
    A(f"v_pk_fma_f32 {vr(d,2)}, {vr(a,2)}, {vr(b,2)}, {vr(d,2)} op_sel:[1,1,0] op_sel_hi:[0,1,1] neg_lo:[1,0,0]")
def poll(lbl, va, vt, soff="0", slp=2):
    A(f"""
    s_mov_b32 s52, 0
    {lbl}:
    buffer_load_dword {vt}, {va}, s[12:15], {soff} offen sc1
    s_add_u32 s52, s52, 1
    s_waitcnt vmcnt(0)
    v_cmp_ne_u32 vcc, s54, {vt}
    s_cmp_lt_u32 s52, 0x40000
    s_cbranch_vccz {lbl}_D
    s_mov_b64 exec, vcc
    s_sleep {slp}
    s_cbranch_scc1 {lbl}
    {lbl}_D:
    s_mov_b64 exec, -1
    """)

def q_of(c, tau):
    base = (c >> 1) * 7
    if c == 15: return {0: (base + 4, 0), 1: (base + 4, 1), 2: (base + 3, 1)}[tau]
    o = base + (4 if (c & 1) else 0)
    if tau == 3: return (base + 3, c & 1)
    return {0: (o, 0), 1: (o, 1), 2: (o + 1, 0), 6: (o + 1, 1), 4: (o + 2, 0), 5: (o + 2, 1)}[tau]
Q_TILES = {}
for phi in range(108):
    q, hf = q_of(phi // 7, phi % 7)
    Q_TILES.setdefault(q, [None, None])[hf] = phi

def newq(q):
    cp, r = divmod(q, 7)
    return 3 * cp + (r >> 1) if r & 1 else 23 + 4 * cp + (r >> 1)
assert sorted(newq(q) for q in range(54)) == list(range(54))
TAB_STRIDE = 272
TAB_HI = 32 * TAB_STRIDE
K1_TAB = 2 * TAB_HI
K1_CH = K1_TAB
K1_TB = 4 * K1_TAB
KC1 = 2240
K1_BASE = 4608
K1_UREV = 8 * K1_TAB
K1_SCR = K1_UREV + 4 * 4608
K1_R = K1_SCR + 512
K1_CNT = K1_R + 4 * 1280
K1_SCR2 = TAB_HI + 29 * TAB_STRIDE + 48
LDS_SIZE = 163840
assert K1_CNT + 512 == LDS_SIZE
TAG_INC = 0x9E3779B9
HI_ROWS = [(0, 4), (1, 5), (2, 6), (3, 7), (4, 8), (256, 260), (258, 262), (260, 264),
           (512, 768), (516, 772), (520, 776), (1032, 1288), (1544, 1800)]
def hi_rows_of(e):
    return [(r & 3) + 8 * (r >> 2) + 4 * h for r, p in enumerate(HI_ROWS) for h, ee in enumerate(p) if ee == e]
XS = 16384; WSL = 28672; WB = 3 * XS; G1_END = WB + 3 * WSL; RES_LDS = 153600
FSH = 6

def map2():
    A("""
    s_and_b32 s3, s2, 7
    s_lshr_b32 s5, s2, 3
    s_lshr_b32 s36, s3, 1
    s_lshl_b32 s36, s36, 3
    s_and_b32 s37, s5, 7
    s_add_u32 s36, s36, s37
    s_and_b32 s16, s3, 1
    s_lshl_b32 s38, s16, 2
    s_lshl_b32 s16, s16, 3
    s_add_u32 s16, s16, s37
    s_lshr_b32 s18, s5, 3
    s_add_u32 s37, s38, s18
    s_lshr_b32 s17, s3, 1
    s_lshl_b32 s17, s17, 2
    s_add_u32 s17, s17, s18
    s_lshr_b32 s18, s4, 1
    s_and_b32 s19, s4, 1
    v_lshlrev_b32 v4, 4, v1
    """)


def rowaddr(t, va, vb):
    A(f"""
    s_lshr_b32 s42, s{t}, 8
    s_lshl_b32 s42, s42, 9
    s_bfe_u32 s43, s{t}, 0x40002
    s_lshl_b32 s43, s43, 5
    s_add_u32 s42, s42, s43
    s_bfe_u32 s43, s{t}, 0x20006
    s_lshl_b32 s43, s43, 1
    s_add_u32 s42, s42, s43
    s_and_b32 s43, s{t}, 3
    s_lshl_b32 s43, s43, 3
    s_add_u32 s42, s42, s43
    v_lshrrev_b32 v7, 5, v1
    v_add_u32 v7, s42, v7
    v_mul_u32_u24 v7, 1280, v7
    v_and_b32 {vb}, 31, v1
    v_lshl_add_u32 {va}, {vb}, 4, v7
    v_lshl_add_u32 {vb}, {vb}, 3, v7
    """)
def rowload(b, va, vb):
    A(f"global_load_dwordx4 {vr(b,4)}, {va}, s[16:17]\nglobal_load_dwordx4 {vr(b+4,4)}, {va}, s[16:17] offset:512\nglobal_load_dwordx2 {vr(b+8,2)}, {vb}, s[16:17] offset:1024")
def rowstats(soff):
    A("v_mov_b32 v60, 0\nv_mov_b32 v61, 0\nv_mov_b32 v62, 0x3f803f80\nv_lshrrev_b32 v63, 5, v1\nv_lshlrev_b32 v63, 3, v63")
    for r in range(48, 58): A(f"v_dot2c_f32_bf16 v60, v62, v{r}\nv_dot2c_f32_bf16 v61, v{r}, v{r}")
    A("s_nop 2")
    for rot in (8, 4, 2, 1):
        A(f"v_add_f32_dpp v60, v60, v60 row_ror:{rot} row_mask:0xf bank_mask:0xf\nv_add_f32_dpp v61, v61, v61 row_ror:{rot} row_mask:0xf bank_mask:0xf\ns_nop 0")
    A(f"""
    v_mov_b32 v58, v60
    v_mov_b32 v59, v61
    s_nop 1
    v_permlane16_swap_b32 v60, v58
    v_permlane16_swap_b32 v61, v59
    s_nop 0
    v_pk_add_f32 v[60:61], v[60:61], v[58:59]
    v_mul_f32 v60, 0x3acccccd, v60
    v_mul_f32 v61, 0x3acccccd, v61
    v_fma_f32 v61, -v60, v60, v61
    v_max_f32 v61, 0, v61
    v_cvt_pk_bf16_f32 v61, v61, v61
    v_lshlrev_b32 v61, 16, v61
    v_add_f32 v61, 0x3727c5ac, v61
    v_cvt_pk_bf16_f32 v61, v61, v61
    v_lshlrev_b32 v61, 16, v61
    v_sqrt_f32 v61, v61
    s_nop 0
    v_cvt_pk_bf16_f32 v60, v60, v61
    v_mov_b32 v61, s53
    buffer_store_dwordx2 v[60:61], v63, s[12:15], {soff} offen sc1
    """)
NWR = E("NWR", 1)
NEK = 2 * (2 + NWR)
ELAG = E("ELAG", 5)
NCW = E("NCW", 2)
NT0 = 160 * NCW
NT1 = NT0 + 216
WSOFF = int(os.environ.get("WSOFF", "0"), 0)
WSOFF_CODE = f"s_add_u32 s6, s6, {WSOFF:#x}\ns_addc_u32 s7, s7, 0\ns_cmp_eq_u32 s61, 0" if WSOFF else ""
def gen():
    G = 16; P = 10
    A("s_cmp_ge_u32 s2, 256\ns_cbranch_scc1 K_END")
    stamp(0, False)
    A(f"""
    s_load_dwordx16 s[16:31], s[0:1], 0
    s_load_dwordx2 s[32:33], s[0:1], 64
    s_load_dwordx4 s[36:39], s[0:1], 80
    s_load_dwordx4 s[92:95], s[0:1], 96
    s_load_dwordx2 s[6:7], s[0:1], 120
    v_lshrrev_b32 v2, 6, v0
    v_and_b32 v1, 63, v0
    v_readfirstlane_b32 s60, v2
    v_and_b32 v0, 255, v0
    s_getpc_b64 s[62:63]
    K1_PC:
    s_lshr_b32 s40, s2, 3
    s_and_b32 s40, s40, 3
    s_lshl_b32 s40, s40, 13
    v_lshl_add_u32 v8, v1, 7, s40
    v_min_u32 v8, CODE_END - K1_PC - 4, v8
    s_cmp_lg_u32 s60, 3
    s_cbranch_scc1 K1_NOPF
    s_cmp_lt_u32 s2, {E('PFMIN', 160)}
    s_cbranch_scc1 K1_NOPF2
    global_load_dword v9, v8, s[62:63]
    K1_NOPF2:
    v_mov_b32 v8, {K1_CNT}
    v_mov_b64 v[10:11], 0
    ds_write_b64 v8, v[10:11]
    ds_write_b64 v8, v[10:11] offset:8
    K1_NOPF:
    s_and_b32 s4, s60, 3
    s_lshr_b32 s61, s60, 2
    s_and_b32 s40, s2, 7
    s_lshr_b32 s41, s2, 3
    s_mul_i32 s57, s40, 20
    s_add_u32 s57, s57, s41
    s_lshl_b32 s5, s57, 2
    s_add_u32 s5, s5, s4
    s_lshl_b32 s43, s5, 8
    v_lshl_add_u32 v6, v1, 2, s43
    s_lshl_b32 s3, s57, 3
    s_mul_i32 s55, s4, {K1_CH}
    v_mul_u32_u24 v238, 10240, v0
    v_add_u32 v238, s3, v238
    s_mul_i32 s46, s41, 103
    v_lshrrev_b32 v2, 1, v0
    v_min_u32 v2, 102, v2
    v_add_u32 v2, s46, v2
    v_min_u32 v2, 2047, v2
    v_mul_u32_u24 v2, 1280, v2
    v_and_b32 v3, 1, v0
    v_mul_u32_u24 v3, 156, v3
    s_mul_i32 s46, s40, 160
    v_add3_u32 v2, v2, v3, s46
    s_cmp_ge_u32 s2, 160
    s_cbranch_scc1 K1_PREP
    s_mul_i32 s59, s60, 160
    s_add_u32 s59, s59, s2
    """)
    rowaddr(59, "v4", "v5")
    A(f"""
    s_cmp_lt_u32 s60, {NCW}
    s_waitcnt lgkmcnt(0)
    s_cbranch_scc0 K1_NOS
    """)
    rowload(48, "v4", "v5")
    A("""
    K1_NOS:
    s_cmp_eq_u32 s61, 0
    s_cbranch_scc1 K1_NOT
    global_load_dword v242, v2, s[16:17]
    K1_NOT:
    """)
    for i in range(6): A(f"global_load_dword v{P+i}, v6, {sr(18+2*i,2)}")
    A("""
    s_load_dword s54, s[6:7], 0
    s_load_dwordx2 s[42:43], s[30:31], s3
    s_load_dwordx2 s[44:45], s[32:33], s3
    s_cbranch_scc1 K1_C
    """)
    XR = 32
    srd(12, 6, WS_SIZE)
    A(f"""
    v_lshlrev_b32 v235, 4, v0
    v_sub_u32 v235, {K1_UREV + 4080}, v235
    v_lshlrev_b32 v236, 5, v0
    v_add_u32 v236, {K1_BASE}, v236
    v_add_u32 v237, {2*K1_CH}, v236
    s_lshl_b32 s58, s4, 12
    s_add_u32 s58, s58, {WS_ST:#x}
    v_lshlrev_b32 v5, 4, v1
    v_add_u32 v239, 5120, v238
    s_waitcnt vmcnt(0)
    """)
    def gather(k): A(f"global_load_dwordx2 {vr(XR+2*k,2)}, v{238 + k//4}, s[16:17] offset:{(k%4)*1280}")
    NG0 = E("NG0", 2)
    for k in range(NG0): gather(k)
    A("s_branch K1_C0")
    A("K1_C:")
    A(f"""
    s_mul_i32 s56, s4, 4608
    s_add_u32 s56, s56, {K1_UREV}
    s_mul_i32 s46, s4, 1280
    s_add_u32 s46, s46, {K1_R}
    s_mov_b32 m0, s46
    v_mov_b64 v[240:241], 0
    v_and_b32 v46, 31, v1
    v_lshrrev_b32 v47, 5, v1
    v_mul_u32_u24 v228, {TAB_STRIDE}, v46
    v_lshl_add_u32 v228, v47, 4, v228
    v_add_u32 v228, s55, v228
    v_lshlrev_b32 v2, 4, v46
    v_add_u32 v2, s55, v2
    v_lshl_add_u32 v229, v47, 3, v2
    v_lshl_add_u32 v230, v47, 9, v2
    v_and_b32 v2, 1, v46
    v_mul_u32_u24 v2, 640, v2
    v_and_b32 v3, 30, v46
    v_lshl_add_u32 v3, v47, 5, v3
    v_sub_u32 v2, v2, v3
    v_add_u32 v231, s46, v2
    v_lshl_add_u32 v2, v1, 3, s56
    ds_write_b64 v2, v[240:241] offset:4096
    """)
    for k in range(5): A(f"ds_write_addtid_b32 v240 offset:{256*k}")
    srd(12, 6, WS_SIZE)
    A(f"""
    v_and_b32 v2, 15, v1
    v_lshrrev_b32 v3, 4, v1
    v_add_u32 v4, 1, v2
    v_and_b32 v5, 1, v4
    v_mul_u32_u24 v5, {KC1}, v5
    v_and_b32 v4, 0xfffe, v4
    v_lshl_add_u32 v4, v4, 1, v5
    v_lshl_add_u32 v4, v3, 4, v4
    v_add_u32 v232, s55, v4
    v_add_u32 v233, 1024, v232
    v_add_u32 v239, 2048, v232
    v_lshlrev_b32 v4, 5, v2
    v_lshlrev_b32 v5, 4, v3
    v_sub_u32 v234, v5, v4
    v_add_u32 v234, {4064 - 3584}, v234
    v_add_u32 v234, s56, v234
    v_lshl_add_u32 v235, v2, 6, v5
    v_add_u32 v235, s55, v235
    v_sub_u32 v6, 15, v2
    v_lshl_add_u32 v6, v3, 2, v6
    v_and_b32 v7, 1, v6
    v_mul_u32_u24 v7, 320, v7
    v_and_b32 v6, 0xfffe, v6
    v_lshl_add_u32 v6, v6, 1, v7
    v_add3_u32 v236, v6, 4, s46
    v_lshrrev_b32 v5, 1, v3
    v_lshl_add_u32 v4, v5, 4, v4
    v_and_b32 v5, 1, v3
    v_lshl_add_u32 v237, v5, 9, v4
    v_cmp_eq_u32 s[36:37], 7, v1
    v_cmp_gt_u32 s[38:39], 2, v1
    v_cmp_eq_u32 s[48:49], 2, v1
    v_cmp_eq_u32 s[50:51], 0, v1
    v_lshl_add_u32 v4, v3, 3, v2
    s_mov_b32 s46, 0x10001
    """)
    for ty, (c, wdt) in enumerate([(-20, 7), (-19, 9)]):
        A(f"v_add_u32 v5, {c + 20}, v4\nv_min_u32 v5, 31, v5\nv_mov_b32 v6, {((1 << wdt) - 1) << 20:#x}\nv_lshrrev_b32 v6, v5, v6\nv_and_b32 v6, 0xff, v6\nv_lshl_or_b32 v6, v6, 15, v6")
        for j in range(4):
            A(f"v_lshrrev_b32 v7, {2*j}, v6\nv_and_b32 v7, s46, v7\nv_mul_u32_u24 v{244+4*ty+j}, 0x3f80, v7")
    A(f"""
    s_cmp_lt_u32 s60, {NCW}
    s_cbranch_scc0 K1_CW
    s_lshl_b32 s59, s59, 4
    s_add_u32 s59, s59, {WS_ST:#x}
    s_waitcnt vmcnt(6) lgkmcnt(0)
    s_add_u32 s53, s54, {TAG_INC:#x}
    """)
    rowstats("s59")
    A("s_waitcnt vmcnt(1)\ns_branch K1_C0\nK1_CW:\ns_waitcnt vmcnt(0)")
    A("K1_C0:")
    ACC = 96; DT = 9
    Z1, Z8, Z16, Z256 = 48, 50, 52, 54
    BB, CC = 56, 58
    T0 = 60
    H = {e: 72 + 2 * e for e in range(9)}
    CV = [90, 91, 92, 93, 94, 95]; cvi = [0]
    def put(src, rows, hi):
        t = CV[cvi[0] % len(CV)]; cvi[0] += 1
        A(f"v_cvt_pk_bf16_f32 v{t}, v{src}, {'-' if hi else ''}v{src+1}")
        for r in rows: A(f"ds_write_addtid_b32 v{t} offset:{r*TAB_STRIDE + (TAB_HI if hi else 0)}")
    SPLIT = E("SPLIT", 0)
    A(f"""
    s_lshl_b32 s62, s4, 4
    s_mov_b32 s59, s61
    s_waitcnt lgkmcnt(0)
    s_add_u32 s54, s54, {TAG_INC:#x}
    """)
    stamp(1)
    A(f"""
    s_lshr_b64 s[42:43], s[42:43], s62
    s_lshl_b32 s42, s42, 16
    v_mov_b32 v{DT}, s42
    v_mul_f32 v{DT}, 0x3fb8aa3b, v{DT}
    v_exp_f32 v{DT}, v{DT}
    s_nop 0
    v_cvt_pk_bf16_f32 v{DT}, v{DT}, v{DT}
    v_lshlrev_b32 v{DT}, 16, v{DT}
    K1_PASS:
    s_mul_i32 s56, s59, {K1_TB}
    s_add_u32 s56, s56, s55
    s_mov_b32 m0, s56
    s_lshl_b32 s47, s59, 4
    v_lshrrev_b32 v{T0}, s47, v{P}
    v_lshrrev_b32 v{T0+1}, s47, v{P+1}
    v_lshlrev_b32 v{T0}, 16, v{T0}
    v_lshlrev_b32 v{T0+1}, 16, v{T0+1}
    v_mul_f32 v{T0}, v{T0}, v{DT}
    v_mul_f32 v{T0+1}, v{T0+1}, v{DT}
    v_mul_f32 v{T0+8}, 0x3fb8aa3b, v{T0}
    v_mul_f32 v{T0+9}, 0.15915494, v{T0+1}
    s_cmp_eq_u32 s61, 0
    """)
    if SPLIT: A("s_cbranch_scc0 K1_HI")
    A(f"""
    v_mul_f32 v{T0+2}, 0x41000000, v{T0+8}
    v_mul_f32 v{T0+3}, 0x41000000, v{T0+9}
    v_fract_f32 v{T0+3}, v{T0+3}
    v_exp_f32 v{T0+2}, v{T0+2}
    v_cos_f32 v{Z8}, v{T0+3}
    v_sin_f32 v{Z8+1}, v{T0+3}
    v_mov_b32 v95, 0x3f80
    .p2align 3
    ds_write_addtid_b32 v95 offset:0
    v_pk_mul_f32 {vr(Z8,2)}, {vr(Z8,2)}, {vr(T0+2,2)} op_sel_hi:[1,0]
    """)
    cmul(Z16, Z8, Z8)
    put(Z8, [1], False); put(Z16, [2], False)
    Lreg = {1: Z8, 2: Z16}
    gk = [NG0]
    def maybe_gather():
        if gk[0] < min(8, NG0 + E("NG1", 4)):
            A(f"s_cbranch_scc1 K1_NG{gk[0]}")
            gather(gk[0])
            A(f"K1_NG{gk[0]}:\ns_nop 0")
            gk[0] += 1
    for l in range(3, 32):
        d = T0 + 2 * (l % 4); Lreg[l] = d
        cmul(d, Lreg[l-2], Z16); put(d, [l], False)
        if l in (12, 26) and not SPLIT: maybe_gather()
    if SPLIT: A("s_cmp_eq_u32 s59, 0\ns_cbranch_scc0 K1_PEND\nK1_HI:")
    A(f"""
    v_lshrrev_b32 v{BB}, s47, v{P+2}
    v_lshrrev_b32 v{BB+1}, s47, v{P+3}
    v_lshrrev_b32 v{CC}, s47, v{P+4}
    v_lshrrev_b32 v{CC+1}, s47, v{P+5}
    v_lshlrev_b32 v{BB}, 16, v{BB}
    v_lshlrev_b32 v{BB+1}, 16, v{BB+1}
    v_lshlrev_b32 v{CC}, 16, v{CC}
    v_lshlrev_b32 v{CC+1}, 16, v{CC+1}
    v_mul_f32 v{T0+4}, 0x43800000, v{T0+8}
    v_mul_f32 v{T0+5}, 0x43800000, v{T0+9}
    v_fract_f32 v{T0+9}, v{T0+9}
    v_fract_f32 v{T0+5}, v{T0+5}
    v_exp_f32 v{T0+8}, v{T0+8}
    v_exp_f32 v{T0+4}, v{T0+4}
    v_cos_f32 v{Z1}, v{T0+9}
    v_sin_f32 v{Z1+1}, v{T0+9}
    v_cos_f32 v{Z256}, v{T0+5}
    v_sin_f32 v{Z256+1}, v{T0+5}
    v_mul_f32 v{BB}, v{BB}, v{DT}
    v_mul_f32 v{BB+1}, v{BB+1}, v{DT}
    .p2align 3
    """)
    cmul(H[0], CC, BB)
    A(f"v_pk_mul_f32 {vr(Z1,2)}, {vr(Z1,2)}, {vr(T0+8,2)} op_sel_hi:[1,0]")
    A(f"v_pk_mul_f32 {vr(Z256,2)}, {vr(Z256,2)}, {vr(T0+4,2)} op_sel_hi:[1,0]")
    put(H[0], hi_rows_of(0), True)
    for e in range(1, 9):
        cmul(H[e], H[e-1], Z1); put(H[e], hi_rows_of(e), True)
        if e == 3 or (SPLIT and e == 8): maybe_gather()
    cur = {e: H[e] for e in (0, 2, 4, 6, 8)}
    spare = [H[1], H[3], H[5], H[7], T0, T0 + 2]
    for blk, es in [(1, (0, 2, 4, 6, 8)), (2, (0, 4, 8)), (3, (0, 4, 8)), (4, (8,)), (5, (8,)), (6, (8,)), (7, (8,))]:
        for e in es:
            d = spare.pop(0); cmul(d, cur[e], Z256); put(d, hi_rows_of(256 * blk + e), True)
            spare.append(cur[e]); cur[e] = d
        if blk == 2 or (SPLIT and blk == 7): maybe_gather()
    if SPLIT: A("s_mov_b32 s59, 1\ns_cbranch_scc1 K1_PASS")
    else: A("s_cbranch_scc1 K1_PEND")
    stamp(12)
    A("s_mov_b32 s52, 0\ns_waitcnt lgkmcnt(0)\ns_barrier")
    for k in range(gk[0], 8): gather(k)
    A("K1_POLL:")
    for k in range(4): A(f"buffer_load_dwordx4 {vr(G+4*k,4)}, v5, s[12:15], s58 offen offset:{1024*k} sc1")
    A("s_add_u32 s52, s52, 1\ns_waitcnt vmcnt(0)")
    for k in range(8): A(f"v_xor_b32 v{48+k}, s54, v{G+2*k+1}")
    A("""
    v_or3_b32 v48, v48, v49, v50
    v_or3_b32 v51, v51, v52, v53
    v_or3_b32 v48, v48, v54, v55
    v_or_b32 v48, v48, v51
    v_cmp_ne_u32 vcc, 0, v48
    s_cmp_lt_u32 s52, 0x40000
    s_cbranch_vccz K1_GOT
    s_sleep 4
    s_cbranch_scc1 K1_POLL
    K1_GOT:
    """)
    stamp(10)
    if PROF: A("s_add_u32 s86, s64, s52")
    X = 48; RS, NB = 80, 88; U = 112; UP = 96
    for r in range(8):
        A(f"v_and_b32 v{RS+r}, 0xffff0000, v{G+2*r}\nv_rcp_f32 v{RS+r}, v{RS+r}\nv_lshlrev_b32 v{NB+r}, 16, v{G+2*r}")
    for r in range(0, 8, 2):
        A(f"v_pk_mul_f32 {vr(NB+r,2)}, {vr(NB+r,2)}, {vr(RS+r,2)} neg_lo:[1,0] neg_hi:[1,0]")
    for c in range(4):
        for r in range(8):
            src = XR + 2 * r + (c >> 1)
            A(f"v_and_b32 v{X+8*c+r}, 0xffff0000, v{src}" if c & 1 else f"v_lshlrev_b32 v{X+8*c+r}, 16, v{src}")
        for r in range(0, 8, 2): A(f"v_pk_fma_f32 {vr(U+8*c+r,2)}, {vr(X+8*c+r,2)}, {vr(RS+r,2)}, {vr(NB+r,2)}")
        for k in range(4): A(f"v_cvt_pk_bf16_f32 v{UP+4*c+k}, v{U+8*c+7-2*k}, v{U+8*c+6-2*k}")
        A(f"ds_write_b128 v235, {vr(UP+4*c,4)} offset:{c * 4608}")
    A("s_waitcnt lgkmcnt(0)\ns_barrier")
    stamp(2)
    for c in range(4):
        ba = "v236" if c < 2 else "v237"; co = (c & 1) * K1_CH
        A(f"ds_write_b128 {ba}, {vr(X+8*c,4)} offset:{co}\nds_write_b128 {ba}, {vr(X+8*c+4,4)} offset:{co+16}")
    A(f"""
    s_cmp_lg_u32 s4, 0
    s_cbranch_scc1 K1_NOBUMP
    v_and_b32 v6, 31, v1
    v_lshlrev_b32 v6, 2, v6
    v_mov_b32 v7, s54
    s_lshl_b32 s52, s2, 7
    s_add_u32 s52, s52, {WS_HR1:#x}
    buffer_store_dword v7, v6, s[12:15], s52 offen sc1
    K1_NOBUMP:
    s_waitcnt lgkmcnt(0)
    s_barrier
    s_branch K2_LOADER
    """)
    A("K1_PEND:\ns_mov_b32 m0, s55\ns_waitcnt lgkmcnt(0)")
    FA, FB = 112, 144
    def kmf(tb, first):
        for ks in range(8):
            A(f"ds_read_b128 {vr(FA+4*ks,4)}, v228 offset:{tb + TAB_HI + ks*32}\nds_read_b128 {vr(FB+4*ks,4)}, v228 offset:{tb + ks*32}")
        for ks in range(8):
            A(f"s_waitcnt lgkmcnt({14-2*ks})")
            A(f"v_mfma_f32_32x32x16_bf16 {vr(ACC,16)}, {vr(FA+4*ks,4)}, {vr(FB+4*ks,4)}, {'0' if first and ks == 0 else vr(ACC,16)}")
    kmf(0, True)
    for i in range(0, 32, 2): A(f"v_mov_b64 {vr(16+i,2)}, 0")
    stamp(12)
    A("s_barrier")
    A(f"v_add_u32 v228, {K1_TB}, v228")
    kmf(0, False)
    a = lambda r: f"v{ACC+r}"
    O = 112
    def pk(d, x, y): A(f"v_cvt_pk_bf16_f32 v{d}, {x}, {y}")
    A(f"""
    s_mov_b64 exec, 0xff
    ds_write_addtid_b32 v240
    s_mov_b64 exec, -1
    s_lshr_b64 s[44:45], s[44:45], s62
    s_lshl_b32 s44, s44, 16
    v_mov_b32 v2, s44
    v_cndmask_b32 v2, 0, v2, s[50:51]
    s_nop 4
    v_add_f32 {a(0)}, {a(0)}, v2
    v_readlane_b32 s52, {a(10)}, 63
    v_readfirstlane_b32 s53, {a(0)}
    """)
    pk(O+0, a(0), a(1)); pk(O+1, a(2), a(3)); pk(O+2, a(1), a(2)); pk(O+3, a(3), a(4))
    A(f"ds_write_b64 v229, {vr(O,2)} offset:32\nds_write_b64 v229, {vr(O+2,2)} offset:{KC1+32}")
    p, q, r_ = a(5), a(6), a(7)
    pk(O+4, p, p); pk(O+5, q, r_); pk(O+6, p, q); pk(O+7, r_, r_)
    A(f"ds_write_b64 v229, {vr(O+4,2)} offset:{32+512}\nds_write_b64 v229, {vr(O+6,2)} offset:{KC1+32+512}")
    p, q, r_ = a(8), a(9), a(10)
    pk(O+8, p, p); pk(O+9, p, q); pk(O+10, q, q); pk(O+11, r_, r_)
    pk(O+12, p, p); pk(O+13, q, q); pk(O+14, q, r_); pk(O+15, r_, r_)
    A(f"ds_write_b128 v230, {vr(O+8,4)} offset:{32+1024}\nds_write_b128 v230, {vr(O+12,4)} offset:{KC1+32+1024}")
    A(f"""
    v_cvt_pk_bf16_f32 v2, 0, s53
    v_cvt_pk_bf16_f32 v3, s52, s52
    v_cvt_pk_bf16_f32 v4, s52, 0
    v_cndmask_b32 v2, 0, v2, s[36:37]
    v_cndmask_b32 v3, 0, v3, s[38:39]
    v_cndmask_b32 v4, v3, v4, s[48:49]
    s_mov_b64 exec, 0xff
    ds_write_addtid_b32 v2 offset:{KC1}
    s_mov_b64 exec, 0xffff
    ds_write_addtid_b32 v4 offset:{32+2048}
    ds_write_addtid_b32 v3 offset:{KC1+32+2048}
    s_mov_b64 exec, -1
    """)
    pk(5, a(11), a(12))
    D = 16; SET = [48, 96]
    def loads(st, extra, which="AB"):
        ops = []; Ab, Bb = SET[st], SET[st] + 16
        for k in range(8):
            o = (k & 1) * 128 + extra // 4
            if "B" in which: ops.append(f"ds_read_b128 {vr(Bb+4*k,4)}, v234 offset:{512*(7-k) + extra}")
            if "A" in which and k < 4:
                ops.append(f"ds_read2_b32 {vr(Ab+4*k,2)}, v{232 + k//2} offset0:{o} offset1:{o+1}")
                ops.append(f"ds_read2_b32 {vr(Ab+4*k+2,2)}, v{232 + k//2} offset0:{o+2} offset1:{o+3}")
        return ops
    def mfmas(st):
        Ab, Bb = SET[st], SET[st] + 16
        return [f"v_mfma_f32_16x16x32_bf16 {vr(D+4*i,4)}, {vr(Ab+4*s1,4)}, {vr(Bb+4*(i-s1),4)}, {vr(D+4*i,4)}" for s1 in range(4) for i in range(s1, 8)]
    RK = 144; A32 = 176; WF = 180; U9 = 180; WD_ = 196; BS = 196
    A(f"""
    ds_write_b16 v231, v5 offset:{4 + 126}
    ds_write_b16 v231, v5 offset:{320 + 4 + 124}
    ds_write_b16_d16_hi v231, v5 offset:{4 + 126 - 64}
    ds_write_b16_d16_hi v231, v5 offset:{320 + 4 + 124 - 64}
    ds_read2_b32 {vr(A32,2)}, v239 offset0:0 offset1:1
    ds_read2_b32 {vr(A32+2,2)}, v239 offset0:2 offset1:3
    """)
    for o in loads(0, 0, "A"): A(o)
    for ty in range(2):
        for oi in range(4):
            o = ty * 160 + (48 - 16 * oi) // 2
            A(f"ds_read2_b32 {vr(RK+(ty*4+oi)*4,2)}, v236 offset0:{o} offset1:{o+1}\nds_read2_b32 {vr(RK+(ty*4+oi)*4+2,2)}, v236 offset0:{o+8} offset1:{o+9}")
    A("s_barrier")
    stamp(2)
    bl = loads(0, 0, "B")
    for o in bl[:4]: A(o)
    for k in range(4): A(f"ds_read_b128 {vr(U9+4*k,4)}, v234 offset:{512*(7-k) + 16}")
    for o in bl[4:]: A(o)
    B0 = SET[0] + 16
    A("s_mov_b32 s52, 0\ns_waitcnt lgkmcnt(8)")
    for k in range(4): A(f"v_mfma_f32_16x16x32_bf16 {vr(WD_+4*k,4)}, {vr(B0+4*k,4)}, v[244:247], 0")
    A("s_waitcnt lgkmcnt(4)")
    for k in range(4): A(f"v_mfma_f32_16x16x32_bf16 {vr(WD_+16+4*k,4)}, {vr(U9+4*k,4)}, v[248:251], 0")
    for i in range(4, 8): A(f"v_mfma_f32_16x16x32_bf16 {vr(D+4*i,4)}, {vr(A32,4)}, {vr(B0+4*(i-4),4)}, {vr(D+4*i,4)}")
    far = [f"v_mfma_f32_16x16x32_bf16 {vr(D+4*i,4)}, {vr(WF+(ty*2+ks)*4,4)}, {vr(RK+(ty*4+i-4-2*ks)*4,4)}, {vr(D+4*i,4)}"
           for ty in range(2) for i, ks in [(4, 0), (5, 0), (6, 0), (7, 0), (6, 1), (7, 1)]]
    def fin(i):
        ops = [f"v_pk_add_f32 {vr(D+4*i,2)}, {vr(D+4*i,2)}, {vr(BS+4*i,2)}", f"v_pk_add_f32 {vr(D+4*i+2,2)}, {vr(D+4*i+2,2)}, {vr(BS+4*i+2,2)}",
               f"v_cvt_pk_bf16_f32 v{48+2*i}, v{D+4*i}, v{D+4*i+1}", f"v_cvt_pk_bf16_f32 v{48+2*i+1}, v{D+4*i+2}, v{D+4*i+3}"]
        if i & 1:
            o = 48 + 2 * (i - 1)
            ops += ["s_nop 1", f"v_permlane16_swap_b32 v{o}, v{o+2}", f"v_permlane16_swap_b32 v{o+1}, v{o+3}",
                    f"buffer_store_dwordx4 {vr(o,4)}, v237, s[12:15], s47 offen offset:{512*(i-1)} sc1"]
        return ops
    def body(last):
        for st in range(2):
            A("s_waitcnt lgkmcnt(0)")
            m = mfmas(st)
            if last and st == 1:
                Ab, Bb = SET[st], SET[st] + 16
                pend = []
                for i in range(8):
                    for s1 in range(min(i, 3) + 1):
                        A(f"v_mfma_f32_16x16x32_bf16 {vr(D+4*i,4)}, {vr(Ab+4*s1,4)}, {vr(Bb+4*(i-s1),4)}, {vr(D+4*i,4)}")
                        for _ in range(2):
                            if pend: A(pend.pop(0))
                    if i >= 3: pend += fin(i - 3)
                for o in pend: A(o)
                for i in range(5, 8):
                    for o in fin(i): A(o)
                continue
            A("s_add_u32 s52, s52, 1")
            ld = loads(1 - st, 64 * (st + 1))
            if last:
                cv = [f"v_cvt_pk_bf16_f32 v{WF+k}, v{WD_+2*k}, v{WD_+2*k+1}" for k in range(16)]
                ld = [x + "\n" + y for x, y in zip(ld, cv)]
                ld += ["s_lshl_b32 s47, s5, 12", f"s_add_u32 s47, s47, {WS_HT:#x}"]
                ld += [f"ds_read_b128 {vr(BS+4*i,4)}, v235 offset:{K1_BASE + 1024*i}" for i in range(8)]
                m = m + far
            for k, x in enumerate(m):
                A(x)
                if k < len(ld): A(ld[k])
                if not last and st == 1 and 20 <= k < 23:
                    rr = (232, 233, 234)[k - 20]; A(f"v_add_u32 v{rr}, 128, v{rr}")
    A(".p2align 3\nK1_CONV:")
    body(False)
    A(f"s_cmp_lg_u32 s52, {E('BDAT', 2)}\ns_cbranch_scc1 K1_CONV2\ns_barrier\nK1_CONV2:\ns_cmp_lt_u32 s52, 6\ns_cbranch_scc1 K1_CONV")
    body(True)
    A("s_branch K2_COMP")

    A(f"""
    K1_PREP:
    s_sub_u32 s3, s2, 160
    s_lshl_b32 s46, s3, 3
    s_add_u32 s46, s46, s60
    s_add_u32 s46, s46, {NT1 - 432}
    s_lshl_b32 s47, s3, 2
    s_add_u32 s47, s47, s4
    s_add_u32 s47, s47, {NT0}
    s_cmp_lt_u32 s3, 54
    s_cselect_b32 s46, s47, s46
    s_cselect_b32 s44, s61, 1
    s_cselect_b32 s47, 1024, 0
    s_mul_i32 s45, s60, 42
    s_add_u32 s45, s45, s3
    s_add_u32 s45, s45, {NT1 + 336 - 54}
    s_add_u32 s47, s47, s45
    """)
    rowaddr(46, "v4", "v5"); rowaddr(47, "v12", "v13")
    A(f"""
    s_waitcnt lgkmcnt(0)
    s_load_dword s54, s[6:7], 0
    s_mov_b32 s12, s6
    s_mov_b32 s13, s7
    s_mov_b32 s14, {WS_SIZE:#x}
    s_mov_b32 s15, 0x00020000
    s_cmp_eq_u32 s44, 0
    s_cbranch_scc1 K1_PREPW
    """)
    rowload(48, "v4", "v5")
    A("s_cmp_lt_u32 s47, 1024\ns_cselect_b32 s45, 2, 1\ns_cbranch_scc0 K1_ST0")
    rowload(64, "v12", "v13")
    A(f"""
    K1_ST0:
    s_lshl_b32 s46, s46, 4
    s_add_u32 s46, s46, {WS_ST:#x}
    s_lshl_b32 s47, s47, 4
    s_add_u32 s47, s47, {WS_ST:#x}
    s_waitcnt vmcnt(0) lgkmcnt(0)
    s_add_u32 s53, s54, {TAG_INC:#x}
    K1_ST1:
    """)
    rowstats("s46")
    for r in range(0, 10, 2): A(f"v_mov_b64 {vr(48+r,2)}, {vr(64+r,2)}")
    A("s_mov_b32 s46, s47\ns_sub_u32 s45, s45, 1\ns_cmp_lg_u32 s45, 0\ns_cbranch_scc1 K1_ST1")
    stamp(1)
    A(f"""
    s_barrier
    s_cmp_eq_u32 s61, 0
    s_cbranch_scc1 K1_PREPD
    s_barrier
    s_mov_b32 s54, s53
    v_mov_b32 v8, {K1_CNT}
    s_mov_b32 s52, 0
    K1_WD:
    ds_read_b32 v9, v8 offset:4
    s_add_u32 s52, s52, 1
    s_waitcnt lgkmcnt(0)
    v_cmp_ne_u32 vcc, 4, v9
    s_cmp_lt_u32 s52, 0x100000
    s_cbranch_vccz K1_WD2
    s_sleep 4
    s_cbranch_scc1 K1_WD
    K1_WD2:
    s_cmp_lt_u32 s2, {E('HR1MIN', 250)}
    s_cbranch_scc1 K2_LOADER
    s_lshl_b32 s3, s2, 7
    s_add_u32 s3, s3, {WS_HR1 - 160*128:#x}
    v_mov_b32 v5, s3
    """)
    poll("K1_PHR1", "v5", "v6", slp=8)
    A(f"""
    s_branch K2_LOADER
    K1_PREPW:
    s_cmp_ge_u32 s3, 27
    s_cselect_b32 s40, 1, 0
    s_cselect_b32 s8, s38, s36
    s_cselect_b32 s9, s39, s37
    s_mul_i32 s41, s40, 27
    s_sub_u32 s41, s3, s41
    s_mov_b32 s10, {640*1728*2}
    s_mov_b32 s11, 0x00020000
    v_lshrrev_b32 v2, 3, v1
    v_and_b32 v3, 7, v1
    v_and_b32 v4, 6, v2
    v_xor_b32 v3, v3, v4
    v_mul_u32_u24 v2, 3456, v2
    v_lshl_add_u32 v2, v3, 4, v2
    s_lshl_b32 s42, s41, 7
    s_mul_i32 s43, s4, 552960
    s_add_u32 s42, s42, s43
    s_mul_i32 s44, s4, 20480
    s_mov_b32 s45, 0
    K1_PW_LD:
    s_mov_b32 m0, s44
    s_add_u32 s44, s44, 1024
    s_add_u32 s45, s45, 1
    buffer_load_dwordx4 v2, s[8:11], s42 offen lds
    s_add_u32 s42, s42, 27648
    s_cmp_lg_u32 s45, {E('PACE', 5)}
    s_cbranch_scc1 K1_PW_L2
    s_barrier
    K1_PW_L2:
    s_cmp_lt_u32 s45, 20
    s_cbranch_scc1 K1_PW_LD
    v_lshrrev_b32 v2, 2, v1
    v_and_b32 v3, 6, v2
    v_bfe_u32 v4, v1, 1, 1
    s_lshl_b32 s43, s4, 1
    v_add_u32 v4, s43, v4
    v_xor_b32 v3, v3, v4
    v_lshlrev_b32 v2, 7, v2
    v_lshl_add_u32 v2, v3, 4, v2
    v_and_b32 v3, 1, v1
    v_lshl_add_u32 v2, v3, 3, v2
    v_add_u32 v4, 40960, v2
    s_lshl_b32 s43, s41, 2
    s_add_u32 s43, s43, s4
    s_mul_i32 s44, s43, 9363
    s_lshr_b32 s44, s44, 16
    s_mul_i32 s45, s44, 7
    s_sub_u32 s45, s43, s45
    s_mul_i32 s46, s44, {20*14*1024}
    s_add_u32 s46, s46, {WS_W1P:#x}
    s_cmp_gt_u32 s45, 3
    s_cselect_b32 s47, 3, 0
    s_add_u32 s47, s47, s45
    s_mul_i32 s48, s40, 3
    s_add_u32 s47, s47, s48
    s_lshl_b32 s47, s47, 10
    v_bfe_u32 v6, v1, 2, 1
    v_bfe_u32 v7, v1, 3, 1
    v_xor_b32 v6, v6, v7
    v_mul_u32_u24 v6, 12, v6
    s_and_b32 s48, s45, 3
    s_cmp_eq_u32 s48, 2
    s_cselect_b32 s48, -1, 0
    v_and_b32 v6, s48, v6
    v_xor_b32 v5, v6, v1
    v_lshlrev_b32 v5, 4, v5
    v_add_u32 v5, s47, v5
    v_and_b32 v6, 7, v1
    v_and_b32 v7, 48, v1
    v_add_u32 v6, v6, v7
    s_lshl_b32 s48, s40, 3
    v_add_u32 v6, s48, v6
    v_lshlrev_b32 v6, 4, v6
    v_bfe_u32 v7, v1, 3, 1
    v_mul_u32_u24 v7, 7168, v7
    v_add3_u32 v6, v6, v7, 0
    v_add_u32 v6, 6144, v6
    s_cmp_eq_u32 s45, 3
    s_cselect_b64 vcc, -1, 0
    s_nop 1
    v_cndmask_b32 v5, v5, v6, vcc
    s_waitcnt vmcnt(0)
    s_barrier
    """)
    stamp(2)
    F = 16
    for ks in range(20):
        base = "v2" if ks < 10 else "v4"; o = (ks % 10) * 4096
        A(f"ds_read_b64_tr_b16 {vr(F+4*ks,2)}, {base} offset:{o}\nds_read_b64_tr_b16 {vr(F+4*ks+2,2)}, {base} offset:{o+2048}")
    A("v_mov_b32 v8, 0\nv_mov_b32 v9, 0\nv_mov_b32 v10, 0x3f803f80\ns_mov_b32 s47, 0xffff0000\ns_waitcnt lgkmcnt(0)")
    for i in range(0, 80, 2): A(f"v_dot2c_f32_bf16 v8, v10, v{F+i}\nv_dot2c_f32_bf16 v9, v10, v{F+i+1}")
    A("""
    s_nop 2
    v_add_f32 v8, v8, v9
    v_mov_b32 v9, v8
    s_nop 1
    v_permlane16_swap_b32 v8, v9
    s_nop 1
    v_add_f32 v8, v8, v9
    v_mov_b32 v9, v8
    s_nop 1
    v_permlane32_swap_b32 v8, v9
    s_nop 1
    v_add_f32 v8, v8, v9
    v_mul_f32 v8, 0xbacccccd, v8
    s_mov_b32 s47, 0x3f80
    s_mov_b32 s48, 0x3f800000
    .p2align 3
    """)
    for ks in range(20):
        for i in range(4):
            r = F + 4 * ks + i; t = 100 + 2 * i
            A(f"v_dot2_f32_bf16 v{t}, v{r}, s47, v8\nv_dot2_f32_bf16 v{t+1}, v{r}, s48, v8")
        for i in range(4):
            r = F + 4 * ks + i; t = 100 + 2 * i
            A(f"v_cvt_pk_bf16_f32 v{r}, v{t}, v{t+1}")
        A(f"buffer_store_dwordx4 {vr(F+4*ks,4)}, v5, s[12:15], s46 offen sc1\ns_add_u32 s46, s46, {14*1024}")
        if ks == NEK + ELAG - 1:
            A(f"""
            v_mov_b32 v11, {K1_CNT}
            v_mov_b32 v12, 1
            s_waitcnt vmcnt({ELAG})
            s_mov_b64 exec, 1
            ds_add_rtn_u32 v13, v11, v12 offset:8
            s_mov_b64 exec, -1
            s_add_u32 s44, s54, {TAG_INC:#x}
            v_and_b32 v14, 31, v1
            v_lshlrev_b32 v14, 2, v14
            v_mov_b32 v15, s44
            s_lshl_b32 s45, s2, 7
            s_add_u32 s45, s45, {WS_FE:#x}
            s_waitcnt lgkmcnt(0)
            v_readfirstlane_b32 s44, v13
            s_cmp_lg_u32 s44, 3
            s_cbranch_scc1 K1_NOFE
            buffer_store_dword v15, v14, s[12:15], s45 offen sc1
            K1_NOFE:
            """)
            stamp(1)
    A("s_branch K2_COMPP")
    tabv = [Q_TILES[r][hf] for r in range(7) for hf in range(2)]
    t64 = sum(v << (4 * i) for i, v in enumerate(tabv))
    A(f"""
    K1_PREPD:
    s_sub_u32 s3, s3, 54
    s_cmp_lt_u32 s3, 36
    s_cbranch_scc1 K1_PD0
    s_barrier
    s_branch K2_COMPP
    K1_PD0:
    """)
    srd(8, 92, 1728 * 640 * 2)
    for i in range(5):
        A(f"""
        v_add_u32 v2, {64*i}, v1
        v_mul_u32_u24 v3, 6554, v2
        v_lshrrev_b32 v3, 16, v3
        v_mul_u32_u24 v4, 1120, v3
        v_lshl_add_u32 v{40+i}, v2, 4, v4
        v_lshrrev_b32 v{45+i}, 4, v3
        """)
    A(f"""
    s_mul_i32 s40, s3, 12
    s_add_u32 s40, s40, s4
    s_mul_i32 s49, s4, 15360
    s_mov_b32 s45, 0
    K1_PD1:
    s_lshr_b32 s36, s40, 3
    s_mul_i32 s37, s36, 9363
    s_lshr_b32 s37, s37, 16
    s_mul_i32 s38, s37, 7
    s_sub_u32 s38, s36, s38
    s_lshl_b32 s39, s38, 3
    s_mov_b32 s50, {t64 & 0xffffffff:#x}
    s_mov_b32 s51, {t64 >> 32:#x}
    s_lshr_b64 s[50:51], s[50:51], s39
    s_mul_i32 s37, s37, 14
    s_and_b32 s48, s50, 15
    s_add_u32 s48, s48, s37
    s_lshr_b32 s50, s50, 4
    s_and_b32 s50, s50, 15
    s_add_u32 s50, s50, s37
    s_min_u32 s50, s50, 107
    s_sub_u32 s50, s50, s48
    s_sub_u32 s50, s50, 1
    s_mul_i32 s39, s50, 20480
    s_mul_i32 s48, s48, 20480
    s_and_b32 s37, s40, 7
    s_mul_i32 s37, s37, 160
    s_add_u32 s48, s48, s37
    """)
    for i in range(5):
        A(f"s_add_u32 m0, s49, {1024*i}\nv_mad_u32_u24 v2, v{45+i}, s39, v{40+i}\nbuffer_load_dwordx4 v2, s[8:11], s48 offen lds")
    A(f"""
    s_add_u32 s40, s40, 4
    s_add_u32 s49, s49, 5120
    s_add_u32 s45, s45, 1
    s_cmp_lt_u32 s45, 3
    s_cbranch_scc1 K1_PD1
    s_sub_u32 s40, s40, 12
    s_sub_u32 s49, s49, 15360
    v_lshrrev_b32 v6, 4, v1
    v_bfe_u32 v7, v1, 2, 2
    v_and_b32 v8, 3, v1
    v_lshlrev_b32 v5, 4, v1
    s_waitcnt vmcnt(0)
    s_barrier
    """)
    stamp(2)
    A(f"""
    K1_PD3:
    s_lshr_b32 s36, s40, 3
    s_mul_i32 s37, s36, 9363
    s_lshr_b32 s37, s37, 16
    s_mul_i32 s38, s37, 7
    s_sub_u32 s38, s36, s38
    s_lshr_b32 s39, s38, 1
    s_mul_i32 s36, s37, 3
    s_lshl_b32 s37, s37, 2
    s_add_u32 s37, s37, 23
    s_and_b32 s38, s38, 1
    s_cselect_b32 s36, s36, s37
    s_add_u32 s36, s36, s39
    v_lshlrev_b32 v2, s38, v6
    v_lshl_add_u32 v2, v2, 2, v7
    v_mul_u32_u24 v2, 160, v2
    v_lshl_add_u32 v2, v8, 3, v2
    v_add_u32 v2, s49, v2
    s_cmp_eq_u32 s38, 1
    s_movk_i32 s38, 2560
    s_cselect_b32 s38, 640, s38
    v_add_u32 v3, s38, v2
    s_and_b32 s37, s40, 7
    s_mul_i32 s37, s37, {54*5120}
    s_mul_i32 s36, s36, 5120
    s_add_u32 s50, s37, s36
    s_add_u32 s50, s50, {WS_WDP:#x}
    s_add_u32 s51, s50, 4096
    """)
    for t in range(5): A(f"ds_read_b64_tr_b16 {vr(16+4*t,2)}, v2 offset:{32*t}\nds_read_b64_tr_b16 {vr(16+4*t+2,2)}, v3 offset:{32*t}")
    A("s_waitcnt lgkmcnt(0)")
    for t in range(5): A(f"buffer_store_dwordx4 {vr(16+4*t,4)}, v5, s[12:15], {'s50' if t < 4 else 's51'} offen offset:{1024*(t&3)} sc1")
    A("""
    s_add_u32 s40, s40, 4
    s_add_u32 s49, s49, 5120
    s_sub_u32 s45, s45, 1
    s_cmp_lg_u32 s45, 0
    s_cbranch_scc1 K1_PD3
    s_branch K2_COMPP
    """)

    A("K2_LOADER:")
    map2()
    RW = 16
    A(f"""
    s_mul_i32 s35, s37, {54*5120}
    s_add_u32 s35, s35, {WS_WDP:#x}
    s_mul_i32 s26, s4, 15360
    s_add_u32 s29, s35, s26
    s_add_u32 s29, s29, 153600
    v_min_u32 v5, 35, v1
    v_lshlrev_b32 v5, 7, v5
    v_add_u32 v5, {WS_FP + 214*128:#x}, v5
    """)
    def batch(b):
        for i in range(15):
            A(f"buffer_load_dwordx4 {vr(RW+(b*15+i)*4,4)}, v4, s[12:15], s29 offen offset:{1024*(i&3)} sc1")
            if (i & 3) == 3: A("s_add_u32 s29, s29, 4096")
        if b == 0: A(f"s_add_u32 s29, s29, {61440 - 12288}")
    A(f"""
    s_mul_i32 s20, s17, 7
    s_lshr_b32 s20, s20, 2
    v_and_b32 v7, 3, v1
    v_min_u32 v7, 2, v7
    v_add_u32 v7, s20, v7
    v_min_u32 v7, 26, v7
    v_bfe_u32 v6, v1, 2, 1
    v_mad_u32_u24 v7, v6, 27, v7
    v_add_u32 v12, 160, v7
    v_lshlrev_b32 v7, 7, v7
    v_add_u32 v10, {WS_FE + 160*128:#x}, v7
    v_lshrrev_b32 v8, 4, v1
    v_and_b32 v6, 15, v1
    v_lshlrev_b32 v7, 1, v8
    v_xor_b32 v2, v6, v7
    v_xor_b32 v3, 8, v2
    v_lshlrev_b32 v7, 12, v8
    v_lshl_add_u32 v2, v2, 4, v7
    v_lshl_add_u32 v3, v3, 4, v7
    s_lshl_b32 s20, s4, 16
    s_lshl_b32 s21, s16, 8
    s_add_u32 s20, s20, s21
    s_add_u32 s20, s20, {WS_HT:#x}
    s_mul_i32 s21, s17, {20*14*1024}
    s_mul_i32 s22, s4, 7168
    s_add_u32 s21, s21, s22
    s_add_u32 s21, s21, {WS_W1P:#x}
    s_lshl_b32 s23, s4, 12
    s_add_u32 s23, s23, {XS}
    s_add_u32 s24, s22, {WB + WSL}
    s_mov_b32 s33, {XS}
    s_mov_b32 s34, {WSL}
    v_min_u32 v7, 39, v1
    v_lshrrev_b32 v8, 2, v7
    v_and_b32 v7, 3, v7
    v_lshl_add_u32 v7, v8, 4, v7
    s_lshl_b32 s22, s4, 2
    v_add_u32 v7, s22, v7
    v_min_u32 v8, 48, v1
    s_mul_i32 s22, s4, 9
    s_add_u32 s22, s22, {214 - 40}
    v_add_u32 v8, s22, v8
    v_cmp_gt_u32 vcc, 40, v1
    s_nop 1
    v_cndmask_b32 v7, v8, v7, vcc
    v_cmp_gt_u32 vcc, 56, v1
    s_nop 1
    v_cndmask_b32 v7, v12, v7, vcc
    v_lshlrev_b32 v7, 7, v7
    v_add_u32 v7, {WS_FP:#x}, v7
    v_mov_b32 v8, {K1_CNT}
    """)
    def dma_x():
        A("""
        s_mov_b32 m0, s23
        s_add_u32 s25, s20, 15360
        buffer_load_dwordx4 v2, s[12:15], s20 offen sc1 lds
        s_add_u32 s27, s20, 30720
        buffer_load_dwordx4 v3, s[12:15], s25 offen offset:1024 sc1 lds
        s_add_u32 s25, s20, 46080
        buffer_load_dwordx4 v2, s[12:15], s27 offen offset:2048 sc1 lds
        s_add_u32 s20, s20, 0x40000
        buffer_load_dwordx4 v3, s[12:15], s25 offen offset:3072 sc1 lds
        """)
    def dma_w():
        A("s_mov_b32 m0, s24\ns_add_u32 s25, s21, 4096")
        for i in range(4): A(f"buffer_load_dwordx4 v4, s[12:15], s21 offen offset:{1024*i} sc1 lds")
        A(f"s_add_u32 m0, s24, 4096\ns_add_u32 s21, s21, {WSL}")
        for i in range(3): A(f"buffer_load_dwordx4 v4, s[12:15], s25 offen offset:{1024*i} sc1 lds")
    stamp(3)
    poll("K2_P1", "v10", "v6", slp=8)
    stamp(4)
    dma_w(); A(f"s_add_u32 s24, s24, {WSL}")
    dma_w(); A(f"s_sub_u32 s24, s24, {2*WSL}")
    WR = RW + (56 - 7 * NWR) * 4
    for st in range(NWR):
        A("s_add_u32 s25, s21, 4096")
        for i in range(7): A(f"buffer_load_dwordx4 {vr(WR+(st*7+i)*4,4)}, v4, s[12:15], {'s21' if i < 4 else 's25'} offen offset:{1024*(i&3)} sc1")
        A(f"s_add_u32 s21, s21, {WSL}")
    def put_w(st):
        A("v_add_u32 v12, s24, v4")
        for i in range(7): A(f"ds_write_b128 v12, {vr(WR+((st-2)*7+i)*4,4)} offset:{1024*i}")
    A(f"""
    s_mov_b32 s52, 0
    K2_WL:
    ds_read_b32 v9, v8 offset:4
    s_add_u32 s52, s52, 1
    s_waitcnt lgkmcnt(0)
    v_cmp_ne_u32 vcc, 4, v9
    s_cmp_lt_u32 s52, 0x100000
    s_cbranch_vccz K2_WL_D
    s_sleep 2
    s_cbranch_scc1 K2_WL
    K2_WL_D:
    s_cmp_lt_u32 s2, 160
    s_cbranch_scc1 K2_NOH2
    s_lshl_b32 s3, s2, 7
    s_add_u32 s3, s3, {WS_HR2 - 160*128:#x}
    v_mov_b32 v11, s3
    """)
    poll("K2_PH2", "v11", "v6", slp=8)
    A("K2_NOH2:")
    stamp(5)
    A(f"""
    s_lshl_b32 s31, s4, 10
    s_add_u32 s30, s35, s31
    v_lshrrev_b32 v240, 3, v1
    v_and_b32 v241, 7, v1
    v_lshlrev_b32 v240, 12, v240
    v_lshl_add_u32 v242, v241, 4, v240
    s_mul_i32 s40, s37, {80*4096}
    s_lshl_b32 s41, s36, 7
    s_add_u32 s40, s40, s41
    s_add_u32 s40, s40, {WS_HT:#x}
    s_lshl_b32 s41, s4, 15
    s_add_u32 s40, s40, s41
    s_add_u32 s42, s31, {G1_END}
    s_add_u32 s41, s31, {RES_LDS}
    v_add_u32 v240, s26, v4
    v_add_u32 v243, 61440, v240
    v_add_u32 v244, s31, v4
    v_add_u32 v245, 0x10000, v244
    v_lshl_add_u32 v241, s4, 3, v241
    v_lshlrev_b32 v241, {FSH}, v241
    s_lshl_b32 s38, s36, {FSH + 5}
    s_add_u32 s39, s38, {WS_FH2:#x}
    s_add_u32 s38, s38, {WS_FH:#x}
    """)
    NE0 = E("NE0", 14)
    if NE0: A("buffer_load_dword v6, v5, s[12:15], 0 offen sc1")
    if NWR: A(f"s_waitcnt vmcnt({1 if NE0 else 0})"); put_w(2)
    else: dma_w()
    A(f"s_add_u32 s24, s24, {WSL}")
    if NE0:
        A("s_waitcnt vmcnt(0)\nv_cmp_ne_u32 vcc, s54, v6\ns_cbranch_vccz K2_WOK")
        poll("K2_PW", "v5", "v6", slp=4)
        A("K2_WOK:")
        for i in range(NE0): A(f"buffer_load_dwordx4 {vr(RW+i*4,4)}, v4, s[12:15], s30 offen sc1\ns_add_u32 s30, s30, 4096")
    if E("WAITB", 0): A("s_waitcnt vmcnt(0)")
    stamp(6)
    poll("K2_PC", "v7", "v6", slp=4)
    A(f"s_setprio {E('LPRIO', 0)}")
    stamp(7)
    dma_x(); A(f"s_add_u32 s23, s23, {XS}")
    dma_x(); A(f"s_sub_u32 s23, s23, {2*XS}")
    dma_x(); A(f"s_add_u32 s23, s23, {XS}")
    vq = ["X0"] * 4 + ["X1"] * 4 + ["X2"] * 4
    def wait_for(tag, extra=""):
        last = max(i for i, t in enumerate(vq) if t == tag)
        A(f"s_waitcnt vmcnt({min(63, len(vq) - 1 - last)}) {extra}")
    NF0 = 26
    rl = [NE0]
    vq = ["F0a"] + vq
    def regload(n):
        for _ in range(min(n, 56 - rl[0])):
            i = rl[0]; rl[0] += 1
            if i < NF0:
                A(f"buffer_load_dwordx4 {vr(RW+i*4,4)}, v4, s[12:15], s30 offen sc1\ns_add_u32 s30, s30, 4096"); vq.append("F0a" if i < 13 else "F0b")
            else:
                b, j = divmod(i - NF0, 15)
                A(f"buffer_load_dwordx4 {vr(RW+i*4,4)}, v4, s[12:15], s29 offen offset:{1024*(j&3)} sc1"); vq.append(f"B{b}")
                if (j & 3) == 3: A("s_add_u32 s29, s29, 4096")
                if i - NF0 == 14: A(f"s_add_u32 s29, s29, {61440 - 12288}")
    wait_for("X0", "lgkmcnt(0)"); A("s_barrier")
    EX = [int(x) for x in os.environ.get("EX", "8,2,2,1,0,0,0,0,0,12,12").split(",")]
    regload(EX[0])
    for st in range(3, 10):
        k = st - 2
        wait_for(f"X{k}", "lgkmcnt(0)"); A("s_barrier")
        dma_x()
        if st < 2 + NWR: put_w(st); vq += [f"X{st}"] * 4
        elif st == 9:
            ld = lambda base, i: A(f"buffer_load_dwordx4 v4, s[12:15], {base} offen offset:{1024*i} sc1 lds")
            A("s_add_u32 m0, s24, 4096\ns_add_u32 s25, s21, 4096"); ld("s25", 1); ld("s25", 2)
            A("s_mov_b32 m0, s24\ns_nop 0"); ld("s21", 2)
            vq += ["X9"] * 7
            wait_for("X8"); A("s_barrier")
            ld("s21", 0); ld("s21", 1); ld("s21", 3)
            A("s_add_u32 m0, s24, 4096\ns_nop 0"); ld("s25", 0)
            vq += ["X9b"] * 4
        else: dma_w(); vq += [f"X{st}"] * 11
        regload(EX[k])
        if st < 9:
            if (st + 1) % 3 == 2: A(f"s_sub_u32 s23, s23, {2*XS}\ns_sub_u32 s24, s24, {2*WSL}")
            else: A(f"s_add_u32 s23, s23, {XS}\ns_add_u32 s24, s24, {WSL}")
    A(f"s_add_u32 s24, s24, {WSL}")
    regload(EX[8])
    wait_for("X9"); A("s_barrier")
    stamp(8)
    regload(EX[9])
    wait_for("X9b"); A("s_barrier")
    regload(EX[10])
    assert rl[0] >= NF0
    def tailres():
        for i in range(4): A(f"s_add_u32 m0, s42, {4096*i}\ns_add_u32 s25, s35, m0\nbuffer_load_dwordx4 v4, s[12:15], s25 offen sc1 lds")
        for i in range(2): A(f"s_add_u32 m0, s41, {4096*i}\ns_add_u32 s25, s40, {0x20000*i}\nbuffer_load_dwordx4 v242, s[12:15], s25 offen sc1 lds")
        A(f"""
        s_cmp_lt_u32 s4, 2
        s_cbranch_scc0 K2_LR
        s_add_u32 m0, s42, {4096*4}
        s_add_u32 s25, s35, m0
        buffer_load_dwordx4 v4, s[12:15], s25 offen sc1 lds
        s_branch K2_LR2
        K2_LR:
        s_add_u32 m0, s41, {8192 - 2048}
        s_add_u32 s25, s40, {0x40000 - 0x10000}
        buffer_load_dwordx4 v242, s[12:15], s25 offen sc1 lds
        K2_LR2:
        """)
        vq.extend(["D"] * 7)
    def fw(i): A(f"ds_write_b128 {'v244' if i < 16 else 'v245'}, {vr(RW+i*4,4)} offset:{4096*(i & 15)}")
    def check(lbl, soff):
        A(f"v_cmp_ne_u32 vcc, s54, v11\ns_cbranch_vccz {lbl}_OK")
        poll(lbl, "v241", "v11", soff=soff, slp=4)
        A(f"{lbl}_OK:")
    TRE = E("TRE", 1)
    if TRE: tailres()
    wait_for("F0a"); A("s_barrier")
    dl = ["s_mov_b32 m0, s24\ns_add_u32 s25, s35, s24\nbuffer_load_dwordx4 v4, s[12:15], s25 offen sc1 lds"] + \
         [f"buffer_load_dwordx4 v4, s[12:15], s25 offen offset:{1024*i} sc1 lds" for i in (1, 2, 3)] + \
         ["s_add_u32 m0, s24, 4096\ns_add_u32 s25, s25, 4096\nbuffer_load_dwordx4 v4, s[12:15], s25 offen sc1 lds"] + \
         [f"buffer_load_dwordx4 v4, s[12:15], s25 offen offset:{1024*i} sc1 lds" for i in (1, 2)]
    PA = E("PA", 20)
    LIM = E("LIM", 56)
    for i in range(NF0):
        if i == 13: wait_for("F0b")
        if i == PA:
            A("buffer_load_dword v11, v241, s[12:15], s38 offen sc1"); vq.append("PA")
        fw(i)
        if dl: A(dl.pop(0)); vq.append("D")
        elif rl[0] < LIM and i < PA: regload(1)
    if PA >= NF0:
        A("buffer_load_dword v11, v241, s[12:15], s38 offen sc1"); vq.append("PA")
    stamp(9)
    wait_for("PA", "lgkmcnt(0)")
    check("K2_PA", "s38")
    A("s_barrier")
    stamp(10)
    if not TRE: tailres()
    regload(max(0, NF0 + 15 - rl[0]))
    wait_for(vq[-1]); A("s_barrier")
    A("buffer_load_dword v11, v241, s[12:15], s39 offen sc1"); vq.append("PB")
    NWB = E("NWB", 4)
    for i in range(NWB): A(f"ds_write_b128 v240, {vr(RW+(NF0+i)*4,4)} offset:{1024*i}")
    wait_for("PB")
    check("K2_PB", "s39")
    A("s_barrier")
    regload(56 - rl[0])
    for i in range(NWB, 15): A(f"ds_write_b128 v240, {vr(RW+(NF0+i)*4,4)} offset:{1024*i}")
    A("s_waitcnt lgkmcnt(0)\ns_barrier")
    A("s_waitcnt vmcnt(0)")
    for i in range(15): A(f"ds_write_b128 v243, {vr(RW+(NF0+15+i)*4,4)} offset:{1024*i}")
    A("s_waitcnt lgkmcnt(0)\ns_barrier")
    A(f"s_or_b32 s3, s2, s4\ns_cmp_lg_u32 s3, 0\ns_cbranch_scc1 K2_LEND\nv_lshlrev_b32 v5, 7, v1\nv_add_u32 v5, {WS_FP + 160*128:#x}, v5")
    poll("K2_PE0", "v5", "v6")
    A("v_add_u32 v5, 4096, v5")
    poll("K2_PE1", "v5", "v6")
    A("v_mov_b32 v6, 0\nv_mov_b32 v7, s54\nglobal_store_dword v6, v7, s[6:7] sc1\nK2_LEND:")
    finish()

    A(f"K2_COMPP:\ns_waitcnt lgkmcnt(0)\ns_add_u32 s54, s54, {TAG_INC:#x}")
    A("K2_COMP:")
    A(f"""
    v_mov_b32 v2, {K1_CNT}
    v_mov_b32 v3, 1
    v_mov_b32 v13, s54
    s_mov_b64 exec, 1
    ds_add_u32 v2, v3
    s_mov_b64 exec, -1
    """)
    stamp(3)
    map2()
    A(f"""
    v_lshrrev_b32 v5, 2, v1
    v_and_b32 v6, 7, v5
    v_and_b32 v7, 3, v1
    v_lshlrev_b32 v5, 8, v5
    v_lshl_add_u32 v5, v7, 3, v5
    v_add_u32 v5, {XS}, v5
    s_lshl_b32 s25, s18, 2
    """)
    for a_ in range(4): A(f"s_add_u32 s26, s25, {a_}\nv_xor_b32 v7, s26, v6\nv_lshl_add_u32 v{8+a_}, v7, 5, v5")
    A(f"s_mul_i32 s25, s19, 7168\ns_add_u32 s25, s25, {WB + WSL}\nv_add_u32 v12, s25, v4")
    ACC = 16; SETS = [128, 172]
    srd(8, 94, 2048 * 640 * 2)
    A(f"""
    v_mov_b32 v216, 0x3f803f80
    v_mov_b32 v217, 0x3f803f80
    v_mov_b32 v218, 0x3f803f80
    v_mov_b32 v219, 0x3f803f80
    s_mov_b32 s33, {XS}
    s_mov_b32 s34, {WSL}
    s_mov_b32 s27, 0
    s_mov_b32 s28, 1
    s_cmp_lt_u32 s2, 160
    s_cselect_b32 s20, s57, s2
    s_lshl_b32 s20, s20, 7
    s_add_u32 s20, s20, {WS_FP:#x}
    v_and_b32 v14, 31, v1
    v_lshlrev_b32 v14, 2, v14
    v_lshrrev_b32 v5, 5, v1
    v_mul_u32_u24 v5, {WS_HR2 - WS_FP:#x}, v5
    v_add_u32 v14, v14, v5
    s_waitcnt vmcnt(0)
    s_mov_b64 exec, 1
    ds_add_rtn_u32 v5, v2, v3 offset:4
    s_mov_b64 exec, -1
    s_waitcnt lgkmcnt(0)
    v_readfirstlane_b32 s21, v5
    s_cmp_lg_u32 s21, 3
    s_cbranch_scc1 K2_NOFLAG
    buffer_store_dword v13, v14, s[12:15], s20 offen sc1
    K2_NOFLAG:
    """)
    stamp(4)
    for i in range(0, 112, 2): A(f"v_mov_b64 {vr(ACC+i,2)}, 0")
    def reads(st, ks, stats):
        b = SETS[st]
        xo = [f"ds_read_b64_tr_b16 {vr(b+4*a_+2*hh,2)}, v{8+a_} offset:{ks*8192 + hh*4096}" for a_ in range(4) for hh in range(2)]
        wo = [] if stats else [f"ds_read_b128 {vr(b+16+4*w,4)}, v12 offset:{ks*14336 + w*1024}" for w in range(7)]
        return wo[:1] + xo + wo[1:]
    def mf(st, stats):
        b = SETS[st]
        if stats:
            return [f"v_mfma_f32_16x16x32_bf16 {vr(ACC+4*a_,4)}, {vr(b+4*a_,4)}, {vr(b+4*a_,4)}, {vr(ACC+4*a_,4)}" for a_ in range(4)] + \
                   [f"v_mfma_f32_16x16x32_bf16 {vr(ACC+16+4*a_,4)}, v[216:219], {vr(b+4*a_,4)}, {vr(ACC+16+4*a_,4)}" for a_ in range(4)]
        return [f"v_mfma_f32_16x16x32_bf16 {vr(ACC+(w*4+a_)*4,4)}, {vr(b+16+4*w,4)}, {vr(b+4*a_,4)}, {vr(ACC+(w*4+a_)*4,4)}" for w in range(7) for a_ in range(4)]
    A(f"""
    s_lshr_b32 s20, s17, 1
    s_mul_i32 s20, s20, 3
    s_and_b32 s21, s17, 1
    s_lshl_b32 s23, s16, 3
    s_lshl_b32 s24, s18, 2
    s_add_u32 s23, s23, s24
    s_mul_i32 s23, s23, 55296
    s_add_u32 s23, s23, {WS_HF:#x}
    s_lshl_b32 s24, s17, 1
    s_add_u32 s24, s24, s19
    s_add_u32 s24, s24, 23
    s_lshl_b32 s24, s24, 10
    s_add_u32 s40, s24, s23
    s_lshl_b32 s25, s21, 1
    s_add_u32 s25, s25, s20
    s_lshl_b32 s25, s25, 10
    s_lshl_b32 s26, s19, 9
    s_add_u32 s25, s25, s26
    s_add_u32 s26, s20, 1
    s_lshl_b32 s26, s26, 10
    s_lshl_b32 s29, s21, 9
    s_add_u32 s26, s26, s29
    s_cmp_eq_u32 s17, 15
    s_cselect_b32 s25, s26, s25
    s_add_u32 s41, s25, s23
    s_add_u32 s26, s26, s23
    s_lshl_b32 s29, s19, 8
    s_add_u32 s42, s26, s29
    s_cmp_eq_u32 s17, 15
    s_cselect_b32 s42, 0x40000000, s42
    v_and_b32 v5, 31, v1
    v_lshlrev_b32 v5, 4, v5
    v_lshrrev_b32 v6, 5, v1
    v_mul_u32_u24 v6, 55296, v6
    v_add_u32 v220, v5, v6
    v_and_b32 v7, 15, v1
    v_lshl_add_u32 v7, v7, 4, v6
    v_bfe_u32 v5, v1, 4, 1
    v_mul_u32_u24 v5, 110592, v5
    v_add_u32 v221, v7, v5
    v_and_b32 v2, {(1 << (FSH - 2)) - 1}, v1
    v_lshlrev_b32 v14, 2, v2
    s_lshl_b32 s20, s16, 1
    s_add_u32 s20, s20, s18
    s_lshl_b32 s20, s20, 5
    s_lshl_b32 s21, s17, 1
    s_add_u32 s20, s20, s21
    s_add_u32 s20, s20, s19
    s_lshl_b32 s20, s20, {FSH}
    s_add_u32 s43, s20, {WS_FH:#x}
    s_add_u32 s44, s20, {WS_FH2:#x}
    s_lshl_b32 s22, s36, 2
    s_add_u32 s22, s22, s4
    s_mul_i32 s23, s22, 55296
    s_xor_b32 s24, s22, 1
    s_mul_i32 s24, s24, 55296
    v_add_u32 v222, s23, v4
    v_add_u32 v223, s24, v4
    s_lshl_b32 s45, s19, 10
    s_add_u32 s45, s45, {WS_HF:#x}
    s_mul_i32 s24, s19, 5120
    v_add_u32 v224, s24, v4
    v_add_u32 v225, 61440, v224
    v_add_u32 v226, 122880, v224
    v_and_b32 v2, 15, v1
    v_lshrrev_b32 v3, 4, v1
    v_lshrrev_b32 v5, 2, v1
    v_lshlrev_b32 v5, 7, v5
    v_and_b32 v6, 3, v1
    v_lshl_add_u32 v5, v6, 3, v5
    s_lshl_b32 s24, s4, 5
    s_add_u32 s24, s24, {RES_LDS}
    v_add_u32 v227, s24, v5
    v_lshlrev_b32 v228, 2, v2
    s_lshl_b32 s22, s22, 4
    s_lshl_b32 s46, s22, 2
    s_add_u32 s46, s46, {WS_R2:#x}
    s_mul_i32 s47, s22, 1280
    s_mul_i32 s24, s37, 160
    s_add_u32 s47, s47, s24
    v_mul_u32_u24 v5, 1280, v2
    v_lshl_add_u32 v229, v3, 3, v5
    v_lshrrev_b32 v2, 1, v3
    v_lshl_add_u32 v5, v2, 4, v5
    v_and_b32 v2, 1, v3
    v_lshl_add_u32 v230, v2, 5, v5
    s_mul_i32 s24, s4, 5120
    s_add_u32 s24, s24, {24*5120}
    v_add_u32 v231, s24, v4
    s_xor_b32 s24, s4, 1
    s_mul_i32 s24, s24, 5120
    s_add_u32 s24, s24, {24*5120}
    v_add_u32 v232, s24, v4
    """)
    A("s_barrier")
    stamp(5)
    for o in reads(0, 0, False): A(o)
    A("s_cmp_eq_u32 s17, 15\ns_cselect_b32 s29, s19, 0\ns_cmp_eq_u32 s29, 1\ns_cbranch_scc1 K2_STAT")
    def weave(m, others):
        n = len(m); k = len(others); idx = 0
        for t, x in enumerate(m):
            A(x)
            want = (k * (t + 1) + n - 1) // n if k > n else min(k, t + 1)
            while idx < want: A(others[idx]); idx += 1
        while idx < k: A(others[idx]); idx += 1
    def loop(label, stats):
        nit = 10 if stats else 7
        A(f".p2align 3\n{label}:\ns_waitcnt lgkmcnt(0)\ns_add_u32 s27, s27, 1")
        adv = ["s_add_u32 s28, s28, 1\ns_cmp_eq_u32 s28, 3",
               f"s_cselect_b32 s30, {(-2*XS) & 0xffffffff:#x}, s33", f"s_cselect_b32 s31, {(-2*WSL) & 0xffffffff:#x}, s34",
               "s_cselect_b32 s28, 0, s28\nv_add_u32 v8, s30, v8", "v_add_u32 v9, s30, v9\nv_add_u32 v10, s30, v10",
               "v_add_u32 v11, s30, v11\nv_add_u32 v12, s31, v12"]
        weave(mf(0, stats), reads(1, 1, stats) + adv)
        if stats:
            A(f"s_waitcnt lgkmcnt(0)\ns_cmp_lt_u32 s27, 10\ns_cbranch_scc0 {label}_T\ns_barrier")
            weave(mf(1, stats), reads(0, 0, stats))
            A(f"s_branch {label}\n{label}_T:\ns_barrier\ns_barrier")
            for x in mf(1, stats): A(x)
        else:
            A("s_waitcnt lgkmcnt(0)\ns_barrier")
            weave(mf(1, stats), reads(0, 0, stats))
            A(f"s_cmp_lt_u32 s27, 7\ns_cbranch_scc1 {label}")
    acc = lambda w, a_: ACC + (w * 4 + a_) * 4
    T = 234
    def prod(w, a_, o):
        g, u = acc(w, a_), acc(w + 3, a_)
        return [f"v_pk_mul_f32 {vr(g,2)}, {vr(g,2)}, {vr(u,2)}", f"v_pk_mul_f32 {vr(g+2,2)}, {vr(g+2,2)}, {vr(u+2,2)}",
                f"v_cvt_pk_bf16_f32 v{o}, v{g}, v{g+1}", f"v_cvt_pk_bf16_f32 v{o+1}, v{g+2}, v{g+3}"]
    loop("K2_LOOP", False)
    A(f"v_subrev_u32 v8, {2*XS}, v8\nv_subrev_u32 v9, {2*XS}, v9\nv_subrev_u32 v10, {2*XS}, v10\nv_subrev_u32 v11, {2*XS}, v11\nv_subrev_u32 v15, {2*WSL}, v12")
    WA, WBs = [2, 5, 6], [0, 3, 1, 4]
    seq = [(0, kk) for kk in range(6)] + [(1, kk) for kk in range(6)]
    G0 = [128, 132, 136, 140, 152, 164, 168, 144]
    G1 = [172, 176, 180, 184, 188, 192, 196, 200]
    G2_ = [204, 208, 212, 216, 248, 148, 156, 160]
    GR = [G0, G1, G2_]
    def xreg(idx, a_): return GR[idx % 3][a_]
    def wreg_(idx, w): return GR[idx % 3][4 + (WBs if seq[idx][0] else WA).index(w)]
    def treads(idx):
        part, kk = seq[idx]; slot = (2, 0, 1)[kk >> 1]; ks = kk & 1
        xo = [f"ds_read_b64_tr_b16 {vr(xreg(idx,a_)+2*hh,2)}, v{8+a_} offset:{slot*XS + ks*8192 + hh*4096}" for a_ in range(4) for hh in range(2)]
        wreg, wo_ = ("v12", 0) if slot == 2 else ("v15", slot * WSL)
        wo = [f"ds_read_b128 {vr(wreg_(idx,w),4)}, {wreg} offset:{wo_ + ks*14336 + w*1024}" for w in (WBs if part else WA)]
        return wo[:1] + xo + wo[1:]
    epiA = []
    for a0 in (0, 2):
        o = T + 2 * a0
        epiA += prod(2, a0, o) + prod(2, a0 + 1, o + 2) + ["s_nop 1", f"v_permlane32_swap_b32 v{o}, v{o+2}", f"v_permlane32_swap_b32 v{o+1}, v{o+3}",
                 f"buffer_store_dwordx4 {vr(o,4)}, v220, s[12:15], s41 offen sc1\ns_add_u32 s41, s41, 110592"]
    for a_ in (0, 2):
        x, y = acc(6, a_), acc(6, a_ + 1)
        epiA += [f"v_permlane32_swap_b32 v{x+e}, v{y+e}" for e in range(4)]
    for a_ in (0, 2):
        x, y = acc(6, a_), acc(6, a_ + 1)
        epiA += [f"v_pk_mul_f32 {vr(x,2)}, {vr(x,2)}, {vr(y,2)}", f"v_pk_mul_f32 {vr(x+2,2)}, {vr(x+2,2)}, {vr(y+2,2)}",
                 f"v_cvt_pk_bf16_f32 v{T+8+a_}, v{x}, v{x+1}", f"v_cvt_pk_bf16_f32 v{T+9+a_}, v{x+2}, v{x+3}"]
    epiA += ["s_nop 1", f"v_permlane16_swap_b32 v{T+8}, v{T+10}", f"v_permlane16_swap_b32 v{T+9}, v{T+11}",
             f"buffer_store_dwordx4 {vr(T+8,4)}, v221, s[12:15], s42 offen sc1"]
    FLA = E("FLA", 11)
    for idx, (part, kk) in enumerate(seq):
        one = lambda w, a_: f"v_mfma_f32_16x16x32_bf16 {vr(acc(w,a_),4)}, {vr(wreg_(idx,w),4)}, {vr(xreg(idx,a_),4)}, {vr(acc(w,a_),4)}"
        A(f"s_waitcnt lgkmcnt({len(treads(idx + 1)) if 0 < idx < 11 else 0})")
        if idx in (2, E('B9B', 7), 11): A("s_barrier")
        if E("G2ST", 0) and idx in (0, 6, 11): stamp({0: 1, 6: 2, 11: 3}[idx])
        if idx == FLA: A("s_waitcnt vmcnt(0)\nbuffer_store_dword v13, v14, s[12:15], s43 offen sc1")
        if E("G2ST", 0) and idx == 11: stamp(4)
        if idx < 11:
            m = [one(w, a_) for w in (WBs if part else WA) for a_ in range(4)]
            rd = treads(idx + 2) if idx < 10 else []
            if idx == 0:
                r1 = treads(1)
                rd = ["\n".join(r1[2*k: 2*k+2]) for k in range(6)] + ["s_barrier\n" + "\n".join(rd[0:2])] + ["\n".join(rd[2*k: 2*k+2]) for k in range(1, 6)]
            for k, x in enumerate(m):
                A(x)
                if k < len(rd): A(rd[k])
                if idx >= 6 and not (idx == 6 and k < 3):
                    for _ in range(E('EPR', 2)):
                        if epiA: A(epiA.pop(0))
        else:
            assert not epiA
            TB = 172
            pend = []
            for gi in range(4):
                if gi >= 3: pend += prod(0, 0, TB) + prod(1, 0, TB + 2)
                for w in WBs:
                    A(one(w, gi))
                    for _ in range(2):
                        if pend: A(pend.pop(0))
            for gi in range(4):
                if gi: pend += prod(0, gi, TB + 4 * gi) + prod(1, gi, TB + 4 * gi + 2)
                pend += [f"buffer_store_dwordx4 {vr(TB+4*gi,4)}, v4, s[12:15], s40 offen sc1\ns_add_u32 s40, s40, 55296"]
            for o in pend: A(o)
    A("K2_FIN:")
    stamp(6)
    AC2 = 16; WS2 = [56, 76, 168]; HB = 96; DH = E("DH", 6); HR = 144; SBS = E("SBS", 7)
    for i in range(0, 40, 2): A(f"v_mov_b64 {vr(AC2+i,2)}, 0")
    A("s_waitcnt vmcnt(0)\nbuffer_store_dword v13, v14, s[12:15], s44 offen sc1")
    stamp(8)
    def wread(n):
        off = (2 * n if n < 15 else 2 * (n - 15)) * 5120
        return [f"ds_read_b128 {vr(WS2[n%3]+4*t,4)}, v{224 + off // 61440} offset:{off % 61440 + 1024*t}" for t in range(5)]
    A("s_barrier")
    stamp(10)
    hq = []
    def hload(n):
        b = HB + (n % DH) * 8
        A(f"buffer_load_dwordx4 {vr(b,4)}, v222, s[12:15], s45 offen sc1\nbuffer_load_dwordx4 {vr(b+4,4)}, v223, s[12:15], s45 offen sc1\ns_add_u32 s45, s45, 2048")
        hq.extend([n, n])
    issue = {}
    for n in range(DH, 27): issue.setdefault(max(n - DH, SBS if n >= 11 else 0), []).append(n)
    for n in range(DH): hload(n)
    for o in wread(0) + wread(1): A(o)
    for n in range(27):
        last = max(i for i, t in enumerate(hq) if t == n)
        A(f"s_waitcnt vmcnt({len(hq) - 1 - last}) lgkmcnt({5 if n < 26 else 0})")
        if n == SBS:
            A("s_barrier")
            for x in [y for y in issue[n] if y - DH < n]: hload(x)
            issue[n] = [y for y in issue[n] if y - DH >= n]
            A("buffer_load_dword v164, v228, s[12:15], s46 offen sc1"); hq.append(-1)
        if E("G2ST", 0) and n in (5, 9, 12): stamp({5: 7, 9: 9, 12: 12}[n])
        b = HB + (n % DH) * 8
        m = [f"v_mfma_f32_16x16x32_bf16 {vr(AC2+(a_*5+t)*4,4)}, {vr(WS2[n%3]+4*t,4)}, {vr(b+4*a_,4)}, {vr(AC2+(a_*5+t)*4,4)}" for a_ in (1, 0) for t in range(5)]
        oth = wread(n + 2) if n < 25 else []
        if n == 25: oth = [f"ds_read_b64_tr_b16 {vr(188+2*t,2)}, v227 offset:{2048*t}" for t in range(5)]
        if n == 26:
            for t in range(5):
                oth += [f"v_lshlrev_b32 v{HR+4*t}, 16, v{188+2*t}\nv_and_b32 v{HR+4*t+1}, 0xffff0000, v{188+2*t}",
                        f"v_lshlrev_b32 v{HR+4*t+2}, 16, v{189+2*t}\nv_and_b32 v{HR+4*t+3}, 0xffff0000, v{189+2*t}"]
        if n in (4, E('S2AT', 13), 19): oth = [None] * 3 + ["s_waitcnt lgkmcnt(0)\ns_barrier"] + oth
        for k, x in enumerate(m):
            A(x)
            if k < len(oth) and oth[k]: A(oth[k])
        for x in issue.get(n, []): hload(x)
    stamp(11)
    A("s_nop 2")
    for t in range(5): A(f"ds_write_b128 v232, {vr(AC2+(5+t)*4,4)} offset:{1024*t}")
    A("s_waitcnt lgkmcnt(0)\ns_barrier")
    R = 56
    OF = os.environ.get("OUTF", "")
    for t in range(5): A(f"ds_read_b128 {vr(R+4*t,4)}, v231 offset:{1024*t}")
    for t in range(5):
        A(f"s_waitcnt lgkmcnt({4-t})")
        for e in (0, 2): A(f"v_pk_add_f32 {vr(AC2+4*t+e,2)}, {vr(AC2+4*t+e,2)}, {vr(R+4*t+e,2)}")
        for e in (0, 2): A(f"v_pk_fma_f32 {vr(AC2+4*t+e,2)}, {vr(AC2+4*t+e,2)}, v[164:165], {vr(HR+4*t+e,2)} op_sel_hi:[1,0,1]")
        A(f"v_cvt_pk_bf16_f32 v{80+2*t}, v{AC2+4*t}, v{AC2+4*t+1}\nv_cvt_pk_bf16_f32 v{80+2*t+1}, v{AC2+4*t+2}, v{AC2+4*t+3}")
        if t in (1, 3):
            o = 80 + 2 * (t - 1)
            A(f"s_nop 1\nv_permlane16_swap_b32 v{o}, v{o+2}\nv_permlane16_swap_b32 v{o+1}, v{o+3}\nbuffer_store_dwordx4 {vr(o,4)}, v230, s[8:11], s47 offen offset:{32*(t-1)} {OF}")
    A(f"buffer_store_dwordx2 v[88:89], v229, s[8:11], s47 offen offset:128 {OF}")
    finish()
    A("K2_STAT:\nbuffer_store_dword v13, v14, s[12:15], s43 offen sc1")
    loop("K2_SLOOP", True)
    A(f"""
    v_and_b32 v5, 3, v1
    v_bfe_u32 v6, v1, 2, 2
    v_lshrrev_b32 v7, 4, v1
    v_cmp_eq_u32 s[20:21], 1, v5
    v_cmp_eq_u32 s[22:23], 2, v5
    v_cmp_eq_u32 s[24:25], 3, v5
    v_cmp_eq_u32 s[26:27], v6, v7
    v_and_b32 v5, 15, v1
    v_lshlrev_b32 v5, 2, v5
    s_lshl_b32 s28, s16, 9
    s_lshl_b32 s29, s18, 8
    s_add_u32 s28, s28, s29
    s_add_u32 s28, s28, {WS_R2:#x}
    """)
    for a_ in range(4):
        g = ACC + 4 * a_; s_ = ACC + 16 + 4 * a_
        A(f"""
        v_cndmask_b32 v{g}, v{g}, v{g+1}, s[20:21]
        v_cndmask_b32 v{g}, v{g}, v{g+2}, s[22:23]
        v_cndmask_b32 v{g}, v{g}, v{g+3}, s[24:25]
        v_mul_f32 v{s_}, 0x3acccccd, v{s_}
        v_mul_f32 v{g}, 0x3acccccd, v{g}
        v_fma_f32 v{g}, -v{s_}, v{s_}, v{g}
        v_max_f32 v{g}, 0, v{g}
        v_cvt_pk_bf16_f32 v{g}, v{g}, v{g}
        v_lshlrev_b32 v{g}, 16, v{g}
        v_add_f32 v{g}, 0x3727c5ac, v{g}
        v_cvt_pk_bf16_f32 v{g}, v{g}, v{g}
        v_lshlrev_b32 v{g}, 16, v{g}
        v_sqrt_f32 v{g}, v{g}
        s_nop 0
        v_cvt_pk_bf16_f32 v{g}, v{g}, v{g}
        v_lshlrev_b32 v{g}, 16, v{g}
        v_mul_f32 v{g}, v{g}, v{g}
        v_rcp_f32 v{g}, v{g}
        """)
    A("s_mov_b64 exec, s[26:27]")
    for a_ in range(4): A(f"buffer_store_dword v{ACC+4*a_}, v5, s[12:15], s28 offen offset:{64*a_} sc1")
    A("s_mov_b64 exec, -1\ns_branch K2_FIN\nK_END:\ns_endpgm")

def main(out):
    gen()
    hdr = open("sequential_preLN__ssm_conv_s4__glu_gated_bilinear__prompt.s.ref").read().split("; Override launch")[0]
    s = hdr + f"; @launch grid=(256,1,1) block=(512,1,1) lds={LDS_SIZE}\n"
    s += f'.amdgcn_target "amdgcn-amd-amdhsa--gfx950"\n.text\n.globl {KNAME}\n.p2align 8\n.type {KNAME},@function\n{KNAME}:\n'
    s += A.text().replace("CNTADDR", str(K1_CNT)).replace("XGN", "0" if E("NOXG", 0) else "5").replace("XGLIM", "0" if E("NOXG", 0) else "0x40000") + "CODE_END:\n"
    s += f""".section .rodata,"a"
.p2align 6
.amdhsa_kernel {KNAME}
  .amdhsa_next_free_vgpr 252
  .amdhsa_next_free_sgpr 96
  .amdhsa_accum_offset 252
  .amdhsa_group_segment_fixed_size 0
  .amdhsa_kernarg_size 128
  .amdhsa_user_sgpr_count 2
  .amdhsa_user_sgpr_kernarg_segment_ptr 1
  .amdhsa_system_sgpr_workgroup_id_x 1
.end_amdhsa_kernel
"""
    open(out, "w").write(s)
if __name__ == "__main__":
    main(sys.argv[1] if len(sys.argv) > 1 else "f.s")
```
